```python
import torch

def _softmax(x, axis=-1):
    return torch.softmax(x, dim=axis)
def _gelu(x):
    return torch.nn.functional.gelu(x, approximate="tanh")
def _silu(x):
    return torch.nn.functional.silu(x)
def _sigmoid(x):
    return torch.sigmoid(x)
def _layernorm(x, axis=-1, eps=1e-5):
    m = x.mean(dim=axis, keepdim=True)
    v = x.var(dim=axis, keepdim=True, unbiased=False)
    return (x - m) / torch.sqrt(v + eps)
def _scatter_add(tgt, idx, src, axis=0):
    return tgt.clone().index_add_(axis, idx, src)
def _segment_sum(src, seg, n):
    out = torch.zeros((n,) + src.shape[1:], dtype=src.dtype)
    return out.index_add_(0, seg, src)
def _pad(x, pw):
    flat = tuple(v for pair in reversed(pw) for v in pair)
    return torch.nn.functional.pad(x, flat)

kernel_name = 'concat_heads__compressed_kv_cla__sliding_block_cached__decode'

def setup_inputs():

    _w = (lambda a: (lambda t: t.to(torch.bfloat16) if t.is_floating_point() else t)(torch.as_tensor(a)))
    def _A_setup():
        B, H, Sq, Sk, D, M = 2, 32, 1, 8192, 128, 512
        Dc = 4 * D
        return {
            "x": _w((lambda *s: torch.randn(*s, dtype=torch.bfloat16) * 3.2)(B, Sq, M)),
            "c_kv": _w((lambda *s: torch.randn(*s, dtype=torch.bfloat16) * 0.1)(B, Sk, Dc)),
            "w_q": _w((lambda *s: torch.randn(*s, dtype=torch.bfloat16) * 6.4)(M, H, D) * (M ** -0.5)),
            "w_uk": _w((lambda *s: torch.randn(*s, dtype=torch.bfloat16) * 6.4)(Dc, H, D) * (Dc ** -0.5)),
            "w_uv": _w((lambda *s: torch.randn(*s, dtype=torch.bfloat16) * 0.1)(Dc, H, D) * (Dc ** -0.5)),
            "w_o": _w((lambda *s: torch.randn(*s, dtype=torch.bfloat16) * 0.1)(H, D, M) * ((H * D) ** -0.5)),
        }
    _A_in = _A_setup()

    def _B_setup():
        B, Sq, D = 2, 1, 512
        Hq, Hkv, Sk, Dh = 32, 8, 8192, 128
        assert Hq % Hkv == 0, (Hq, Hkv)
        return {
            "x": _w((lambda *s: torch.randn(*s, dtype=torch.bfloat16) * 1.6)(B, Sq, D)),
            "k_cache": _w((lambda *s: torch.randn(*s, dtype=torch.bfloat16) * 1.6)(B, Hkv, Sk, Dh)),
            "v_cache": _w((lambda *s: torch.randn(*s, dtype=torch.bfloat16) * 0.05)(B, Hkv, Sk, Dh)),
            "wq": _w((lambda *s: torch.randn(*s, dtype=torch.bfloat16) * 1.6)(D, Hq * Dh) * (D ** -0.5)),
            "wo": _w((lambda *s: torch.randn(*s, dtype=torch.bfloat16) * 0.05)(Hq * Dh, D) * ((Hq * Dh) ** -0.5)),
        }
    _B_in = _B_setup()

    return {
        "A_x": _A_in["x"],
        "A_c_kv": _A_in["c_kv"],
        "A_w_q": _A_in["w_q"],
        "A_w_uk": _A_in["w_uk"],
        "A_w_uv": _A_in["w_uv"],
        "A_w_o": _A_in["w_o"],
        "B_x": _B_in["x"],
        "B_k_cache": _B_in["k_cache"],
        "B_v_cache": _B_in["v_cache"],
        "B_wq": _B_in["wq"],
        "B_wo": _B_in["wo"],
    }

def reference(A_x, A_c_kv, A_w_q, A_w_uk, A_w_uv, A_w_o, B_x, B_k_cache, B_v_cache, B_wq, B_wo):
    def _A_ref(x, c_kv, w_q, w_uk, w_uv, w_o):
        B, Sq, M = x.shape[0], x.shape[1], x.shape[2]
        Sk = c_kv.shape[1]
        H, D = w_q.shape[1], w_q.shape[2]
        q = torch.einsum("bqm,mhd->bhqd", x, w_q)
        k = torch.einsum("bkc,chd->bhkd", c_kv, w_uk)
        v = torch.einsum("bkc,chd->bhkd", c_kv, w_uv)
        scores = torch.einsum("bhqd,bhkd->bhqk", q, k) * (D ** -0.5)
        off = Sk - Sq
        qi = torch.arange(Sq)[:, None]
        kj = torch.arange(Sk)[None, :]
        cmask = kj <= (qi + off)
        scores = torch.where(cmask[None, None], scores, -1e9)
        p = _softmax(scores, axis=-1)
        ctx = torch.einsum("bhqk,bhkd->bhqd", p, v)
        return torch.einsum("bhqd,hdm->bqm", ctx, w_o)

    def _B_ref(x, k_cache, v_cache, wq, wo):
        B, Sq, D = x.shape
        Hq, Dh = 32, 128
        Hkv, Sk = k_cache.shape[1], k_cache.shape[2]
        W = min(4096, max(256, Sk // 4))
        rep = Hq // Hkv
        q = (lambda x, *d: x.permute(*d))((x @ wq).reshape(B, Sq, Hq, Dh), 0, 2, 1, 3)
        k = (lambda x, n, axis: torch.repeat_interleave(x, n, dim=axis))(k_cache[:, :, Sk - W:, :], rep, axis=1)
        v = (lambda x, n, axis: torch.repeat_interleave(x, n, dim=axis))(v_cache[:, :, Sk - W:, :], rep, axis=1)
        scores = torch.einsum("bhqd,bhkd->bhqk", q, k) * (Dh ** -0.5)
        p = _softmax(scores, axis=-1)
        o = torch.einsum("bhqk,bhkd->bhqd", p, v)
        return (lambda x, *d: x.permute(*d))(o, 0, 2, 1, 3).reshape(B, Sq, Hq * Dh) @ wo

    a = _A_ref(A_x, A_c_kv, A_w_q, A_w_uk, A_w_uv, A_w_o)
    b = _B_ref(B_x, B_k_cache, B_v_cache, B_wq, B_wo)
    return torch.concatenate([a, b], axis=-1)
```

```python
KNAME = "concat_heads__compressed_kv_cla__sliding_block_cached__decode"

HEADER = """; Kernarg layout for this problem (112 bytes, ptrs only, base s[0:1]):
"""

class Asm:
    def __init__(self):
        self.lines = []
        self.nlabel = 0
    def __call__(self, s):
        for ln in s.strip("\n").split("\n"):
            self.lines.append("    " + ln.strip())
    def label(self, name):
        self.lines.append(name + ":")
    def newlabel(self, base="L"):
        self.nlabel += 1
        return f".{base}_{self.nlabel}"
    def raw(self, s):
        self.lines.append(s)
    def text(self):
        return "\n".join(self.lines) + "\n"

def kernel_begin(a, name):
    a.raw(".text")
    a.raw(f".globl {name}")
    a.raw(".p2align 8")
    a.raw(f".type {name},@function")
    a.raw(f"{name}:")

def kernel_desc(name, vgpr, sgpr, accum):
    return f""".section .rodata,"a"
.p2align 6
.amdhsa_kernel {name}
  .amdhsa_next_free_vgpr {vgpr}
  .amdhsa_next_free_sgpr {sgpr}
  .amdhsa_accum_offset {accum}
  .amdhsa_group_segment_fixed_size 0
  .amdhsa_kernarg_size 112
  .amdhsa_user_sgpr_count 2
  .amdhsa_user_sgpr_kernarg_segment_ptr 1
  .amdhsa_system_sgpr_workgroup_id_x 1
.end_amdhsa_kernel
"""

def srd(a, s, base_lo, base_hi, nbytes):
    a(f"""s_mov_b32 s{s}, s{base_lo}
    s_mov_b32 s{s+1}, s{base_hi}
    s_mov_b32 s{s+2}, {nbytes}
    s_mov_b32 s{s+3}, 0x00020000""")
```

```python
import sys
from asmlib import *

H1A  = 0x040000
H1B  = 0x080000
H2   = 0x0C0000
H4   = 0x100000
H3B  = 0x140000
H3BS = 0x1C0000
H3S  = 0x1C8000
H5   = 0x200000
H3   = 0x400000
STAMP = 0x1000000
CKV   = 0x00000
LW0, LW1, LW2 = 0x0000, 0x4000, 0x8000
QABS  = 0x20000
PBUF  = 0x24000
MAXB  = 0x25000
LBUF  = 0x25200
FLAGS = 0x25400
VEC0  = 0x25500
VEC1  = 0x25600
OBS   = 0x25700
QBL   = 0x25800
PBL   = 0x25C00
OBL   = 0x26000
LDS_TOTAL = 0x28000
F_TILE, F_QABS, F_CLR, F_QB, F_BARR, F_WUV, F_WO, F_WOB, F_CKVDONE = 0, 8, 9, 10, 11, 12, 13, 14, 15

TAGC = 0x9E3779B9
CS = 0x3E0293EE
import struct
CSF = (128 ** -0.5) * 1.4426950408889634
CS = struct.unpack("<I", struct.pack("<f", CSF))[0]

def Lsw(i):
    return (i & 1) | ((i & 2) << 2) | ((i & 4) >> 1) | ((i & 8) >> 1)

S_WAVE = 3
S_TAG = 44; S_H = 45; S_J = 46; S_SPIN = 47
WS = "s[48:51]"
V_LANE, V_J16, V_G = 1, 2, 3
SEL = [[4, 5, 6, 7], [8, 9, 10, 11]]
MSK = [[12, 13], [14, 15]]

class G:
    def __init__(self, diag=False, depth=8, spin_lim=200000):
        self.a = Asm()
        self.diag = diag
        self.depth = depth
        self.spin_lim = spin_lim
    def sreg(self, k):
        return 80 + 2*k if k < 11 else 4 + 2*(k - 11)
    def stamp(self, k):
        if self.diag:
            assert k < 16
            r = self.sreg(k)
            self.a(f"s_memrealtime s[{r}:{r+1}]")
    def dump_stamps(self, n):
        a = self.a
        if not self.diag: return
        a("s_waitcnt lgkmcnt(0) vmcnt(0)")
        a(f"""s_lshl_b32 s64, s2, 3
        s_add_u32 s64, s64, s{S_WAVE}
        s_lshl_b32 s64, s64, 6
        s_add_u32 s64, s64, {STAMP}
        v_mov_b32 v17, 0
        s_mov_b64 exec, 1""")
        for k in range(n):
            a(f"v_mov_b32 v16, s{self.sreg(k)}")
            a(f"buffer_store_dword v16, v17, {WS}, s64 offen offset:{4*k}")
            a("s_nop 1")
        a("s_mov_b64 exec, -1")
    def srd(self, s, base, nbytes):
        srd(self.a, s, base, base + 1, nbytes)
    def spin_fail(self, retry):
        a = self.a
        a(f"""s_add_u32 s{S_SPIN}, s{S_SPIN}, 1
        s_cmp_lt_u32 s{S_SPIN}, {self.spin_lim}
        s_cbranch_scc1 {retry}
        s_branch .Lend""")
    def wait_flag(self, idx, target, vt=16, va=17):
        a = self.a
        lp = a.newlabel("wf"); ok = a.newlabel("wfok")
        a(f"v_mov_b32 v{va}, {FLAGS + 4*idx}" if isinstance(idx, int) else idx)
        a.label(lp)
        a(f"""ds_read_b32 v{vt}, v{va}
        s_waitcnt lgkmcnt(0)
        v_readfirstlane_b32 s65, v{vt}
        s_nop 1
        s_cmp_ge_u32 s65, {target}
        s_cbranch_scc1 {ok}""")
        self.spin_fail(lp)
        a.label(ok)
    def set_flag(self, idx, vt=16, va=17, add=False):
        a = self.a
        a(f"v_mov_b32 v{va}, {FLAGS + 4*idx}")
        a(f"v_mov_b32 v{vt}, 1")
        if add:
            a("s_mov_b64 exec, 1")
            a(f"ds_add_u32 v{va}, v{vt}")
            a("s_mov_b64 exec, -1")
        else:
            a(f"ds_write_b32 v{va}, v{vt}")
    def tagcheck(self, words, acc, retry):
        a = self.a
        a(f"v_xor_b32 v{acc}, s{S_TAG}, v{words[0]}")
        for w in words[1:]:
            a(f"v_bitop3_b32 v{acc}, v{acc}, v{w}, s{S_TAG} bitop3:0xf6")
        ok = a.newlabel("tok")
        a(f"""v_cmp_ne_u32 vcc, 0, v{acc}
        s_nop 1
        s_cbranch_vccz {ok}
        s_sleep 2""")
        self.spin_fail(retry)
        a.label(ok)
    def xrow_reduce(self, op, x, tmp, steps=(16, 32)):
        a = self.a
        for st in steps:
            a(f"""v_mov_b32 v{tmp}, v{x}
            s_nop 1
            v_permlane{st}_swap_b32 v{x}, v{tmp}
            s_nop 1
            {op} v{x}, v{x}, v{tmp}""")
    def diag_mfma(self, X, W, acc, A0, A1, n=16, pre=None, first_zero=True):
        a = self.a
        def perms(t):
            A = A0 if t % 2 == 0 else A1
            for k in range(4):
                a(f"v_perm_b32 v{A+k}, v{X + t//2}, v{X + t//2}, v{SEL[t%2][k]}")
        perms(0)
        for t in range(n):
            A = A0 if t % 2 == 0 else A1
            if t + 1 < n: perms(t + 1)
            else: a("s_nop 1")
            if pre: pre(t)
            c = "0" if (t == 0 and first_zero) else f"v[{acc}:{acc+3}]"
            a(f"v_mfma_f32_16x16x32_bf16 v[{acc}:{acc+3}], v[{A}:{A+3}], v[{W+4*t}:{W+4*t+3}], {c}")
    def publish_granule(self, acc, q, voff, soff, scale=None):
        a = self.a
        a("s_nop 7")
        a("s_nop 1")
        if scale is not None:
            for r in range(4): a(f"v_mul_f32 v{acc+r}, {scale}, v{acc+r}")
        a(f"""v_cvt_pk_bf16_f32 v{q}, v{acc}, v{acc+1}
        v_cvt_pk_bf16_f32 v{q+2}, v{acc+2}, v{acc+3}
        v_mov_b32 v{q+1}, s{S_TAG}
        v_mov_b32 v{q+3}, s{S_TAG}
        buffer_store_dwordx4 v[{q}:{q+3}], v{voff}, {WS}, {soff} offen sc1""")

    def prologue(self):
        a = self.a
        a(f"""
        s_cmp_ge_u32 s2, 256
        s_cbranch_scc1 .Lend
        s_load_dwordx16 s[16:31], s[0:1], 0
        s_load_dwordx8 s[32:39], s[0:1], 64
        s_load_dwordx4 s[40:43], s[0:1], 96""")
        if self.diag:
            for k in range(1, 16): a(f"s_mov_b32 s{self.sreg(k)}, 0")
        self.stamp(0)
        a(f"""
        v_and_b32 v{V_LANE}, 63, v0
        v_lshrrev_b32 v16, 6, v0
        v_and_b32 v{V_J16}, 15, v{V_LANE}
        v_readfirstlane_b32 s{S_WAVE}, v16
        v_lshrrev_b32 v{V_G}, 4, v{V_LANE}
        s_and_b32 s{S_H}, s2, 31
        s_lshr_b32 s{S_J}, s2, 5
        s_mov_b32 s{S_SPIN}, 0
        v_and_b32 v16, 1, v{V_J16}          ; par
        v_bfe_u32 v17, v{V_J16}, 1, 2       ; k' = (j16>>1)&3
        v_cmp_eq_u32 vcc, 1, v16
        v_mov_b32 v18, 0x01000c0c
        v_mov_b32 v19, 0x03020c0c
        v_mov_b32 v20, 0x0c0c0100
        v_mov_b32 v21, 0x0c0c0302
        v_mov_b32 v22, 0x0c0c0c0c
        v_cndmask_b32 v18, v20, v18, vcc
        v_cndmask_b32 v19, v21, v19, vcc
        """)
        for k in range(4):
            a(f"""v_cmp_eq_u32 vcc, {k}, v17
            s_nop 1
            v_cndmask_b32 v{SEL[0][k]}, v22, v18, vcc
            v_cndmask_b32 v{SEL[1][k]}, v22, v19, vcc""")
        a(f"""
        v_cmp_eq_u32 vcc, 1, v16
        v_mov_b32 v18, 0xffff0000
        v_mov_b32 v20, 0x0000ffff
        v_cndmask_b32 v18, v20, v18, vcc
        v_lshrrev_b32 v19, 1, v{V_J16}
        """)
        for sg in range(2):
            for rg in range(2):
                a(f"""v_cmp_eq_u32 vcc, {sg*2+rg}, v19
                s_nop 1
                v_cndmask_b32 v{MSK[sg][rg]}, 0, v18, vcc""")
        a(f"""
        s_waitcnt lgkmcnt(0)
        """)
        self.stamp(15)
        self.srd(48, 42, 268435456)
        a(f"""
        s_cmp_eq_u32 s{S_WAVE}, 0
        s_cbranch_scc1 .Lw0
        s_cmp_eq_u32 s{S_WAVE}, 1
        s_cbranch_scc1 .Lw1
        s_cmp_lt_u32 s{S_WAVE}, 4
        s_cbranch_scc1 .Lw23
        s_branch .Lw47
        """)
    def load_tag(self):
        self.a(f"s_load_dword s{S_TAG}, s[42:43], 0")
    def poll_light(self, voff, soff, nlanes, sleep=2, vd=26):
        a = self.a
        lp = a.newlabel("pl"); ok = a.newlabel("plok")
        a(f"""v_cmp_gt_u32 vcc, {nlanes}, v{V_LANE}
        s_and_saveexec_b64 s[70:71], vcc""")
        a.label(lp)
        a(f"""buffer_load_dwordx2 v[{vd}:{vd+1}], v{voff}, {WS}, {soff} offen sc1
        s_waitcnt vmcnt(0)
        v_cmp_ne_u32 vcc, s{S_TAG}, v{vd+1}
        s_nop 1
        s_cbranch_vccz {ok}
        s_sleep {sleep}""")
        self.spin_fail(lp)
        a.label(ok)
        a("s_mov_b64 exec, s[70:71]")
    def get_tag(self):
        self.a(f"""s_waitcnt lgkmcnt(0)
        s_add_u32 s{S_TAG}, s{S_TAG}, {TAGC}""")

    def p1_issue(self, xbase, wbase, s_col):
        a = self.a
        self.srd(60, xbase, 2048)
        self.srd(52, wbase, 4194304)
        a(f"""
        v_lshrrev_b32 v16, 3, v{V_J16}
        v_lshlrev_b32 v16, 10, v16
        v_lshl_add_u32 v16, v{V_G}, 5, v16       ; b*1024 + g*32
        s_lshl_b32 s64, s{S_J}, 7                ; j*128
        buffer_load_dwordx4 v[32:35], v16, s[60:63], s64 offen
        buffer_load_dwordx4 v[36:39], v16, s[60:63], s64 offen offset:16
        v_lshlrev_b32 v17, 17, v{V_G}
        v_lshl_add_u32 v17, v{V_J16}, 4, v17     ; g<<17 | j16<<4
        s_lshl_b32 s66, s{S_J}, 19
        s_add_u32 s66, s66, {s_col}              ; j<<19 + col
        s_mov_b32 s67, s66
        """)
        for t in range(16):
            a(f"buffer_load_dwordx4 v[{64+4*t}:{67+4*t}], v17, s[52:55], s67 offen nt")
            if t < 15: a("s_add_u32 s67, s67, 8192")
    def p1_compute(self, extra_outstanding, hbase, s_head):
        a = self.a
        def pre(t):
            a(f"s_waitcnt vmcnt({min(63, 15 - t + extra_outstanding)})")
        a(f"s_waitcnt vmcnt({16 + extra_outstanding})")
        self.diag_mfma(32, 64, 48, 40, 44, pre=pre)
        self.get_tag()
        a(f"""
        v_lshrrev_b32 v19, 1, v{V_G}
        v_lshlrev_b32 v19, 9, v19                ; (g>>1)*512
        v_lshl_add_u32 v19, v{V_J16}, 5, v19     ; + j16*32
        v_and_b32 v20, 1, v{V_G}
        v_lshl_add_u32 v19, v20, 4, v19
        s_lshl_b32 s64, {s_head}, 3
        s_add_u32 s64, s64, s{S_J}
        s_lshl_b32 s64, s64, 10
        s_add_u32 s64, s64, {hbase}
        """)
        self.publish_granule(48, 52, 19, "s64")

    def w0_front(self):
        a = self.a
        a.label(".Lw0")
        self.load_tag()
        a(f"s_lshl_b32 s68, s{S_H}, 8")
        self.p1_issue(16, 20, "s68")
        self.srd(56, 22, 4194304)
        a(f"""
        v_lshlrev_b32 v18, 15, v{V_J16}
        v_lshl_add_u32 v18, v{V_G}, 4, v18       ; j16<<15 | g<<4
        s_mov_b32 s67, s66
        """)
        for tt in range(4):
            for sp in range(4):
                r = 128 + 16*tt + 4*sp
                a(f"buffer_load_dwordx4 v[{r}:{r+3}], v18, s[56:59], s67 offen offset:{64*sp} nt")
            if tt < 3: a("s_add_u32 s67, s67, 8192")
        a("s_barrier")
        self.stamp(1)
        self.p1_compute(16, H1A, f"s{S_H}")
        self.stamp(2)
        a(f"""
        v_lshrrev_b32 v20, 1, v{V_J16}           ; p
        v_lshlrev_b32 v20, 10, v20
        v_and_b32 v21, 1, v{V_J16}               ; b
        v_lshl_add_u32 v20, v21, 9, v20
        v_lshl_add_u32 v20, v{V_G}, 5, v20       ; p*1024 + b*512 + gq*32
        s_lshl_b32 s64, s{S_H}, 13
        s_add_u32 s64, s64, {H1A}
        """)
        a(f"""v_lshlrev_b32 v21, 10, v{V_LANE}
        v_add_u32 v21, 1008, v21""")
        self.poll_light(21, "s64", 8)
        lp = a.newlabel("h1")
        a.label(lp)
        for sp in range(4):
            for hf in range(2):
                r = 192 + 8*sp + 4*hf
                a(f"buffer_load_dwordx4 v[{r}:{r+3}], v20, {WS}, s64 offen offset:{128*sp + 16*hf} sc1")
        a("s_waitcnt vmcnt(0)")
        words = []
        for q in range(8): words += [192 + 4*q + 1, 192 + 4*q + 3]
        self.tagcheck(words, 21, lp)
        self.stamp(3)
        for sp in range(4):
            r = 192 + 8*sp
            a(f"""v_mov_b32 v{r+1}, v{r+2}
            v_mov_b32 v{r+2}, v{r+4}
            v_mov_b32 v{r+3}, v{r+6}""")
        a("s_nop 1")
        for sp in range(4):
            for tt in range(4):
                c = "0" if sp == 0 else f"v[{224+4*tt}:{227+4*tt}]"
                a(f"v_mfma_f32_16x16x32_bf16 v[{224+4*tt}:{227+4*tt}], v[{192+8*sp}:{195+8*sp}], v[{128+16*tt+4*sp}:{131+16*tt+4*sp}], {c}")
        a("s_nop 7"); a("s_nop 1")
        for tt in range(4):
            d = 224 + 4*tt
            a(f"v_add_f32 v{d}, v{d}, v{d+2}")
            a(f"v_add_f32 v{d+1}, v{d+1}, v{d+3}")
        a("s_nop 1")
        for tt in range(4):
            d = 224 + 4*tt
            a(f"v_permlane32_swap_b32 v{d}, v{d+1}")
        a("s_nop 1")
        for tt in range(4):
            d = 224 + 4*tt
            a(f"v_add_f32 v{d}, v{d}, v{d+1}")
        for tt in range(4):
            d = 224 + 4*tt
            a(f"v_mov_b32 v{d+1}, v{d}")
        a("s_nop 1")
        for tt in range(4):
            d = 224 + 4*tt
            a(f"v_permlane16_swap_b32 v{d}, v{d+1}")
        a("s_nop 1")
        for tt in range(4):
            d = 224 + 4*tt
            a(f"v_add_f32 v{d}, v{d}, v{d+1}")
            a(f"v_mul_f32 v{d}, {CS}, v{d}")
        a(f"""
        v_cvt_pk_bf16_f32 v52, v224, v228
        v_cvt_pk_bf16_f32 v54, v232, v236
        v_mov_b32 v53, s{S_TAG}
        v_mov_b32 v55, s{S_TAG}
        v_lshrrev_b32 v20, 1, v{V_G}
        v_lshlrev_b32 v20, 16, v20
        v_lshl_add_u32 v20, v{V_J16}, 4, v20     ; b*65536 + j16*16
        s_lshl_b32 s64, s{S_H}, 3
        s_add_u32 s64, s64, s{S_J}
        s_lshl_b32 s64, s64, 8
        s_add_u32 s64, s64, {H2}
        """)
        self.wait_flag(F_CLR, 4)
        a(f"""
        v_and_b32 v21, 1, v{V_G}
        v_cmp_eq_u32 vcc, 0, v21
        s_and_saveexec_b64 s[70:71], vcc
        buffer_store_dwordx4 v[52:55], v20, {WS}, s64 offen sc1
        s_mov_b64 exec, s[70:71]
        """)
        self.stamp(4)
        a("s_branch .Lattn")

    def w1_front(self):
        a = self.a
        a.label(".Lw1")
        self.load_tag()
        a(f"""s_and_b32 s72, s2, 7
        s_lshl_b32 s72, s72, 2
        s_bfe_u32 s73, s2, 0x20003
        s_add_u32 s72, s72, s73        ; hqB
        s_lshl_b32 s68, s72, 8""")
        self.p1_issue(28, 34, "s68")
        a("s_barrier")
        self.stamp(1)
        self.p1_compute(0, H1B, "s72")
        self.stamp(2)
        a("s_branch .Lattn")

    def attn_ids(self):
        a = self.a
        a(f"""s_lshr_b32 s74, s2, 7
        s_and_b32 s75, s2, 15
        s_lshr_b32 s76, s2, 5
        s_and_b32 s76, s76, 3
        s_lshl_b32 s76, s76, 4
        s_or_b32 s75, s75, s76          ; s = (w&15) | ((w>>5)&3)<<4
        s_bfe_u32 s76, s2, 0x10004      ; half""")
    def w23_front(self):
        a = self.a
        a.label(".Lw23")
        a(f"""v_lshlrev_b32 v16, 2, v{V_LANE}
        v_add_u32 v16, {FLAGS}, v16
        v_mov_b32 v17, 0
        ds_write_b32 v16, v17
        s_waitcnt lgkmcnt(0)
        s_barrier""")
        self.load_tag()
        self.attn_ids()
        self.srd(52, 18, 16777216)
        a(f"""
        s_sub_u32 s72, s{S_WAVE}, 2             ; z
        s_lshl_b32 s66, s74, 23                 ; b*8MiB
        s_lshl_b32 s67, s75, 17                 ; s*128KiB
        s_add_u32 s66, s66, s67
        s_lshl_b32 s73, s72, 14                 ; z*16KiB
        s_add_u32 s66, s66, s73
        v_lshlrev_b32 v16, 4, v{V_LANE}
        """)
        for rho in range(16):
            a(f"v_xor_b32 v{32+rho}, {Lsw(rho) << 4}, v16")
        D = self.depth
        n = 0
        flagged = 0
        a(f"s_lshl_b32 s77, s72, 2")
        a(f"v_mov_b32 v18, 1")
        for it in range(4):
            for rho in range(16):
                off = (32*it + rho) * 1024
                a(f"s_add_u32 m0, s73, {CKV + off}")
                a(f"s_add_u32 s67, s66, {off}")
                a(f"buffer_load_dwordx4 v{32+rho}, s[52:55], s67 offen nt lds")
                n += 1
                if n >= D and n < 64:
                    a(f"s_waitcnt vmcnt({D-1})")
                    landed = n - (D - 1)
                    while flagged < landed // 16:
                        self._tileflag(flagged); flagged += 1
        a("s_waitcnt vmcnt(0)")
        while flagged < 4:
            self._tileflag(flagged); flagged += 1
        self.get_tag()
        self.stamp(1)
        a("s_branch .Lattn")
    def _tileflag(self, it):
        a = self.a
        a(f"""s_add_u32 s78, s77, {FLAGS + 8*it}
        v_mov_b32 v17, s78
        ds_write_b32 v17, v18""")

    def w47_front(self):
        a = self.a
        a.label(".Lw47")
        self.load_tag()
        a(f"s_sub_u32 s72, s{S_WAVE}, 4")
        a(f"""
        s_lshl_b32 s64, s{S_H}, 3
        s_add_u32 s64, s64, s{S_J}
        s_lshl_b32 s64, s64, 14
        s_lshl_b32 s65, s72, 12
        s_add_u32 s64, s64, s65
        s_add_u32 s64, s64, {H3}
        v_lshlrev_b32 v16, 4, v{V_LANE}
        v_mov_b32 v32, -1
        v_mov_b32 v33, -1
        v_mov_b32 v34, -1
        v_mov_b32 v35, -1
        """)
        for i in range(4):
            a(f"buffer_store_dwordx4 v[32:35], v16, {WS}, s64 offen offset:{1024*i} sc1")
        a("s_barrier")
        a("s_waitcnt vmcnt(0)")
        self.set_flag(F_CLR, add=True)
        self.get_tag()
        self.stamp(1)
        a(f"""
        s_and_b32 s73, s2, 7                    ; gB
        s_lshl_b32 s73, s73, 2
        s_add_u32 s73, s73, s72                 ; hq
        s_lshr_b32 s74, s2, 7                   ; bB
        s_lshl_b32 s64, s73, 13
        s_lshl_b32 s65, s74, 9
        s_add_u32 s64, s64, s65
        s_add_u32 s64, s64, {H1B}
        s_add_u32 s66, s64, 4096
        v_lshlrev_b32 v20, 10, v{V_G}
        v_lshl_add_u32 v20, v{V_J16}, 4, v20    ; g4*1024 + j16*16
        """)
        a(f"""v_lshlrev_b32 v21, 10, v{V_LANE}
        v_add_u32 v21, 496, v21""")
        self.poll_light(21, "s64", 8, sleep=8)
        lp = a.newlabel("h1b")
        a.label(lp)
        for ph in range(2):
            for dh in range(2):
                r = 64 + 8*ph + 4*dh
                a(f"buffer_load_dwordx4 v[{r}:{r+3}], v20, {WS}, {'s64' if ph == 0 else 's66'} offen offset:{256*dh} sc1")
        a("s_waitcnt vmcnt(0)")
        words = []
        for q in range(4): words += [64 + 4*q + 1, 64 + 4*q + 3]
        self.tagcheck(words, 21, lp)
        for q in range(4): a(f"v_mov_b32 v{64+4*q+1}, v{64+4*q+2}")
        for sg in range(2):
            for rg in range(2):
                a(f"v_and_b32 v{40+2*sg+rg}, 0x3f803f80, v{MSK[sg][rg]}")
        a("s_nop 1")
        first = True
        for ph in range(2):
            for dh in range(2):
                r = 64 + 8*ph + 4*dh
                c = "0" if first else "v[48:51]"
                first = False
                a(f"v_mfma_f32_16x16x16_bf16 v[48:51], v[{40+2*dh}:{41+2*dh}], v[{r}:{r+1}], {c}")
        a("s_nop 7"); a("s_nop 1")
        for r in range(4): a(f"v_mul_f32 v{48+r}, {CS}, v{48+r}")
        a(f"""
        v_cvt_pk_bf16_f32 v52, v48, v49
        v_cvt_pk_bf16_f32 v53, v50, v51
        v_lshlrev_b32 v21, 3, v{V_LANE}          ; (16g'+j16)*8
        s_lshl_b32 s65, s72, 8
        s_add_u32 s65, s65, {QBL}
        v_add_u32 v21, s65, v21
        v_cmp_gt_u32 vcc, 32, v{V_LANE}
        s_and_saveexec_b64 s[70:71], vcc
        ds_write_b64 v21, v[52:53]
        s_mov_b64 exec, s[70:71]
        s_waitcnt lgkmcnt(0)
        """)
        self.set_flag(F_QB, add=True)
        self.stamp(2)
        self.attn_ids()
        a(f"""
        s_lshl_b32 s64, s74, 5                  ; b*32
        s_lshl_b32 s65, s76, 4                  ; half*16
        s_add_u32 s64, s64, s65
        s_lshl_b32 s65, s72, 2
        s_add_u32 s64, s64, s65                 ; b*32 + 16half + 4z
        s_lshl_b32 s64, s64, 11                 ; *2048
        s_add_u32 s64, s64, {H2}
        s_add_u32 s66, s64, 4096
        v_lshlrev_b32 v20, 4, v{V_LANE}
        """)
        a(f"""v_lshlrev_b32 v21, 8, v{V_LANE}
        v_add_u32 v21, 240, v21""")
        self.poll_light(21, "s64", 32, sleep=4)
        lp = a.newlabel("h2")
        a.label(lp)
        for hh in range(4):
            for jh in range(2):
                r = 64 + 8*hh + 4*jh
                off = hh * 2048 + jh * 1024
                sreg = "s64" if off < 4096 else "s66"
                a(f"buffer_load_dwordx4 v[{r}:{r+3}], v20, {WS}, {sreg} offen offset:{off % 4096} sc1")
        a("s_waitcnt vmcnt(0)")
        words = []
        for q in range(8): words += [64 + 4*q + 1, 64 + 4*q + 3]
        self.tagcheck(words, 21, lp)
        a(f"""
        v_lshrrev_b32 v22, 5, v{V_LANE}
        v_lshlrev_b32 v22, 8, v22
        v_and_b32 v23, 1, v{V_G}
        v_lshl_add_u32 v22, v23, 7, v22          ; + 8*16*((l>>4)&1)
        v_lshrrev_b32 v23, 1, v{V_J16}
        v_lshl_add_u32 v22, v23, 4, v22          ; + ((l&15)>>1)*16
        v_and_b32 v23, 1, v{V_LANE}
        v_lshl_add_u32 v22, v23, 3, v22          ; + (l&1)*8
        s_lshl_b32 s65, s72, 5                   ; (z<<1)<<4
        s_lshl_b32 s67, s72, 12                  ; 4z*1024
        s_add_u32 s67, s67, {QABS}
        """)
        for hh in range(4):
            a(f"""s_or_b32 s69, s65, {Lsw(hh) << 4}
            v_xor_b32 v23, s69, v22
            s_add_u32 s69, s67, {hh*1024}
            v_add_u32 v23, s69, v23""")
            for jh in range(2):
                r = 64 + 8*hh + 4*jh
                a(f"ds_write2_b32 v23, v{r}, v{r+2} offset0:{jh*128} offset1:{jh*128+1}")
        a("s_waitcnt lgkmcnt(0)")
        self.set_flag(F_QABS, add=True)
        self.stamp(3)
        self.wait_flag(F_TILE + 5, 1)
        a(f"""
        s_lshr_b32 s64, s2, 7
        s_lshl_b32 s64, s64, 3
        s_and_b32 s65, s2, 7
        s_add_u32 s64, s64, s65                 ; b*8+g
        s_lshl_b32 s64, s64, 13                 ; *8192 rows
        s_bfe_u32 s65, s2, 0x40003              ; s16
        s_lshl_b32 s65, s65, 7
        s_add_u32 s64, s64, s65
        s_lshl_b32 s65, s72, 5
        s_add_u32 s64, s64, s65
        s_add_u32 s64, s64, 6144
        s_lshl_b32 s79, s64, 8
        s_add_u32 s66, s79, 4096
        v_lshlrev_b32 v20, 8, v{V_J16}
        v_lshl_add_u32 v20, v{V_G}, 4, v20      ; i*256 + gq*16
        """)
        self.srd(56, 30, 33554432)
        for tau in range(2):
            for s in range(4):
                r = 32 + 16*tau + 4*s
                a(f"buffer_load_dwordx4 v[{r}:{r+3}], v20, s[56:59], {'s79' if tau == 0 else 's66'} offen offset:{64*s} nt")
        a("s_branch .Lattn")

    def attn(self):
        a = self.a
        a.label(".Lattn")
        self.attn_ids()
        a(f"""
        ; u = g ^ L(j16)
        v_and_b32 v16, 1, v{V_J16}
        v_and_b32 v17, 2, v{V_J16}
        v_lshl_or_b32 v16, v17, 2, v16
        v_lshrrev_b32 v17, 1, v{V_J16}
        v_and_b32 v17, 6, v17
        v_or_b32 v16, v16, v17                   ; L(j16)
        v_xor_b32 v16, v16, v{V_G}               ; u
        v_lshlrev_b32 v16, 4, v16                ; u*16
        v_lshl_add_u32 v16, v{V_J16}, 10, v16    ; + j16*1024
        s_lshl_b32 s64, s{S_WAVE}, 14            ; v*16KiB
        """)
        for q in range(4):
            a(f"v_xor_b32 v{24+q}, {q*64}, v16")
        for q in range(4):
            a(f"v_add_u32 v{20+q}, s64, v{24+q}")
            a(f"v_add_u32 v{24+q}, {QABS}, v{24+q}")
        a(f"""
        v_lshrrev_b32 v16, 2, v{V_LANE}          ; rho 0..15
        v_and_b32 v17, 1, v16
        v_and_b32 v18, 2, v16
        v_lshl_or_b32 v17, v18, 2, v17
        v_lshrrev_b32 v18, 1, v16
        v_and_b32 v18, 6, v18
        v_or_b32 v17, v17, v18                   ; L(rho)
        v_and_b32 v18, 3, v{V_LANE}              ; cgrp
        v_lshlrev_b32 v19, 1, v18                ; 2*cgrp
        s_and_b32 s65, s{S_WAVE}, 1
        s_lshl_b32 s65, s65, 3
        v_or_b32 v19, s65, v19                   ; 8(v&1) + 2cgrp
        v_xor_b32 v19, v19, v17                  ; ^ L(rho)
        v_lshlrev_b32 v19, 4, v19
        v_lshl_add_u32 v19, v16, 10, v19         ; + rho*1024
        s_lshr_b32 s65, s{S_WAVE}, 1
        s_lshl_b32 s65, s65, 8
        v_add_u32 v19, s65, v19                  ; + (v>>1)*256
        v_and_b32 v18, 1, v18
        v_lshl_or_b32 v19, v18, 3, v19
        """)
        for t in range(4):
            x = ((t >> 1) << 4) | ((t & 1) << 3)
            a(f"v_xor_b32 v{28+t}, {x}, v19")
            a(f"v_add_u32 v{244+t}, 0x10000, v{28+t}")
        def tr_reads(sg):
            for t in range(4):
                for tau in range(2):
                    row0 = 32*sg + 16*tau
                    base = 28 + t if row0 < 64 else 244 + t
                    off = (row0 % 64) * 1024
                    r = 128 + 16*sg + 4*t + 2*tau
                    a(f"ds_read_b64_tr_b16 v[{r}:{r+1}], v{base} offset:{off}")
        for sg in range(3):
            self.wait_flag(F_TILE + 2*sg, 1)
            self.wait_flag(F_TILE + 2*sg + 1, 1)
            tr_reads(sg)
        a(f"""s_lshl_b32 s65, s{S_WAVE}, 2
        s_add_u32 s65, s65, {FLAGS}""")
        self.wait_flag(f"v_mov_b32 v17, s65", 1)
        self.stamp(5)
        for s in range(16):
            if s == 12: a("s_waitcnt lgkmcnt(4)")
            a(f"ds_read_b128 v[{64+4*s}:{67+4*s}], v{20+(s&3)} offset:{(s>>2)*256}")
        self.wait_flag(F_QABS, 4)
        self.stamp(6)
        NB = 8
        def bread(s):
            r = 192 + 4*(s % NB)
            a(f"ds_read_b128 v[{r}:{r+3}], v{24+(s&3)} offset:{(s>>2)*256}")
        for s in range(NB): bread(s)
        for s in range(16):
            rem = min(NB - 1, 15 - s)
            a(f"s_waitcnt lgkmcnt({rem})")
            r = 192 + 4*(s % NB)
            c = "0" if s == 0 else "v[224:227]"
            a(f"v_mfma_f32_16x16x32_bf16 v[224:227], v[{64+4*s}:{67+4*s}], v[{r}:{r+3}], {c}")
            if s + NB < 16: bread(s + NB)
        a("s_nop 7"); a("s_nop 1")
        a(f"""v_max_f32 v228, v224, v225
        v_max3_f32 v228, v228, v226, v227""")
        self.xrow_reduce("v_max_f32", 228, 229)
        a(f"""
        v_lshlrev_b32 v16, 5, v{V_J16}
        s_lshl_b32 s65, s{S_WAVE}, 2
        v_add_u32 v16, s65, v16                  ; head*32 + v*4
        v_add_u32 v17, {MAXB}, v16
        v_cmp_gt_u32 vcc, 16, v{V_LANE}
        s_and_saveexec_b64 s[70:71], vcc
        ds_write_b32 v17, v228
        s_mov_b64 exec, s[70:71]
        s_waitcnt lgkmcnt(0)
        s_barrier
        v_lshlrev_b32 v17, 5, v{V_J16}
        v_add_u32 v18, {MAXB}, v17
        ds_read_b128 v[232:235], v18
        ds_read_b128 v[236:239], v18 offset:16
        """)
        tr_reads(3)
        a(f"""
        s_waitcnt lgkmcnt(8)
        v_max3_f32 v228, v232, v233, v234
        v_max3_f32 v228, v228, v235, v236
        v_max3_f32 v228, v228, v237, v238
        v_max_f32 v228, v228, v239
        """)
        for r in range(4): a(f"v_sub_f32 v{224+r}, v{224+r}, v228")
        for r in range(4): a(f"v_exp_f32 v{224+r}, v{224+r}")
        a(f"""s_nop 0
        v_add_f32 v229, v224, v225
        v_add_f32 v230, v226, v227
        v_cvt_pk_bf16_f32 v232, v224, v225
        v_cvt_pk_bf16_f32 v233, v226, v227
        v_add_f32 v229, v229, v230
        s_lshr_b32 s65, s{S_WAVE}, 1
        s_lshl_b32 s65, s65, 10
        s_and_b32 s66, s{S_WAVE}, 1
        s_lshl_b32 s66, s66, 3
        s_add_u32 s65, s65, s66
        s_add_u32 s65, s65, {PBUF}
        v_lshlrev_b32 v18, 4, v{V_LANE}
        v_add_u32 v18, s65, v18
        ds_write_b64 v18, v[232:233]
        """)
        self.xrow_reduce("v_add_f32", 229, 230)
        a(f"""
        v_add_u32 v17, {LBUF}, v16
        v_cmp_gt_u32 vcc, 16, v{V_LANE}
        s_and_saveexec_b64 s[70:71], vcc
        ds_write_b32 v17, v229
        s_mov_b64 exec, s[70:71]
        s_waitcnt lgkmcnt(0)
        """)
        self.set_flag(F_CKVDONE, add=True)
        a(f"""
        s_waitcnt lgkmcnt(0)
        s_barrier
        v_lshlrev_b32 v18, 4, v{V_LANE}
        v_add_u32 v18, {PBUF}, v18
        """)
        self.stamp(7)
        for sg in range(4):
            a(f"ds_read_b128 v[{192+4*sg}:{195+4*sg}], v18 offset:{sg*1024}")
        for sg in range(4):
            a(f"s_waitcnt lgkmcnt({3-sg})")
            for t in range(4):
                r = 128 + 16*sg + 4*t
                c = "0" if sg == 0 else f"v[{208+4*t}:{211+4*t}]"
                a(f"v_mfma_f32_16x16x32_bf16 v[{208+4*t}:{211+4*t}], v[{r}:{r+3}], v[{192+4*sg}:{195+4*sg}], {c}")
        a(f"""
        v_lshlrev_b32 v18, 17, v{V_J16}          ; j16*8*16384
        v_lshl_add_u32 v18, v{V_G}, 5, v18       ; + g'*32
        s_lshl_b32 s64, s76, 21                  ; half*16*8*16384
        s_lshl_b32 s65, s{S_WAVE}, 14
        s_add_u32 s64, s64, s65
        s_lshl_b32 s65, s74, 13
        s_add_u32 s64, s64, s65
        s_lshl_b32 s65, s75, 7
        s_add_u32 s64, s64, s65
        s_add_u32 s64, s64, {H3}
        s_nop 7
        """)
        for t in range(4):
            d = 208 + 4*t
            a(f"v_cvt_pk_bf16_f32 v{232+2*t}, v{d}, v{d+1}")
            a(f"v_cvt_pk_bf16_f32 v{233+2*t}, v{d+2}, v{d+3}")
        for r in range(8): a(f"v_min_u32 v{232+r}, 0xfffffffe, v{232+r}")
        a(f"""buffer_store_dwordx4 v[232:235], v18, {WS}, s64 offen sc1
        buffer_store_dwordx4 v[236:239], v18, {WS}, s64 offen offset:16 sc1
        """)
        self.stamp(8)
        a(f"""
        s_cmp_eq_u32 s{S_WAVE}, 0
        s_cbranch_scc1 .Lt0
        s_cmp_eq_u32 s{S_WAVE}, 1
        s_cbranch_scc1 .Lt1
        s_cmp_eq_u32 s{S_WAVE}, 2
        s_cbranch_scc1 .Lt2
        s_cmp_eq_u32 s{S_WAVE}, 3
        s_cbranch_scc1 .Lt3
        s_branch .Lt47
        """)

    def read_w_lds(self, base, dst):
        a = self.a
        a(f"v_lshlrev_b32 v18, 4, v{V_LANE}")
        a(f"v_add_u32 v18, {base}, v18")
        for t in range(16):
            if t == 12: a("s_waitcnt lgkmcnt(4)")
            a(f"ds_read_b128 v[{dst+4*t}:{dst+4*t+3}], v18 offset:{t*1024}")
    def vec_to_x(self, vec, X):
        a = self.a
        a(f"""s_waitcnt lgkmcnt(0)
        v_lshrrev_b32 v18, 3, v{V_J16}
        v_lshlrev_b32 v18, 7, v18
        v_lshl_add_u32 v18, v{V_G}, 5, v18
        v_add_u32 v18, {vec}, v18
        ds_read_b128 v[{X}:{X+3}], v18
        ds_read_b128 v[{X+4}:{X+7}], v18 offset:16
        s_waitcnt lgkmcnt(0)""")
    def gran_voff(self, v):
        a = self.a
        a(f"""v_lshrrev_b32 v{v}, 1, v{V_G}
        v_lshlrev_b32 v{v}, 9, v{v}
        v_lshl_add_u32 v{v}, v{V_J16}, 5, v{v}
        v_and_b32 v16, 1, v{V_G}
        v_lshl_add_u32 v{v}, v16, 4, v{v}""")
    def publish_h5(self, acc, src, s_pp):
        a = self.a
        a(f"""v_lshrrev_b32 v19, 2, v{V_LANE}
        v_lshlrev_b32 v19, 12, v19
        v_and_b32 v16, 3, v{V_LANE}
        v_lshl_add_u32 v19, v16, 4, v19
        s_and_b32 s64, s{S_J}, 3
        s_add_u32 s64, s64, {src*4}
        s_lshl_b32 s64, s64, 16
        s_lshl_b32 s65, {s_pp}, 6
        s_add_u32 s64, s64, s65
        s_add_u32 s64, s64, {H5}""")
        self.publish_granule(acc, 52, 19, "s64")

    def tail_w0(self):
        a = self.a
        a.label(".Lt0")
        self.wait_flag(F_WUV, 1)
        self.read_w_lds(LW0, 128)
        a(f"""
        v_lshrrev_b32 v20, 3, v{V_J16}
        v_lshlrev_b32 v20, 10, v20               ; b*1024
        v_lshl_add_u32 v20, v{V_G}, 8, v20       ; + g*256
        v_and_b32 v21, 7, v{V_J16}
        v_lshl_add_u32 v20, v21, 5, v20          ; + q8*32
        s_lshl_b32 s64, s{S_H}, 11
        s_add_u32 s64, s64, {H3S}
        v_lshrrev_b32 v22, 3, v{V_J16}
        v_lshlrev_b32 v22, 13, v22               ; b*8192
        v_lshl_add_u32 v22, v{V_G}, 11, v22      ; + g*2048
        v_lshl_add_u32 v22, v21, 4, v22          ; + piece*16
        s_lshl_b32 s66, s{S_H}, 3
        s_add_u32 s66, s66, s{S_J}
        s_lshl_b32 s66, s66, 14
        s_add_u32 s66, s66, {H3}
        """)
        lp = a.newlabel("h3s")
        a.label(lp)
        a(f"""buffer_load_dwordx4 v[32:35], v20, {WS}, s64 offen sc1
        buffer_load_dwordx4 v[36:39], v20, {WS}, s64 offen offset:16 sc1
        s_waitcnt vmcnt(0)""")
        self.tagcheck([33, 35, 37, 39], 21, lp)
        self.stamp(9)
        lp2 = a.newlabel("h3p")
        a.label(lp2)
        for t in range(16):
            a(f"buffer_load_dwordx4 v[{64+4*t}:{67+4*t}], v22, {WS}, s66 offen offset:{128*t} sc1")
        a(f"""
        v_max_f32 v40, v32, v36
        s_nop 1
        v_max_f32_dpp v40, v40, v40 quad_perm:[1,0,3,2] row_mask:0xf bank_mask:0xf
        s_nop 1
        v_max_f32_dpp v40, v40, v40 quad_perm:[2,3,0,1] row_mask:0xf bank_mask:0xf
        s_nop 1
        v_max_f32_dpp v40, v40, v40 row_half_mirror row_mask:0xf bank_mask:0xf
        """)
        self.xrow_reduce("v_max_f32", 40, 41)
        a(f"""
        v_sub_f32 v42, v32, v40
        v_sub_f32 v43, v36, v40
        v_exp_f32 v42, v42
        v_exp_f32 v43, v43
        s_nop 0
        v_cvt_pk_bf16_f32 v44, v42, v43
        v_mul_f32 v45, v42, v34
        v_fmac_f32 v45, v43, v38                 ; partial L
        v_lshrrev_b32 v46, 3, v{V_J16}
        v_lshlrev_b32 v46, 7, v46
        v_lshl_add_u32 v46, v{V_G}, 5, v46
        v_and_b32 v47, 7, v{V_J16}
        v_lshl_add_u32 v46, v47, 2, v46
        v_add_u32 v46, {VEC0}, v46
        ds_write_b32 v46, v44
        s_nop 0
        v_add_f32_dpp v45, v45, v45 quad_perm:[1,0,3,2] row_mask:0xf bank_mask:0xf
        s_nop 1
        v_add_f32_dpp v45, v45, v45 quad_perm:[2,3,0,1] row_mask:0xf bank_mask:0xf
        s_nop 1
        v_add_f32_dpp v45, v45, v45 row_half_mirror row_mask:0xf bank_mask:0xf
        """)
        self.xrow_reduce("v_add_f32", 45, 41)
        a("v_rcp_f32 v45, v45")
        self.vec_to_x(VEC0, 192)
        a("v_mov_b32 v47, 0")
        def pre(t):
            a(f"s_waitcnt vmcnt({15-t})")
            r = 64 + 4*t
            a(f"v_max3_u32 v47, v47, v{r}, v{r+1}")
            a(f"v_max3_u32 v47, v47, v{r+2}, v{r+3}")
        self.diag_mfma(192, 64, 48, 200, 204, pre=pre)
        ok = a.newlabel("h3ok")
        a(f"""v_cmp_eq_u32 vcc, -1, v47
        s_nop 1
        s_cbranch_vccz {ok}""")
        self.spin_fail(lp2)
        a.label(ok)
        self.stamp(10)
        a(f"""s_nop 7
        s_nop 1""")
        for r in range(4): a(f"v_mul_f32 v{48+r}, v45, v{48+r}")
        a(f"""
        v_cvt_pk_bf16_f32 v52, v48, v49
        v_cvt_pk_bf16_f32 v53, v50, v51
        v_and_b32 v46, 7, v{V_J16}               ; piece
        v_bfe_u32 v47, v46, 1, 1                 ; (piece>>1)&1
        v_and_b32 v41, 1, v{V_G}
        v_xor_b32 v47, v47, v41
        v_lshlrev_b32 v47, 3, v47                ; 4*(..)*2 bytes
        v_lshl_add_u32 v47, v46, 4, v47          ; + 8*piece*2
        v_lshrrev_b32 v46, 3, v{V_J16}           ; b
        v_lshl_add_u32 v47, v46, 7, v47
        v_add_u32 v47, {VEC0}, v47
        v_lshrrev_b32 v41, 1, v{V_G}
        v_cmp_eq_u32 vcc, v41, v46
        s_and_saveexec_b64 s[70:71], vcc
        ds_write_b64 v47, v[52:53]
        s_mov_b64 exec, s[70:71]
        """)
        self.vec_to_x(VEC0, 192)
        self.diag_mfma(192, 128, 48, 200, 204)
        self.gran_voff(19)
        a(f"""s_lshl_b32 s64, s{S_H}, 3
        s_add_u32 s64, s64, s{S_J}
        s_lshl_b32 s64, s64, 10
        s_add_u32 s64, s64, {H4}""")
        self.publish_granule(48, 52, 19, "s64")
        self.stamp(11)
        self.wait_flag(F_WO, 1)
        self.read_w_lds(LW1, 128)
        a(f"""
        v_lshlrev_b32 v20, 10, v{V_G}
        v_lshl_add_u32 v20, v{V_J16}, 4, v20     ; g4*1024 + j16*16
        s_lshl_b32 s64, s{S_H}, 13
        s_lshr_b32 s65, s{S_J}, 2                ; dhalf
        s_lshl_b32 s66, s65, 8
        s_add_u32 s64, s64, s66
        s_add_u32 s64, s64, {H4}
        s_add_u32 s66, s64, 4096
        """)
        for sg in range(2):
            for rg in range(2):
                a(f"v_and_b32 v{40+2*sg+rg}, 0x3f803f80, v{MSK[sg][rg]}")
        lp = a.newlabel("h4")
        a.label(lp)
        for b in range(2):
            for ph in range(2):
                r = 64 + 8*b + 4*ph
                a(f"buffer_load_dwordx4 v[{r}:{r+3}], v20, {WS}, {'s64' if ph == 0 else 's66'} offen offset:{512*b} sc1")
        a("s_waitcnt vmcnt(0)")
        words = []
        for q in range(4): words += [64 + 4*q + 1, 64 + 4*q + 3]
        self.tagcheck(words, 21, lp)
        self.stamp(12)
        for q in range(4): a(f"v_mov_b32 v{64+4*q+1}, v{64+4*q+2}")
        a("s_nop 1")
        first = True
        for b in range(2):
            for ph in range(2):
                r = 64 + 8*b + 4*ph
                c = "0" if first else "v[48:51]"
                first = False
                a(f"v_mfma_f32_16x16x16_bf16 v[48:51], v[{40+2*b}:{41+2*b}], v[{r}:{r+1}], {c}")
        a(f"""s_nop 7
        s_nop 1
        v_cvt_pk_bf16_f32 v52, v48, v49
        v_cvt_pk_bf16_f32 v53, v50, v51
        v_lshlrev_b32 v47, 7, v{V_G}
        v_lshl_add_u32 v47, v{V_J16}, 3, v47     ; g'*128 + j16*8
        v_add_u32 v47, {VEC0}, v47
        v_cmp_gt_u32 vcc, 32, v{V_LANE}
        s_and_saveexec_b64 s[70:71], vcc
        ds_write_b64 v47, v[52:53]
        s_mov_b64 exec, s[70:71]
        """)
        self.vec_to_x(VEC0, 192)
        self.diag_mfma(192, 128, 48, 200, 204)
        a(f"""s_lshl_b32 s67, s{S_H}, 1
        s_lshr_b32 s65, s{S_J}, 2
        s_add_u32 s67, s67, s65""")
        self.publish_h5(48, 0, "s67")
        self.stamp(13)
        self.dump_stamps(16)
        a("s_branch .Lend")

    def tail_w1(self):
        a = self.a
        a.label(".Lt1")
        a(f"""s_and_b32 s72, s2, 7
        s_lshl_b32 s72, s72, 2
        s_bfe_u32 s73, s2, 0x20003
        s_add_u32 s72, s72, s73        ; hqB
        s_lshr_b32 s73, s{S_J}, 2      ; dhalf
        """)
        self.wait_flag(F_WOB, 1)
        self.read_w_lds(LW2, 128)
        a(f"""
        v_and_b32 v20, 3, v{V_J16}
        v_lshlrev_b32 v20, 6, v20
        v_lshl_add_u32 v20, v{V_G}, 4, v20       ; (j16&3)*64 + g4*16
        s_lshl_b32 s64, s72, 8
        s_add_u32 s64, s64, {H3BS}
        s_add_u32 s65, s64, 8192
        v_lshlrev_b32 v22, 9, v{V_G}
        v_lshl_add_u32 v22, v{V_J16}, 4, v22     ; g4*512 + j16*16
        s_lshl_b32 s66, s72, 13
        s_lshl_b32 s67, s73, 8
        s_add_u32 s66, s66, s67
        s_add_u32 s66, s66, {H3B}
        """)
        lp = a.newlabel("h3b")
        a.label(lp)
        a(f"""buffer_load_dwordx4 v[32:35], v20, {WS}, s64 offen sc1
        buffer_load_dwordx4 v[36:39], v20, {WS}, s65 offen sc1""")
        for b in range(2):
            for t in range(4):
                r = 64 + 16*b + 4*t
                a(f"s_add_u32 s67, s66, {b*262144 + (t//2)*4096}")
                a(f"buffer_load_dwordx4 v[{r}:{r+3}], v22, {WS}, s67 offen offset:{(t%2)*2048} sc1")
        a("s_waitcnt vmcnt(0)")
        words = [33, 35, 37, 39]
        for q in range(8): words += [64 + 4*q + 1, 64 + 4*q + 3]
        self.tagcheck(words, 21, lp)
        self.stamp(9)
        for q in range(8): a(f"v_mov_b32 v{64+4*q+1}, v{64+4*q+2}")
        for b in range(2):
            m, l, w, L = 32 + 4*b, 34 + 4*b, 40 + b, 42 + b
            a(f"""v_mov_b32 v44, v{m}
            s_nop 1
            v_max_f32_dpp v44, v44, v44 quad_perm:[1,0,3,2] row_mask:0xf bank_mask:0xf
            s_nop 1
            v_max_f32_dpp v44, v44, v44 quad_perm:[2,3,0,1] row_mask:0xf bank_mask:0xf""")
            self.xrow_reduce("v_max_f32", 44, 45)
            a(f"""v_sub_f32 v{w}, v{m}, v44
            v_exp_f32 v{w}, v{w}
            s_nop 0
            v_mul_f32 v{L}, v{w}, v{l}
            s_nop 1
            v_add_f32_dpp v{L}, v{L}, v{L} quad_perm:[1,0,3,2] row_mask:0xf bank_mask:0xf
            s_nop 1
            v_add_f32_dpp v{L}, v{L}, v{L} quad_perm:[2,3,0,1] row_mask:0xf bank_mask:0xf""")
            self.xrow_reduce("v_add_f32", L, 45)
            a(f"v_cvt_pk_bf16_f32 v{w}, v{w}, v{w}")
        first = True
        for b in range(2):
            for t in range(4):
                r = 64 + 16*b + 4*t
                a(f"""s_nop 1
                v_mov_b32_dpp v46, v{40+b} quad_perm:[{t},{t},{t},{t}] row_mask:0xf bank_mask:0xf
                s_nop 0
                v_and_b32 v{56+2*(t%2)}, v46, v{MSK[b][0]}
                v_and_b32 v{57+2*(t%2)}, v46, v{MSK[b][1]}
                s_nop 1""")
                c = "0" if first else "v[48:51]"
                first = False
                a(f"v_mfma_f32_16x16x16_bf16 v[48:51], v[{56+2*(t%2)}:{57+2*(t%2)}], v[{r}:{r+1}], {c}")
        a(f"""
        v_cmp_eq_u32 vcc, 1, v{V_G}
        s_nop 1
        v_cndmask_b32 v42, v42, v43, vcc
        v_rcp_f32 v42, v42
        s_nop 7
        """)
        for r in range(4): a(f"v_mul_f32 v{48+r}, v42, v{48+r}")
        a(f"""
        v_cvt_pk_bf16_f32 v52, v48, v49
        v_cvt_pk_bf16_f32 v53, v50, v51
        v_lshlrev_b32 v47, 7, v{V_G}
        v_lshl_add_u32 v47, v{V_J16}, 3, v47
        v_add_u32 v47, {VEC1}, v47
        v_cmp_gt_u32 vcc, 32, v{V_LANE}
        s_and_saveexec_b64 s[70:71], vcc
        ds_write_b64 v47, v[52:53]
        s_mov_b64 exec, s[70:71]
        """)
        self.vec_to_x(VEC1, 192)
        self.diag_mfma(192, 128, 48, 200, 204)
        a(f"""s_lshl_b32 s67, s72, 1
        s_add_u32 s67, s67, s73""")
        self.publish_h5(48, 1, "s67")
        self.stamp(10)
        self.dump_stamps(16)
        a("s_branch .Lend")

    def late_dma(self, srdbase, nbytes, rowstride_log2, s_off, ldsbase, flag):
        a = self.a
        self.srd(52, srdbase, nbytes)
        a(f"""v_lshlrev_b32 v20, {rowstride_log2 + 4}, v{V_G}
        v_lshl_add_u32 v20, v{V_J16}, 4, v20
        s_mov_b32 s67, {s_off}""")
        D = self.depth
        for t in range(16):
            a(f"s_mov_b32 m0, {ldsbase + t*1024}")
            a(f"s_nop 0")
            a(f"buffer_load_dwordx4 v20, s[52:55], s67 offen nt lds")
            if t < 15: a(f"s_add_u32 s67, s67, {1 << rowstride_log2}")
            if t + 1 >= D and t < 15: a(f"s_waitcnt vmcnt({D-1})")
        a("s_waitcnt vmcnt(0)")
        self.set_flag(flag)

    def tail_w2(self):
        a = self.a
        a.label(".Lt2")
        self.wait_flag(F_CKVDONE, 8)
        a(f"""s_lshl_b32 s66, s{S_J}, 19
        s_lshl_b32 s65, s{S_H}, 8
        s_add_u32 s66, s66, s65""")
        self.late_dma(24, 4194304, 13, "s66", LW0, F_WUV)
        a(f"""s_lshl_b32 s66, s{S_H}, 17
        s_lshr_b32 s65, s{S_J}, 2
        s_lshl_b32 s65, s65, 16
        s_add_u32 s66, s66, s65
        s_and_b32 s65, s{S_J}, 3
        s_lshl_b32 s65, s65, 8
        s_add_u32 s66, s66, s65""")
        self.late_dma(26, 4194304, 10, "s66", LW1, F_WO)
        self.stamp(9)
        a(f"""s_cmp_ge_u32 s2, 128
        s_cbranch_scc1 .Lt2end
        s_lshl_b32 s64, s2, 12                   ; ((src*4+cq)*16+pg)*4096
        s_add_u32 s64, s64, {H5}
        v_lshlrev_b32 v20, 6, v{V_J16}
        v_lshl_add_u32 v20, v{V_G}, 4, v20       ; j16*64 + R*16
        """)
        lp = a.newlabel("h5")
        a.label(lp)
        for u in range(4):
            a(f"buffer_load_dwordx4 v[{64+4*u}:{67+4*u}], v20, {WS}, s64 offen offset:{1024*u} sc1")
        a("s_waitcnt vmcnt(0)")
        words = []
        for q in range(4): words += [64 + 4*q + 1, 64 + 4*q + 3]
        self.tagcheck(words, 21, lp)
        self.stamp(10)
        for u in range(4):
            r = 64 + 4*u
            a(f"""v_lshlrev_b32 v40, 16, v{r}
            v_and_b32 v41, 0xffff0000, v{r}
            v_lshlrev_b32 v42, 16, v{r+2}
            v_and_b32 v43, 0xffff0000, v{r+2}""")
            for k in range(4):
                if u == 0: a(f"v_mov_b32 v{48+k}, v{40+k}")
                else: a(f"v_add_f32 v{48+k}, v{48+k}, v{40+k}")
        for sh in (8, 4, 2, 1):
            a("s_nop 1")
            for k in range(4):
                a(f"v_add_f32_dpp v{48+k}, v{48+k}, v{48+k} row_ror:{sh} row_mask:0xf bank_mask:0xf")
        a(f"""
        v_cvt_pk_bf16_f32 v52, v48, v49
        v_cvt_pk_bf16_f32 v53, v50, v51
        s_and_b32 s65, s2, 15                    ; pg
        s_lshr_b32 s66, s65, 2                   ; g'
        s_lshr_b32 s67, s66, 1                   ; b
        s_lshl_b32 s67, s67, 11                  ; b*1024*2 bytes
        s_lshr_b32 s68, s2, 6                    ; src
        s_lshl_b32 s68, s68, 10
        s_add_u32 s67, s67, s68
        s_bfe_u32 s68, s2, 0x20004               ; cq
        s_lshl_b32 s68, s68, 8
        s_add_u32 s67, s67, s68
        s_and_b32 s68, s66, 1
        s_lshl_b32 s68, s68, 3                   ; 4*(g'&1)*2
        s_add_u32 s67, s67, s68
        s_and_b32 s68, s65, 3
        s_lshl_b32 s68, s68, 6                   ; 8*4*(pg&3)*2
        s_add_u32 s67, s67, s68
        v_lshlrev_b32 v21, 4, v{V_G}             ; 8*R*2
        """)
        self.srd(56, 38, 4096)
        a(f"""
        v_cmp_eq_u32 vcc, 0, v{V_J16}
        s_and_saveexec_b64 s[70:71], vcc
        buffer_store_dwordx2 v[52:53], v21, s[56:59], s67 offen
        s_mov_b64 exec, s[70:71]
        s_cmp_lg_u32 s2, 0
        s_cbranch_scc1 .Lt2end
        v_mov_b32 v21, 0
        v_mov_b32 v22, s{S_TAG}
        s_mov_b64 exec, 1
        buffer_store_dword v22, v21, {WS}, 0 offen
        s_mov_b64 exec, -1
        """)
        a.label(".Lt2end")
        self.stamp(11)
        self.dump_stamps(16)
        a("s_branch .Lend")

    def tail_w3(self):
        a = self.a
        a.label(".Lt3")
        a(f"""
        v_lshlrev_b32 v17, 5, v{V_J16}
        v_add_u32 v17, {LBUF}, v17
        ds_read_b128 v[232:235], v17
        ds_read_b128 v[236:239], v17 offset:16
        s_waitcnt lgkmcnt(0)
        v_add_f32 v232, v232, v233
        v_add_f32 v234, v234, v235
        v_add_f32 v236, v236, v237
        v_add_f32 v238, v238, v239
        v_add_f32 v232, v232, v234
        v_add_f32 v236, v236, v238
        v_add_f32 v242, v232, v236
        v_mov_b32 v240, v228
        v_mov_b32 v241, s{S_TAG}
        v_mov_b32 v243, s{S_TAG}
        v_lshlrev_b32 v17, 11, v{V_J16}
        s_lshl_b32 s64, s76, 15
        s_lshl_b32 s65, s74, 10
        s_add_u32 s64, s64, s65
        s_lshl_b32 s65, s75, 4
        s_add_u32 s64, s64, s65
        s_add_u32 s64, s64, {H3S}
        v_cmp_gt_u32 vcc, 16, v{V_LANE}
        s_and_saveexec_b64 s[70:71], vcc
        buffer_store_dwordx4 v[240:243], v17, {WS}, s64 offen sc1
        s_mov_b64 exec, s[70:71]
        """)
        self.wait_flag(F_CKVDONE, 8)
        a(f"""s_and_b32 s72, s2, 7
        s_lshl_b32 s72, s72, 2
        s_bfe_u32 s73, s2, 0x20003
        s_add_u32 s72, s72, s73        ; hqB
        s_lshl_b32 s66, s72, 17
        s_lshr_b32 s65, s{S_J}, 2
        s_lshl_b32 s65, s65, 16
        s_add_u32 s66, s66, s65
        s_and_b32 s65, s{S_J}, 3
        s_lshl_b32 s65, s65, 8
        s_add_u32 s66, s66, s65""")
        self.late_dma(36, 4194304, 10, "s66", LW2, F_WOB)
        self.stamp(9)
        self.dump_stamps(16)
        a("s_branch .Lend")

    def tail_w47(self):
        a = self.a
        a.label(".Lt47")
        a(f"s_sub_u32 s72, s{S_WAVE}, 4")
        self.srd(56, 32, 33554432)
        a(f"""v_lshlrev_b32 v20, 11, v{V_G}
        v_lshl_add_u32 v20, v{V_J16}, 4, v20     ; g*2048 + j16*16""")
        for t in range(8):
            a(f"buffer_load_dwordx4 v[{64+4*t}:{67+4*t}], v20, s[56:59], s79 offen offset:{256*t} nt")
        self.wait_flag(F_QB, 4)
        a(f"""v_and_b32 v21, 3, v{V_J16}
        v_lshlrev_b32 v21, 8, v21
        v_lshl_add_u32 v21, v{V_G}, 4, v21
        v_add_u32 v21, {QBL}, v21""")
        for s in range(4):
            a(f"ds_read_b128 v[{96+4*s}:{99+4*s}], v21 offset:{64*s}")
        a("s_waitcnt lgkmcnt(0) vmcnt(8)")
        for s in range(4):
            for tau in range(2):
                c = "0" if s == 0 else f"v[{112+4*tau}:{115+4*tau}]"
                a(f"v_mfma_f32_16x16x32_bf16 v[{112+4*tau}:{115+4*tau}], v[{32+16*tau+4*s}:{35+16*tau+4*s}], v[{96+4*s}:{99+4*s}], {c}")
        self.stamp(9)
        a(f"""s_nop 7
        s_nop 1
        v_max3_f32 v120, v112, v113, v114
        v_max3_f32 v120, v120, v115, v116
        v_max3_f32 v120, v120, v117, v118
        v_max_f32 v120, v120, v119""")
        self.xrow_reduce("v_max_f32", 120, 121)
        for r in range(8): a(f"v_sub_f32 v{112+r}, v{112+r}, v120")
        for r in range(8): a(f"v_exp_f32 v{112+r}, v{112+r}")
        a(f"""s_nop 0
        v_add_f32 v122, v112, v113
        v_add_f32 v123, v114, v115
        v_add_f32 v124, v116, v117
        v_add_f32 v125, v118, v119
        v_add_f32 v122, v122, v123
        v_add_f32 v124, v124, v125
        v_add_f32 v122, v122, v124
        v_cvt_pk_bf16_f32 v124, v112, v113
        v_cvt_pk_bf16_f32 v125, v114, v115
        v_cvt_pk_bf16_f32 v126, v116, v117
        v_cvt_pk_bf16_f32 v127, v118, v119
        s_lshl_b32 s65, s72, 8
        s_add_u32 s65, s65, {PBL}
        v_lshlrev_b32 v21, 6, v{V_J16}
        v_lshl_add_u32 v21, v{V_G}, 3, v21
        v_add_u32 v21, s65, v21
        v_cmp_gt_u32 vcc, 4, v{V_J16}
        s_and_saveexec_b64 s[70:71], vcc
        ds_write_b64 v21, v[124:125]
        ds_write_b64 v21, v[126:127] offset:32
        s_mov_b64 exec, s[70:71]
        """)
        self.xrow_reduce("v_add_f32", 122, 121)
        a(f"""
        v_lshrrev_b32 v21, 3, v{V_J16}
        v_lshlrev_b32 v21, 6, v21
        v_lshl_add_u32 v21, v{V_G}, 4, v21
        v_add_u32 v21, s65, v21
        s_waitcnt lgkmcnt(0)
        ds_read_b128 v[96:99], v21
        ds_read_b128 v[100:103], v21 offset:128
        s_waitcnt lgkmcnt(0)
        """)
        sets = [104, 108, 112, 116]
        def perms(t, hp):
            A = sets[(2*t + hp) % 4]
            for k in range(4):
                a(f"v_perm_b32 v{A+k}, v{96+4*hp+t//2}, v{96+4*hp+t//2}, v{SEL[t%2][k]}")
        perms(0, 0); perms(0, 1)
        for t in range(8):
            a(f"s_waitcnt vmcnt({7-t})")
            if t + 1 < 8:
                pass
            for hp in range(2):
                A = sets[(2*t + hp) % 4]
                c = "0" if t == 0 else f"v[{32+4*hp}:{35+4*hp}]"
                if t == 0 and hp == 0: a("s_nop 1")
                a(f"v_mfma_f32_16x16x32_bf16 v[{32+4*hp}:{35+4*hp}], v[{A}:{A+3}], v[{64+4*t}:{67+4*t}], {c}")
                if t + 1 < 8: perms(t + 1, hp)
                else: a("s_nop 1")
        self.stamp(10)
        a(f"""s_nop 7
        s_nop 1
        s_lshl_b32 s65, s72, 11
        s_add_u32 s65, s65, {OBL}
        v_lshlrev_b32 v21, 4, v{V_LANE}
        v_add_u32 v21, s65, v21
        ds_write_b128 v21, v[32:35]
        ds_write_b128 v21, v[36:39] offset:1024
        v_mov_b32 v121, v122
        s_lshl_b32 s65, s72, 5
        s_add_u32 s65, s65, {OBS}
        v_lshlrev_b32 v21, 3, v{V_J16}
        v_add_u32 v21, s65, v21
        v_cmp_gt_u32 vcc, 4, v{V_LANE}
        s_and_saveexec_b64 s[70:71], vcc
        ds_write_b64 v21, v[120:121]
        s_mov_b64 exec, s[70:71]
        s_waitcnt lgkmcnt(0)
        v_mov_b32 v21, {FLAGS + 4*F_BARR}
        v_mov_b32 v22, 1
        s_mov_b64 exec, 1
        ds_add_rtn_u32 v23, v21, v22
        s_waitcnt lgkmcnt(0)
        s_mov_b64 exec, -1
        v_readfirstlane_b32 s65, v23
        s_nop 1
        s_cmp_lg_u32 s65, 3
        s_cbranch_scc1 .Lt47end
        """)
        a(f"""
        v_lshlrev_b32 v21, 4, v{V_LANE}
        v_add_u32 v21, {OBL}, v21
        v_lshrrev_b32 v22, 1, v{V_G}
        v_lshlrev_b32 v22, 3, v22
        v_add_u32 v22, {OBS}, v22
        """)
        for z in range(4):
            for hp in range(2):
                a(f"ds_read_b128 v[{64+8*z+4*hp}:{67+8*z+4*hp}], v21 offset:{z*2048+hp*1024}")
        a("s_waitcnt lgkmcnt(4)")
        for z in range(4):
            for hp in range(2):
                a(f"ds_read_b64 v[{96+4*z+2*hp}:{97+4*z+2*hp}], v22 offset:{z*32+hp*16}")
        a("s_waitcnt lgkmcnt(0)")
        for hp in range(2):
            ms = [96+4*z+2*hp for z in range(4)]
            a(f"v_max3_f32 v112, v{ms[0]}, v{ms[1]}, v{ms[2]}")
            a(f"v_max_f32 v112, v112, v{ms[3]}")
            for z in range(4):
                a(f"v_sub_f32 v{113+z}, v{ms[z]}, v112")
            for z in range(4):
                a(f"v_exp_f32 v{113+z}, v{113+z}")
            a("s_nop 0")
            a(f"v_mul_f32 v117, v113, v{ms[0]+1}")
            for z in range(1, 4): a(f"v_fmac_f32 v117, v{113+z}, v{ms[z]+1}")
            for r in range(4):
                a(f"v_mul_f32 v{118+r}, v113, v{64+4*hp+r}")
                for z in range(1, 4):
                    a(f"v_fmac_f32 v{118+r}, v{113+z}, v{64+8*z+4*hp+r}")
            q = 40 + 8*hp
            a(f"""v_cvt_pk_bf16_f32 v{q}, v118, v119
            v_cvt_pk_bf16_f32 v{q+2}, v120, v121
            v_mov_b32 v{q+1}, s{S_TAG}
            v_mov_b32 v{q+3}, s{S_TAG}
            v_mov_b32 v{q+4}, v112
            v_mov_b32 v{q+5}, s{S_TAG}
            v_mov_b32 v{q+6}, v117
            v_mov_b32 v{q+7}, s{S_TAG}""")
        a(f"""
        s_lshr_b32 s64, s2, 7
        s_lshl_b32 s64, s64, 5
        s_and_b32 s65, s2, 7
        s_lshl_b32 s65, s65, 2
        s_add_u32 s64, s64, s65                  ; b*32 + 4g
        s_lshl_b32 s64, s64, 4
        s_bfe_u32 s65, s2, 0x40003
        s_add_u32 s64, s64, s65                  ; *16 + s
        s_lshl_b32 s66, s64, 9
        s_add_u32 s66, s66, {H3B}
        s_add_u32 s67, s66, 16384
        s_lshl_b32 s68, s64, 4
        s_add_u32 s68, s68, {H3BS}
        v_lshrrev_b32 v21, 1, v{V_G}
        v_lshlrev_b32 v22, 13, v21               ; (g'>>1)*16*512
        v_lshl_add_u32 v22, v{V_J16}, 5, v22
        v_and_b32 v23, 1, v{V_G}
        v_lshl_add_u32 v22, v23, 4, v22
        buffer_store_dwordx4 v[40:43], v22, {WS}, s66 offen sc1
        buffer_store_dwordx4 v[48:51], v22, {WS}, s67 offen sc1
        v_lshlrev_b32 v21, 8, v21                ; (g'>>1)*16*16
        v_and_b32 v23, 31, v{V_LANE}
        v_cmp_eq_u32 vcc, 0, v23
        s_and_saveexec_b64 s[70:71], vcc
        buffer_store_dwordx4 v[44:47], v21, {WS}, s68 offen sc1
        buffer_store_dwordx4 v[52:55], v21, {WS}, s68 offen offset:512 sc1
        s_mov_b64 exec, s[70:71]
        """)
        a.label(".Lt47end")
        self.stamp(11)
        self.dump_stamps(16)
        a("s_branch .Lend")

    def build(self):
        a = self.a
        name = KNAME + "_kernel"
        a.raw(HEADER.rstrip())
        a.raw(f"; @launch grid=(256,1,1) block=(512,1,1) lds={LDS_TOTAL}")
        a.raw('.amdgcn_target "amdgcn-amd-amdhsa--gfx950"')
        kernel_begin(a, name)
        self.prologue()
        self.w0_front()
        self.w1_front()
        self.w23_front()
        self.w47_front()
        self.attn()
        self.tail_w0()
        self.tail_w1()
        self.tail_w2()
        self.tail_w3()
        self.tail_w47()
        a.label(".Lend")
        a("s_endpgm")
        return a.text() + kernel_desc(name, 256, 102, 256)

if __name__ == "__main__":
    import argparse
    ap = argparse.ArgumentParser()
    ap.add_argument("-o", default="k1.s")
    ap.add_argument("--diag", action="store_true")
    ap.add_argument("--depth", type=int, default=8)
    args = ap.parse_args()
    open(args.o, "w").write(G(diag=args.diag, depth=args.depth).build())
```

```python
import sys, struct
from asmlib import *

H1A  = 0x040000
H1B  = 0x080000
H2   = 0x0C0000
H4   = 0x100000
H3B  = 0x140000
H3BS = 0x1C0000
H3S  = 0x1C8000
H5   = 0x200000
H3   = 0x400000
FL    = 0x010000
FL_H1A = FL
FL_H4  = FL + 32*128
FL_H2  = FL + 64*128
FL_H3  = FL + 96*128
FL_H3B = FL + 128*128
FL_H5  = FL + 160*128
FL_H1B = FL + 192*128
STAMP = 0x1000000
CKV   = 0x00000
LW0, LW1, LW2 = 0x0000, 0x4000, 0x8000
QABS  = 0x20000
PBUF  = 0x24000
MAXB  = 0x25000
LBUF  = 0x25200
FLAGS = 0x25400
VEC0  = 0x25500
VEC1  = 0x25600
OBS   = 0x25700
QBL   = 0x25800
PBL   = 0x25C00
OBL   = 0x26000
LDS_TOTAL = 0x28000
F_LANDED, F_QABS, F_CLR, F_QB, F_BARR, F_WUV, F_WO, F_WOB, F_G3, F_QPUB, F_ISSUED, F_G4, F_G2, F_G1, F_G2I, F_WUVI = range(16)

TAGC = 0x9E3779B9
CSF = (128 ** -0.5) * 1.4426950408889634
CS = struct.unpack("<I", struct.pack("<f", CSF))[0]

def Lsw(i):
    return (i & 1) | ((i & 2) << 2) | ((i & 4) >> 1) | ((i & 8) >> 1)

S_WAVE = 3
S_TAG, S_H, S_J, S_SPIN = 44, 45, 46, 47
WS = "s[48:51]"
S_V = 62
S_LAND = 63
S_AB, S_AS, S_AHALF = 74, 75, 76
S_KOFF = 79
V_LANE, V_J16, V_G = 1, 2, 3
SEL = [[4, 5, 6, 7], [8, 9, 10, 11]]
MSK = [[12, 13], [14, 15]]
AD_SA, AD_QB, AD_TRL, AD_TRH = 16, 20, 24, 28
T0 = 32
KREG = 48
SA = 80
PA = 144
VREG = 176
QB = 208
ACC = 240
M0_ = 244
V_ST = 255
WAVE2TILE = [7, 4, 0, 1, 2, 3, 5, 6]

class G:
    def __init__(self, diag=False, depth=24, spin_lim=200000, ldepth=4, opts=None):
        self.a = Asm()
        self.diag = diag
        self.depth = depth
        self.ldepth = ldepth
        self.spin_lim = spin_lim
        self.o = dict(kdelay=96, wqdelay=16, clrdelay=0)
        if opts: self.o.update(opts)
    def stamp(self, k):
        if self.diag:
            assert k < 16
            self.a(f"""s_memrealtime s[100:101]
            s_waitcnt lgkmcnt(0)
            v_writelane_b32 v{V_ST}, s100, {k}""")
    def stamp_w2(self, k):
        if not self.o.get('ldstamps'): self.stamp(k)
    def dump_stamps(self, n=16):
        a = self.a
        if not self.diag: return
        a(f"""s_lshl_b32 s64, s2, 3
        s_add_u32 s64, s64, s{S_WAVE}
        s_lshl_b32 s64, s64, 6
        s_add_u32 s64, s64, {STAMP}
        v_lshlrev_b32 v33, 2, v{V_LANE}
        s_mov_b64 exec, 0xffff
        buffer_store_dword v{V_ST}, v33, {WS}, s64 offen
        s_mov_b64 exec, -1""")
    def srd(self, s, base, nbytes):
        srd(self.a, s, base, base + 1, nbytes)
    def spin_fail(self, retry):
        a = self.a
        a(f"""s_add_u32 s{S_SPIN}, s{S_SPIN}, 1
        s_cmp_lt_u32 s{S_SPIN}, {self.spin_lim}
        s_cbranch_scc1 {retry}
        s_branch .Lend""")
    def wait_flag(self, idx, target, vt=T0+14, va=T0+15, dst="s65", sleep=0):
        a = self.a
        lp = a.newlabel("wf"); ok = a.newlabel("wfok")
        a(f"v_mov_b32 v{va}, {FLAGS + 4*idx}")
        a.label(lp)
        a(f"""ds_read_b32 v{vt}, v{va}
        s_waitcnt lgkmcnt(0)
        v_readfirstlane_b32 {dst}, v{vt}
        s_nop 1
        s_cmp_ge_u32 {dst}, {target}
        s_cbranch_scc1 {ok}""")
        if sleep: a(f"s_sleep {sleep}")
        self.spin_fail(lp)
        a.label(ok)
    def wait_landed(self, target):
        a = self.a
        sk = a.newlabel("wl")
        a(f"""s_cmp_ge_u32 s{S_LAND}, {target}
        s_cbranch_scc1 {sk}""")
        self.wait_flag(F_LANDED, target, dst=f"s{S_LAND}")
        a.label(sk)
    def set_flag(self, idx, val=1, vt=T0+14, va=T0+15, add=False):
        a = self.a
        a(f"v_mov_b32 v{va}, {FLAGS + 4*idx}")
        a(f"v_mov_b32 v{vt}, {val}")
        if add:
            a("s_mov_b64 exec, 1")
            a(f"ds_add_u32 v{va}, v{vt}")
            a("s_mov_b64 exec, -1")
        else:
            a(f"ds_write_b32 v{va}, v{vt}")
    def load_tag(self):
        self.a(f"s_load_dword s{S_TAG}, s[42:43], 0")
    def get_tag(self):
        self.a(f"""s_waitcnt lgkmcnt(0)
        s_add_u32 s{S_TAG}, s{S_TAG}, {TAGC}""")
    def poll_light(self, voff, soff, nlanes, sleep=2, vd=T0+12):
        a = self.a
        lp = a.newlabel("pl"); ok = a.newlabel("plok")
        a(f"""v_cmp_gt_u32 vcc, {nlanes}, v{V_LANE}
        s_and_saveexec_b64 s[70:71], vcc""")
        a.label(lp)
        a(f"""buffer_load_dwordx2 v[{vd}:{vd+1}], v{voff}, {WS}, {soff} offen sc1
        s_waitcnt vmcnt(0)
        v_cmp_ne_u32 vcc, s{S_TAG}, v{vd+1}
        s_nop 1
        s_cbranch_vccz {ok}""")
        if sleep: a(f"s_sleep {sleep}")
        self.spin_fail(lp)
        a.label(ok)
        a("s_mov_b64 exec, s[70:71]")
    def sgate(self, s_off, n, lim=None, sleep=2):
        a = self.a
        lim = lim or self.o.get("sgate_lim", 4000)
        assert n in (8, 16)
        B = 80
        a(f"""s_add_u32 s60, s42, {s_off}
        s_addc_u32 s61, s43, 0
        s_mov_b32 s65, 0""")
        lp = a.newlabel("sg"); ok = a.newlabel("sgok"); rt = a.newlabel("sgrt")
        a.label(lp)
        a(f"s_load_dwordx{n} s[{B}:{B+n-1}], s[60:61], 0 glc")
        a("s_waitcnt lgkmcnt(0)")
        for i in range(n):
            a(f"s_cmp_lg_u32 s{B+i}, s{S_TAG}")
            a(f"s_cbranch_scc1 {rt}")
        a(f"s_branch {ok}")
        a.label(rt)
        a(f"""s_sleep {sleep}
        s_add_u32 s65, s65, 1
        s_cmp_lt_u32 s65, {lim}
        s_cbranch_scc1 {lp}""")
        a.label(ok)
    def pub_flag(self, s_off, cond=None, nrep=1, vt=T0+14, va=T0+15):
        a = self.a
        sk = a.newlabel("pf")
        if cond:
            a(cond)
            a(f"s_cbranch_scc0 {sk}")
        a(f"""v_lshlrev_b32 v{va}, 7, v{V_LANE}
        v_mov_b32 v{vt}, s{S_TAG}
        s_mov_b64 exec, {(1 << nrep) - 1}
        buffer_store_dword v{vt}, v{va}, {WS}, {s_off} offen sc1
        s_mov_b64 exec, -1""")
        a.label(sk)
    def tagcheck(self, words, acc, retry, sleep=2):
        a = self.a
        a(f"v_xor_b32 v{acc}, s{S_TAG}, v{words[0]}")
        for w in words[1:]:
            a(f"v_bitop3_b32 v{acc}, v{acc}, v{w}, s{S_TAG} bitop3:0xf6")
        ok = a.newlabel("tok")
        a(f"""v_cmp_ne_u32 vcc, 0, v{acc}
        s_nop 1
        s_cbranch_vccz {ok}""")
        if sleep: a(f"s_sleep {sleep}")
        self.spin_fail(retry)
        a.label(ok)
    def xrow_reduce(self, op, x, tmp, steps=(16, 32)):
        a = self.a
        for st in steps:
            a(f"""v_mov_b32 v{tmp}, v{x}
            s_nop 1
            v_permlane{st}_swap_b32 v{x}, v{tmp}
            s_nop 1
            {op} v{x}, v{x}, v{tmp}""")
    def diag_mfma(self, X, W, acc, A0, A1, n=16, pre=None):
        a = self.a
        def perms(t):
            A = A0 if t % 2 == 0 else A1
            for k in range(4):
                a(f"v_perm_b32 v{A+k}, v{X + t//2}, v{X + t//2}, v{SEL[t%2][k]}")
        perms(0)
        for t in range(n):
            A = A0 if t % 2 == 0 else A1
            if t + 1 < n: perms(t + 1)
            else: a("s_nop 1")
            if pre: pre(t)
            c = "0" if t == 0 else f"v[{acc}:{acc+3}]"
            a(f"v_mfma_f32_16x16x32_bf16 v[{acc}:{acc+3}], v[{A}:{A+3}], v[{W+4*t}:{W+4*t+3}], {c}")
    def publish_granule(self, acc, q, voff, soff):
        a = self.a
        a("s_nop 7")
        a("s_nop 1")
        a(f"""v_cvt_pk_bf16_f32 v{q}, v{acc}, v{acc+1}
        v_cvt_pk_bf16_f32 v{q+2}, v{acc+2}, v{acc+3}
        v_mov_b32 v{q+1}, s{S_TAG}
        v_mov_b32 v{q+3}, s{S_TAG}
        buffer_store_dwordx4 v[{q}:{q+3}], v{voff}, {WS}, {soff} offen sc1""")
    def gran_voff(self, v, tmp):
        a = self.a
        a(f"""v_lshrrev_b32 v{v}, 1, v{V_G}
        v_lshlrev_b32 v{v}, 9, v{v}
        v_lshl_add_u32 v{v}, v{V_J16}, 5, v{v}
        v_and_b32 v{tmp}, 1, v{V_G}
        v_lshl_add_u32 v{v}, v{tmp}, 4, v{v}""")
    def hqB(self, dst, tmp):
        self.a(f"""s_and_b32 {dst}, s2, 7
        s_lshl_b32 {dst}, {dst}, 2
        s_bfe_u32 {tmp}, s2, 0x20003
        s_add_u32 {dst}, {dst}, {tmp}""")

    def prologue(self):
        a = self.a
        t = T0
        a(f"""
        s_cmp_ge_u32 s2, 256
        s_cbranch_scc1 .Lend
        s_load_dwordx16 s[16:31], s[0:1], 0
        s_load_dwordx8 s[32:39], s[0:1], 64
        s_load_dwordx4 s[40:43], s[0:1], 96""")
        if self.diag:
            a(f"s_memrealtime s[98:99]")
            a(f"v_mov_b32 v{V_ST}, 0")
        a(f"""
        v_and_b32 v{V_LANE}, 63, v0
        v_lshrrev_b32 v{t}, 6, v0
        v_and_b32 v{V_J16}, 15, v{V_LANE}
        v_readfirstlane_b32 s{S_WAVE}, v{t}
        v_lshrrev_b32 v{V_G}, 4, v{V_LANE}
        v_lshlrev_b32 v{t+1}, 2, v{V_LANE}
        v_add_u32 v{t+1}, {FLAGS}, v{t+1}
        v_mov_b32 v{t+2}, 0
        ds_write_b32 v{t+1}, v{t+2}
        s_and_b32 s{S_H}, s2, 31
        s_lshr_b32 s{S_J}, s2, 5
        s_mov_b32 s{S_SPIN}, 0
        s_mov_b32 s{S_LAND}, 0
        s_lshr_b32 s{S_AB}, s2, 7
        s_and_b32 s{S_AS}, s2, 15
        s_bfe_u32 s64, s2, 0x20005
        s_lshl_b32 s64, s64, 4
        s_or_b32 s{S_AS}, s{S_AS}, s64
        s_bfe_u32 s{S_AHALF}, s2, 0x10004
        """)
        packed = 0
        for w, tl in enumerate(WAVE2TILE): packed |= tl << (4*w)
        a(f"""s_lshl_b32 s64, s{S_WAVE}, 2
        s_lshr_b32 s{S_V}, {packed}, s64
        s_and_b32 s{S_V}, s{S_V}, 15""")
        a(f"""
        v_and_b32 v{t}, 1, v{V_J16}
        v_bfe_u32 v{t+1}, v{V_J16}, 1, 2
        v_cmp_eq_u32 vcc, 1, v{t}
        v_mov_b32 v{t+2}, 0x01000c0c
        v_mov_b32 v{t+3}, 0x03020c0c
        v_mov_b32 v{t+4}, 0x0c0c0100
        v_mov_b32 v{t+5}, 0x0c0c0302
        v_mov_b32 v{t+6}, 0x0c0c0c0c
        v_cndmask_b32 v{t+2}, v{t+4}, v{t+2}, vcc
        v_cndmask_b32 v{t+3}, v{t+5}, v{t+3}, vcc
        """)
        for k in range(4):
            a(f"""v_cmp_eq_u32 vcc, {k}, v{t+1}
            s_nop 1
            v_cndmask_b32 v{SEL[0][k]}, v{t+6}, v{t+2}, vcc
            v_cndmask_b32 v{SEL[1][k]}, v{t+6}, v{t+3}, vcc""")
        a(f"""
        v_cmp_eq_u32 vcc, 1, v{t}
        v_mov_b32 v{t+2}, 0xffff0000
        v_mov_b32 v{t+4}, 0x0000ffff
        v_cndmask_b32 v{t+2}, v{t+4}, v{t+2}, vcc
        v_lshrrev_b32 v{t+3}, 1, v{V_J16}
        """)
        for sg in range(2):
            for rg in range(2):
                a(f"""v_cmp_eq_u32 vcc, {sg*2+rg}, v{t+3}
                s_nop 1
                v_cndmask_b32 v{MSK[sg][rg]}, 0, v{t+2}, vcc""")
        a(f"""
        s_waitcnt lgkmcnt(0)
        s_barrier
        """)
        if self.diag: a(f"v_writelane_b32 v{V_ST}, s98, 0")
        self.stamp(15)
        self.srd(48, 42, 268435456)
        a(f"""
        s_cmp_eq_u32 s{S_WAVE}, 0
        s_cbranch_scc1 .Lw0
        s_cmp_eq_u32 s{S_WAVE}, 1
        s_cbranch_scc1 .Lw1
        s_cmp_eq_u32 s{S_WAVE}, 2
        s_cbranch_scc1 .Lw2
        s_cmp_eq_u32 s{S_WAVE}, 3
        s_cbranch_scc1 .Lw3
        s_branch .Lw47
        """)
    def attn_addr(self):
        a = self.a
        t = T0
        a(f"""
        v_and_b32 v{t}, 1, v{V_J16}
        v_and_b32 v{t+1}, 2, v{V_J16}
        v_lshl_or_b32 v{t}, v{t+1}, 2, v{t}
        v_lshrrev_b32 v{t+1}, 1, v{V_J16}
        v_and_b32 v{t+1}, 6, v{t+1}
        v_or_b32 v{t}, v{t}, v{t+1}              ; L(j16)
        v_xor_b32 v{t}, v{t}, v{V_G}             ; u
        v_lshlrev_b32 v{t}, 4, v{t}
        v_lshl_add_u32 v{t}, v{V_J16}, 10, v{t}
        s_lshl_b32 s64, s{S_V}, 14
        """)
        for q in range(4):
            a(f"v_xor_b32 v{AD_QB+q}, {q*64}, v{t}")
        for q in range(4):
            a(f"v_add_u32 v{AD_SA+q}, s64, v{AD_QB+q}")
            a(f"v_add_u32 v{AD_QB+q}, {QABS}, v{AD_QB+q}")
        a(f"""
        v_lshrrev_b32 v{t}, 2, v{V_LANE}          ; rho
        v_and_b32 v{t+1}, 1, v{t}
        v_and_b32 v{t+2}, 2, v{t}
        v_lshl_or_b32 v{t+1}, v{t+2}, 2, v{t+1}
        v_lshrrev_b32 v{t+2}, 1, v{t}
        v_and_b32 v{t+2}, 6, v{t+2}
        v_or_b32 v{t+1}, v{t+1}, v{t+2}          ; L(rho)
        v_and_b32 v{t+2}, 3, v{V_LANE}           ; cgrp
        v_lshlrev_b32 v{t+3}, 1, v{t+2}
        s_and_b32 s65, s{S_V}, 1
        s_lshl_b32 s65, s65, 3
        v_or_b32 v{t+3}, s65, v{t+3}
        v_xor_b32 v{t+3}, v{t+3}, v{t+1}
        v_lshlrev_b32 v{t+3}, 4, v{t+3}
        v_lshl_add_u32 v{t+3}, v{t}, 10, v{t+3}
        s_lshr_b32 s65, s{S_V}, 1
        s_lshl_b32 s65, s65, 8
        v_add_u32 v{t+3}, s65, v{t+3}
        v_and_b32 v{t+2}, 1, v{t+2}
        v_lshl_or_b32 v{t+3}, v{t+2}, 3, v{t+3}
        """)
        for tt in range(4):
            x = ((tt >> 1) << 4) | ((tt & 1) << 3)
            a(f"v_xor_b32 v{AD_TRL+tt}, {x}, v{t+3}")
            a(f"v_add_u32 v{AD_TRH+tt}, 0x10000, v{AD_TRL+tt}")
    def pa_reg(self, sg, t):
        return (PA + 16*sg + 4*t) if sg < 2 else (SA + 16*(sg-2) + 4*t)
    def tr_reads(self, sg):
        a = self.a
        for t in range(4):
            for tau in range(2):
                row0 = 32*sg + 16*tau
                base = AD_TRL + t if row0 < 64 else AD_TRH + t
                off = (row0 % 64) * 1024
                r = self.pa_reg(sg, t) + 2*tau
                a(f"ds_read_b64_tr_b16 v[{r}:{r+1}], v{base} offset:{off}")
    def sa_reads(self):
        a = self.a
        for s in range(16):
            if s == 12: a("s_waitcnt lgkmcnt(4)")
            a(f"ds_read_b128 v[{SA+4*s}:{SA+4*s+3}], v{AD_SA+(s&3)} offset:{(s>>2)*256}")

    def p1_issue(self, xbase, wbase, s_col):
        a = self.a
        t = T0
        self.srd(56, xbase, 2048)
        self.srd(52, wbase, 4194304)
        a(f"""
        v_lshrrev_b32 v{t+8}, 3, v{V_J16}
        v_lshlrev_b32 v{t+8}, 10, v{t+8}
        v_lshl_add_u32 v{t+8}, v{V_G}, 5, v{t+8}
        s_lshl_b32 s64, s{S_J}, 7
        v_lshlrev_b32 v{t+9}, 17, v{V_G}
        v_lshl_add_u32 v{t+9}, v{V_J16}, 4, v{t+9}
        s_lshl_b32 s66, s{S_J}, 19
        s_add_u32 s66, s66, {s_col}
        s_mov_b32 s67, s66
        buffer_load_dwordx4 v[{M0_}:{M0_+3}], v{t+8}, s[56:59], s64 offen
        buffer_load_dwordx4 v[{M0_+4}:{M0_+7}], v{t+8}, s[56:59], s64 offen offset:16
        """)
        for k in range(16):
            a(f"buffer_load_dwordx4 v[{SA+4*k}:{SA+4*k+3}], v{t+9}, s[52:55], s67 offen nt")
            if k < 15: a("s_add_u32 s67, s67, 8192")
    def p1_compute(self, extra, hbase, s_head):
        a = self.a
        t = T0
        a(f"s_waitcnt vmcnt({16 + extra})")
        def pre(k):
            a(f"s_waitcnt vmcnt({15 - k + extra})")
        self.diag_mfma(M0_, SA, ACC, t, t+4, pre=pre)
        self.get_tag()
        self.gran_voff(t+8, t+9)
        a(f"""
        s_lshl_b32 s64, {s_head}, 3
        s_add_u32 s64, s64, s{S_J}
        s_lshl_b32 s64, s64, 10
        s_add_u32 s64, s64, {hbase}
        """)
        self.publish_granule(ACC, t+12, t+8, "s64")
        if hbase == H1A:
            a(f"""s_lshl_b32 s64, s{S_H}, 7
            s_lshl_b32 s65, s{S_J}, 2
            s_add_u32 s64, s64, s65
            s_add_u32 s64, s64, {FL_H1A}""")
            self.pub_flag("s64")

    def w0_front(self):
        a = self.a
        t = T0
        a.label(".Lw0")
        self.load_tag()
        a(f"s_lshl_b32 s68, s{S_H}, 8")
        self.p1_issue(16, 20, "s68")
        self.srd(56, 22, 4194304)
        a(f"""
        v_lshlrev_b32 v{t+7}, 15, v{V_J16}
        v_lshl_add_u32 v{t+7}, v{V_G}, 4, v{t+7}
        s_mov_b32 s67, s66
        """)
        for tt in range(4):
            for sp in range(4):
                r = PA + 16*tt + 4*sp
                a(f"buffer_load_dwordx4 v[{r}:{r+3}], v{t+7}, s[56:59], s67 offen offset:{64*sp} nt")
            if tt < 3: a("s_add_u32 s67, s67, 8192")
        self.attn_addr()
        self.p1_compute(16, H1A, f"s{S_H}")
        self.stamp(2)
        a(f"""
        v_lshrrev_b32 v{t}, 1, v{V_J16}
        v_lshlrev_b32 v{t}, 10, v{t}
        v_and_b32 v{t+1}, 1, v{V_J16}
        v_lshl_add_u32 v{t}, v{t+1}, 9, v{t}
        v_lshl_add_u32 v{t}, v{V_G}, 5, v{t}
        s_lshl_b32 s64, s{S_H}, 13
        s_add_u32 s64, s64, {H1A}
        """)
        a(f"""s_lshl_b32 s66, s{S_H}, 7
        s_add_u32 s66, s66, {FL_H1A}""")
        self.sgate("s66", 8)
        lp = a.newlabel("h1")
        a.label(lp)
        for sp in range(4):
            for hf in range(2):
                r = QB + 8*sp + 4*hf
                a(f"buffer_load_dwordx4 v[{r}:{r+3}], v{t}, {WS}, s64 offen offset:{128*sp + 16*hf} sc1")
        self.set_flag(F_G1)
        a("s_waitcnt vmcnt(0)")
        words = []
        for q in range(8): words += [QB + 4*q + 1, QB + 4*q + 3]
        self.tagcheck(words, t+1, lp, sleep=self.o.get('h1sleep', 1))
        self.stamp(3)
        for sp in range(4):
            r = QB + 8*sp
            a(f"""v_mov_b32 v{r+1}, v{r+2}
            v_mov_b32 v{r+2}, v{r+4}
            v_mov_b32 v{r+3}, v{r+6}""")
        a("s_nop 1")
        D0 = KREG
        for sp in range(4):
            for tt in range(4):
                c = "0" if sp == 0 else f"v[{D0+4*tt}:{D0+4*tt+3}]"
                a(f"v_mfma_f32_16x16x32_bf16 v[{D0+4*tt}:{D0+4*tt+3}], v[{QB+8*sp}:{QB+8*sp+3}], v[{PA+16*tt+4*sp}:{PA+16*tt+4*sp+3}], {c}")
        a("s_nop 7"); a("s_nop 1")
        for tt in range(4):
            d = D0 + 4*tt
            a(f"v_add_f32 v{d}, v{d}, v{d+2}")
            a(f"v_add_f32 v{d+1}, v{d+1}, v{d+3}")
        a("s_nop 1")
        for tt in range(4):
            d = D0 + 4*tt
            a(f"v_permlane32_swap_b32 v{d}, v{d+1}")
        a("s_nop 1")
        for tt in range(4):
            d = D0 + 4*tt
            a(f"v_add_f32 v{d}, v{d}, v{d+1}")
        for tt in range(4):
            d = D0 + 4*tt
            a(f"v_mov_b32 v{d+1}, v{d}")
        a("s_nop 1")
        for tt in range(4):
            d = D0 + 4*tt
            a(f"v_permlane16_swap_b32 v{d}, v{d+1}")
        a("s_nop 1")
        for tt in range(4):
            d = D0 + 4*tt
            a(f"v_add_f32 v{d}, v{d}, v{d+1}")
            a(f"v_mul_f32 v{d}, {CS}, v{d}")
        a(f"""
        v_cvt_pk_bf16_f32 v{t+4}, v{D0}, v{D0+4}
        v_cvt_pk_bf16_f32 v{t+6}, v{D0+8}, v{D0+12}
        v_mov_b32 v{t+5}, s{S_TAG}
        v_mov_b32 v{t+7}, s{S_TAG}
        v_lshrrev_b32 v{t}, 1, v{V_G}
        v_lshlrev_b32 v{t}, 16, v{t}
        v_lshl_add_u32 v{t}, v{V_J16}, 4, v{t}
        s_lshl_b32 s64, s{S_H}, 3
        s_add_u32 s64, s64, s{S_J}
        s_lshl_b32 s64, s64, 8
        s_add_u32 s64, s64, {H2}
        """)
        self.wait_flag(F_CLR, 1)
        a(f"""
        v_and_b32 v{t+1}, 1, v{V_G}
        v_cmp_eq_u32 vcc, 0, v{t+1}
        s_and_saveexec_b64 s[70:71], vcc
        buffer_store_dwordx4 v[{t+4}:{t+7}], v{t}, {WS}, s64 offen sc1
        s_mov_b64 exec, s[70:71]
        s_lshr_b32 s64, s{S_H}, 4
        s_lshl_b32 s64, s64, 11
        s_and_b32 s65, s{S_H}, 15
        s_lshl_b32 s65, s65, 2
        s_add_u32 s64, s64, s65
        s_add_u32 s64, s64, {FL_H2}
        s_and_b32 s65, s{S_H}, 7
        """)
        self.pub_flag("s64", cond=f"s_cmp_eq_u32 s65, s{S_J}", nrep=16)
        self.stamp(4)
        for sg in range(2):
            self.wait_landed(2*sg + 2)
            self.tr_reads(sg)
        a(f"""s_and_b32 s69, s2, 31
        s_lshl_b32 s69, s69, 7
        s_add_u32 s69, s69, {FL_H2}""")
        self.sgate("s69", 16, sleep=self.o.get("g2sleep", 2))
        self.set_flag(F_G2)
        self.stamp(1)
        self.qabs_gather(0)
        a("s_branch .Lattn_own")

    def qabs_gather(self, z):
        a = self.a
        t = T0
        def reg(hh, jh):
            return (QB + 8*hh + 4*jh) if hh < 4 else (KREG + 8*(hh-4) + 4*jh)
        a(f"""
        s_lshl_b32 s64, s{S_AB}, 5
        s_lshl_b32 s65, s{S_AHALF}, 4
        s_add_u32 s64, s64, s65
        s_add_u32 s64, s64, {8*z}
        s_lshl_b32 s64, s64, 11
        s_add_u32 s64, s64, {H2}
        v_lshlrev_b32 v{t}, 4, v{V_LANE}
        """)
        def gather():
            for hh in range(8):
                if hh % 2 == 0: a(f"s_add_u32 s66, s64, {hh*2048}")
                for jh in range(2):
                    r = reg(hh, jh)
                    off = (hh % 2) * 2048 + jh * 1024
                    a(f"buffer_load_dwordx4 v[{r}:{r+3}], v{t}, {WS}, s66 offen offset:{off} sc1")
        gather()
        self.set_flag(F_G2I, add=True)
        a(f"""
        v_lshrrev_b32 v{t+2}, 5, v{V_LANE}
        v_lshlrev_b32 v{t+2}, 8, v{t+2}
        v_and_b32 v{t+3}, 1, v{V_G}
        v_lshl_add_u32 v{t+2}, v{t+3}, 7, v{t+2}
        v_lshrrev_b32 v{t+3}, 1, v{V_J16}
        v_lshl_add_u32 v{t+2}, v{t+3}, 4, v{t+2}
        v_and_b32 v{t+3}, 1, v{V_LANE}
        v_lshl_add_u32 v{t+2}, v{t+3}, 3, v{t+2}
        s_waitcnt vmcnt(0)
        """)
        chk = a.newlabel("h2chk")
        a(f"s_branch {chk}")
        lp = a.newlabel("h2")
        a.label(lp)
        gather()
        a("s_waitcnt vmcnt(0)")
        a.label(chk)
        words = []
        for hh in range(8):
            for jh in range(2): words += [reg(hh, jh) + 1, reg(hh, jh) + 3]
        self.tagcheck(words, t+1, lp)
        for hh in range(8):
            head = 8*z + hh
            a(f"v_xor_b32 v{t+4+(hh%2)}, {Lsw(head) << 4}, v{t+2}")
            a(f"v_add_u32 v{t+4+(hh%2)}, {QABS + head*1024}, v{t+4+(hh%2)}")
            for jh in range(2):
                r = reg(hh, jh)
                a(f"ds_write2_b32 v{t+4+(hh%2)}, v{r}, v{r+2} offset0:{jh*128} offset1:{jh*128+1}")
            if hh % 4 == 3: a("s_waitcnt lgkmcnt(4)")
        a("s_waitcnt lgkmcnt(0)")
        self.set_flag(F_QABS, add=True)
        self.stamp(3) if z == 1 else self.stamp(14)

    def w1_front(self):
        a = self.a
        t = T0
        a.label(".Lw1")
        self.load_tag()
        self.hqB("s72", "s73")
        a("s_lshl_b32 s68, s72, 8")
        if self.o.get("wqdelay", 0): self.wait_flag(F_ISSUED, self.o["wqdelay"], sleep=1)
        self.p1_issue(28, 34, "s68")
        self.attn_addr()
        self.p1_compute(0, H1B, "s72")
        a(f"""s_lshl_b32 s64, s72, 9
        s_lshl_b32 s65, s{S_J}, 2
        s_add_u32 s64, s64, s65
        s_add_u32 s64, s64, {FL_H1B}""")
        self.pub_flag("s64", nrep=4)
        self.stamp(2)
        self.prereads_own()
        a("s_branch .Lattn_s")
    def wq_reg(self, k):
        return (KREG + 4*k) if k < 8 else (VREG + 4*(k-8))
    def prereads_own(self):
        a = self.a
        for sg in range(2):
            self.wait_landed(2*sg + 2)
            self.tr_reads(sg)
        a(f"s_add_u32 s67, s{S_V}, 1")
        sk = a.newlabel("own")
        a(f"""s_cmp_ge_u32 s{S_LAND}, s67
        s_cbranch_scc1 {sk}""")
        self.wait_flag(F_LANDED, "s67", dst=f"s{S_LAND}")
        a.label(sk)
        a("s_waitcnt lgkmcnt(0)")
        self.sa_reads()

    def w2_front(self):
        a = self.a
        t = T0
        a.label(".Lw2")
        self.load_tag()
        self.srd(52, 18, 16777216)
        a(f"""
        s_lshl_b32 s66, s{S_AB}, 23
        s_lshl_b32 s67, s{S_AS}, 17
        s_add_u32 s66, s66, s67
        s_lshl_b32 s68, s{S_AHALF}, 16
        s_xor_b32 s69, s68, 0x10000
        s_add_u32 s67, s66, s69
        s_add_u32 s66, s66, s68
        v_lshlrev_b32 v{M0_}, 4, v{V_LANE}
        """)
        for rho in range(16):
            a(f"v_xor_b32 v{KREG+rho}, {Lsw(rho) << 4}, v{M0_}")
        a(f"v_mov_b32 v{M0_+1}, {FLAGS}")
        D = self.depth
        n = 0
        landed_tiles = 0
        did_addr = False
        for tl in range(8):
            for rho in range(16):
                loff = (16*tl + rho) * 1024
                goff = (tl >> 1) * 16384 + rho * 1024
                base = "s66" if tl % 2 == 0 else "s67"
                a(f"s_mov_b32 m0, {CKV + loff}")
                a(f"s_add_u32 s68, {base}, {goff}")
                a(f"buffer_load_dwordx4 v{KREG+rho}, s[52:55], s68 offen nt lds")
                n += 1
                if n == min(D, 128) and not did_addr:
                    self.attn_addr(); did_addr = True
                if n % 16 == 0:
                    a(f"v_mov_b32 v{M0_+2}, {n}")
                    a(f"ds_write_b32 v{M0_+1}, v{M0_+2} offset:{4*F_ISSUED}")
                if n >= D and n < 128:
                    a(f"s_waitcnt vmcnt({D-1})")
                    landed = n - (D - 1)
                    while landed_tiles < landed // 16:
                        landed_tiles += 1
                        self._landed(landed_tiles)
        while landed_tiles < 8:
            need = (landed_tiles + 1) * 16
            a(f"s_waitcnt vmcnt({128 - need})")
            landed_tiles += 1
            self._landed(landed_tiles)
        self.get_tag()
        a(f"s_mov_b32 s{S_LAND}, 8")
        if not self.o.get("ldstamps"): self.stamp(1)
        else:
            pass
        a("s_branch .Lattn_s")
    def _landed(self, k):
        a = self.a
        if self.o.get("ldstamps"): self.stamp([1,2,3,4,9,10,11,12][k-1])
        a(f"v_mov_b32 v{M0_+2}, {k}")
        a(f"ds_write_b32 v{M0_+1}, v{M0_+2} offset:{4*F_LANDED}")
        tile = WAVE2TILE[2]
        if k == tile + 1: self.sa_reads()
        if k in (2, 4):
            a("s_waitcnt lgkmcnt(0)")
            self.tr_reads(k // 2 - 1)

    def w3_front(self):
        a = self.a
        t = T0
        a.label(".Lw3")
        self.load_tag()
        self.attn_addr()
        a(f"""
        s_lshl_b32 s64, s{S_H}, 3
        s_add_u32 s64, s64, s{S_J}
        s_lshl_b32 s64, s64, 14
        s_add_u32 s64, s64, {H3}
        v_lshlrev_b32 v{t}, 4, v{V_LANE}
        v_mov_b32 v{t+4}, -1
        v_mov_b32 v{t+5}, -1
        v_mov_b32 v{t+6}, -1
        v_mov_b32 v{t+7}, -1
        """)
        self.wait_flag(F_G1, 1, sleep=1)
        for i in range(16):
            a(f"buffer_store_dwordx4 v[{t+4}:{t+7}], v{t}, {WS}, s64 offen offset:{1024*(i%4)} sc1")
            if i % 4 == 3 and i < 15: a("s_add_u32 s64, s64, 4096")
        a("s_waitcnt vmcnt(0)")
        self.set_flag(F_CLR)
        self.get_tag()
        self.stamp(1)
        self.prereads_own()
        self.wait_flag(F_G2, 1, sleep=1)
        self.qabs_gather(1)
        a("s_branch .Lattn_s")

    def w47_front(self):
        a = self.a
        t = T0
        a.label(".Lw47")
        self.load_tag()
        self.attn_addr()
        a(f"s_sub_u32 s72, s{S_WAVE}, 4")
        self.get_tag()
        a(f"""
        s_lshr_b32 s68, s2, 7
        s_lshl_b32 s68, s68, 3
        s_and_b32 s65, s2, 7
        s_add_u32 s68, s68, s65
        s_lshl_b32 s68, s68, 13
        s_bfe_u32 s65, s2, 0x40003
        s_lshl_b32 s65, s65, 7
        s_add_u32 s68, s68, s65
        s_lshl_b32 s65, s72, 5
        s_add_u32 s68, s68, s65
        s_add_u32 s68, s68, 6144
        s_lshl_b32 s{S_KOFF}, s68, 8
        s_add_u32 s68, s{S_KOFF}, 4096
        v_lshlrev_b32 v{t+10}, 8, v{V_J16}
        v_lshl_add_u32 v{t+10}, v{V_G}, 4, v{t+10}
        """)
        self.srd(56, 30, 33554432)
        self.qb_gather()
        self.prereads_own()
        self.stamp(1)
        self.wait_flag(F_G2I, 2, sleep=1)
        for tau in range(2):
            for s_ in range(4):
                r = KREG + 16*tau + 4*s_
                a(f"buffer_load_dwordx4 v[{r}:{r+3}], v{t+10}, s[56:59], {'s'+str(S_KOFF) if tau == 0 else 's68'} offen offset:{64*s_} nt")
        self.stamp(2)
        a("s_branch .Lattn_s")
    def qb_gather(self):
        a = self.a
        t = T0
        a(f"""s_and_b32 s73, s2, 7
        s_lshl_b32 s73, s73, 2
        s_add_u32 s73, s73, s72
        s_lshr_b32 s69, s2, 7
        s_lshl_b32 s64, s73, 13
        s_lshl_b32 s65, s69, 9
        s_add_u32 s64, s64, s65
        s_add_u32 s64, s64, {H1B}
        s_add_u32 s66, s64, 4096
        v_lshlrev_b32 v{t}, 10, v{V_G}
        v_lshl_add_u32 v{t}, v{V_J16}, 4, v{t}
        """)
        def gather():
            for ph in range(2):
                for dh in range(2):
                    r = QB + 8*ph + 4*dh
                    a(f"buffer_load_dwordx4 v[{r}:{r+3}], v{t}, {WS}, {'s64' if ph == 0 else 's66'} offen offset:{256*dh} sc1")
        a(f"""s_lshl_b32 s67, s73, 2
        s_bfe_u32 s65, s2, 0x20005
        s_add_u32 s67, s67, s65
        s_lshl_b32 s67, s67, 7
        s_add_u32 s67, s67, {FL_H1B}""")
        self.sgate("s67", 8, sleep=20)
        lp = a.newlabel("h1b")
        a.label(lp)
        gather()
        a("s_waitcnt vmcnt(0)")
        words = []
        for q in range(4): words += [QB + 4*q + 1, QB + 4*q + 3]
        self.tagcheck(words, t+1, lp)
        for q in range(4): a(f"v_mov_b32 v{QB+4*q+1}, v{QB+4*q+2}")
        SE = SA + 16
        for sg in range(2):
            for rg in range(2):
                a(f"v_and_b32 v{SE+2*sg+rg}, 0x3f803f80, v{MSK[sg][rg]}")
        a("s_nop 1")
        first = True
        for ph in range(2):
            for dh in range(2):
                r = QB + 8*ph + 4*dh
                c = "0" if first else f"v[{ACC}:{ACC+3}]"
                first = False
                a(f"v_mfma_f32_16x16x16_bf16 v[{ACC}:{ACC+3}], v[{SE+2*dh}:{SE+2*dh+1}], v[{r}:{r+1}], {c}")
        a("s_nop 7"); a("s_nop 1")
        for r in range(4): a(f"v_mul_f32 v{ACC+r}, {CS}, v{ACC+r}")
        a(f"""
        v_cvt_pk_bf16_f32 v{t+4}, v{ACC}, v{ACC+1}
        v_cvt_pk_bf16_f32 v{t+5}, v{ACC+2}, v{ACC+3}
        v_lshlrev_b32 v{t+1}, 3, v{V_LANE}
        s_lshl_b32 s65, s72, 8
        s_add_u32 s65, s65, {QBL}
        v_add_u32 v{t+1}, s65, v{t+1}
        v_cmp_gt_u32 vcc, 32, v{V_LANE}
        s_and_saveexec_b64 s[70:71], vcc
        ds_write_b64 v{t+1}, v[{t+4}:{t+5}]
        s_mov_b64 exec, s[70:71]
        s_waitcnt lgkmcnt(0)
        """)
        self.set_flag(F_QB, add=True)

    def v_loads(self):
        a = self.a
        t = T0
        self.srd(56, 32, 33554432)
        a(f"""v_lshlrev_b32 v{t+11}, 11, v{V_G}
        v_lshl_add_u32 v{t+11}, v{V_J16}, 4, v{t+11}""")
        for k in range(8):
            a(f"buffer_load_dwordx4 v[{VREG+4*k}:{VREG+4*k+3}], v{t+11}, s[56:59], s{S_KOFF} offen offset:{256*k} nt")

    def attn(self):
        a = self.a
        t = T0
        a.label(".Lattn")
        for sg in range(2):
            self.wait_landed(2*sg + 2)
            self.tr_reads(sg)
        a.label(".Lattn_own")
        a(f"s_add_u32 s64, s{S_V}, 1")
        sk = a.newlabel("own")
        a(f"""s_cmp_ge_u32 s{S_LAND}, s64
        s_cbranch_scc1 {sk}""")
        self.wait_flag(F_LANDED, "s64", dst=f"s{S_LAND}")
        a.label(sk)
        a("s_waitcnt lgkmcnt(0)")
        self.sa_reads()
        a.label(".Lattn_s")
        self.stamp(5)
        self.wait_flag(F_QABS, 2)
        self.stamp(6)
        NB = 8
        def bread(s):
            r = QB + 4*(s % NB)
            a(f"ds_read_b128 v[{r}:{r+3}], v{AD_QB+(s&3)} offset:{(s>>2)*256}")
        for s in range(NB): bread(s)
        for s in range(16):
            rem = min(NB - 1, 15 - s)
            a(f"s_waitcnt lgkmcnt({rem})")
            r = QB + 4*(s % NB)
            c = "0" if s == 0 else f"v[{ACC}:{ACC+3}]"
            a(f"v_mfma_f32_16x16x32_bf16 v[{ACC}:{ACC+3}], v[{SA+4*s}:{SA+4*s+3}], v[{r}:{r+3}], {c}")
            if s + NB < 16: bread(s + NB)
        self.wait_landed(6)
        self.tr_reads(2)
        m = M0_
        a(f"""
        v_lshlrev_b32 v{t}, 5, v{V_J16}
        s_lshl_b32 s65, s{S_V}, 2
        v_add_u32 v{t}, s65, v{t}                ; head*32 + v*4
        v_add_u32 v{t+1}, {MAXB}, v{t}
        v_lshlrev_b32 v{t+2}, 5, v{V_J16}
        v_add_u32 v{t+2}, {MAXB}, v{t+2}
        s_nop 4
        v_max_f32 v{m}, v{ACC}, v{ACC+1}
        v_max3_f32 v{m}, v{m}, v{ACC+2}, v{ACC+3}""")
        self.xrow_reduce("v_max_f32", m, m+1)
        a(f"""
        v_cmp_gt_u32 vcc, 16, v{V_LANE}
        s_and_saveexec_b64 s[70:71], vcc
        ds_write_b32 v{t+1}, v{m}
        s_mov_b64 exec, s[70:71]
        s_waitcnt lgkmcnt(0)
        s_barrier
        ds_read_b128 v[{QB}:{QB+3}], v{t+2}
        ds_read_b128 v[{QB+4}:{QB+7}], v{t+2} offset:16
        """)
        self.tr_reads(3)
        a(f"""
        s_waitcnt lgkmcnt(8)
        v_max3_f32 v{m}, v{QB}, v{QB+1}, v{QB+2}
        v_max3_f32 v{m}, v{m}, v{QB+3}, v{QB+4}
        v_max3_f32 v{m}, v{m}, v{QB+5}, v{QB+6}
        v_max_f32 v{m}, v{m}, v{QB+7}
        """)
        for r in range(4): a(f"v_sub_f32 v{ACC+r}, v{ACC+r}, v{m}")
        for r in range(4): a(f"v_exp_f32 v{ACC+r}, v{ACC+r}")
        a(f"""s_nop 0
        v_add_f32 v{m+1}, v{ACC}, v{ACC+1}
        v_add_f32 v{m+2}, v{ACC+2}, v{ACC+3}
        v_cvt_pk_bf16_f32 v{m+4}, v{ACC}, v{ACC+1}
        v_cvt_pk_bf16_f32 v{m+5}, v{ACC+2}, v{ACC+3}
        v_add_f32 v{m+1}, v{m+1}, v{m+2}
        s_lshr_b32 s65, s{S_V}, 1
        s_lshl_b32 s65, s65, 10
        s_and_b32 s66, s{S_V}, 1
        s_lshl_b32 s66, s66, 3
        s_add_u32 s65, s65, s66
        s_add_u32 s65, s65, {PBUF}
        v_lshlrev_b32 v{t+2}, 4, v{V_LANE}
        v_add_u32 v{t+3}, s65, v{t+2}
        ds_write_b64 v{t+3}, v[{m+4}:{m+5}]
        """)
        self.xrow_reduce("v_add_f32", m+1, m+2)
        a(f"""
        v_add_u32 v{t+1}, {LBUF}, v{t}
        v_cmp_gt_u32 vcc, 16, v{V_LANE}
        s_and_saveexec_b64 s[70:71], vcc
        ds_write_b32 v{t+1}, v{m+1}
        s_mov_b64 exec, s[70:71]
        v_add_u32 v{t+2}, {PBUF}, v{t+2}
        s_waitcnt lgkmcnt(0)
        s_barrier
        """)
        self.stamp(7)
        for sg in range(4):
            a(f"ds_read_b128 v[{QB+4*sg}:{QB+4*sg+3}], v{t+2} offset:{sg*1024}")
        if self.o.get("wuv_early", 0):
            sk = a.newlabel("wuv")
            a(f"""s_cmp_lg_u32 s{S_WAVE}, 2
            s_cbranch_scc1 {sk}
            s_lshl_b32 s66, s{S_J}, 19
            s_lshl_b32 s65, s{S_H}, 8
            s_add_u32 s66, s66, s65""")
            self.late_dma_issue(52, 24, 4194304, 13, "s66", LW0, t+4)
            a.label(sk)
        PV = SA + 32
        for sg in range(4):
            a(f"s_waitcnt lgkmcnt({3-sg})")
            for tt in range(4):
                r = self.pa_reg(sg, tt)
                c = "0" if sg == 0 else f"v[{PV+4*tt}:{PV+4*tt+3}]"
                a(f"v_mfma_f32_16x16x32_bf16 v[{PV+4*tt}:{PV+4*tt+3}], v[{r}:{r+3}], v[{QB+4*sg}:{QB+4*sg+3}], {c}")
        a(f"""
        v_lshlrev_b32 v{t+2}, 17, v{V_J16}
        v_lshl_add_u32 v{t+2}, v{V_G}, 4, v{t+2}
        s_lshl_b32 s64, s{S_AHALF}, 21
        s_lshl_b32 s65, s{S_V}, 14
        s_add_u32 s64, s64, s65
        s_lshl_b32 s65, s{S_AB}, 13
        s_add_u32 s64, s64, s65
        s_lshl_b32 s65, s{S_AS}, 7
        s_add_u32 s64, s64, s65
        s_add_u32 s64, s64, {H3}
        s_nop 7
        """)
        O = SA + 48
        for tt in range(4):
            d = PV + 4*tt
            a(f"v_cvt_pk_bf16_f32 v{O+2*tt}, v{d}, v{d+1}")
            a(f"v_cvt_pk_bf16_f32 v{O+2*tt+1}, v{d+2}, v{d+3}")
        for r in range(8): a(f"v_min_u32 v{O+r}, 0xfffffffe, v{O+r}")
        a(f"""buffer_store_dwordx4 v[{O}:{O+3}], v{t+2}, {WS}, s64 offen sc1
        buffer_store_dwordx4 v[{O+4}:{O+7}], v{t+2}, {WS}, s64 offen offset:64 sc1
        """)
        self.stamp(8)
        a(f"""
        s_cmp_eq_u32 s{S_WAVE}, 0
        s_cbranch_scc1 .Lt0
        s_cmp_eq_u32 s{S_WAVE}, 1
        s_cbranch_scc1 .Lt1
        s_cmp_eq_u32 s{S_WAVE}, 2
        s_cbranch_scc1 .Lt2
        s_cmp_eq_u32 s{S_WAVE}, 3
        s_cbranch_scc1 .Lt3
        s_branch .Lt47
        """)

    def read_w_lds(self, base, dst):
        a = self.a
        t = T0
        a(f"v_lshlrev_b32 v{t+13}, 4, v{V_LANE}")
        a(f"v_add_u32 v{t+13}, {base}, v{t+13}")
        for k in range(16):
            if k == 12: a("s_waitcnt lgkmcnt(4)")
            a(f"ds_read_b128 v[{dst+4*k}:{dst+4*k+3}], v{t+13} offset:{k*1024}")
    def vec_to_x(self, vec, X):
        a = self.a
        t = T0
        a(f"""v_lshrrev_b32 v{t+13}, 3, v{V_J16}
        v_lshlrev_b32 v{t+13}, 7, v{t+13}
        v_lshl_add_u32 v{t+13}, v{V_G}, 5, v{t+13}
        v_add_u32 v{t+13}, {vec}, v{t+13}
        s_waitcnt lgkmcnt(0)
        ds_read_b128 v[{X}:{X+3}], v{t+13}
        ds_read_b128 v[{X+4}:{X+7}], v{t+13} offset:16
        s_waitcnt lgkmcnt(0)""")
    def publish_h5(self, acc, src, s_pp):
        a = self.a
        t = T0
        a(f"""v_lshrrev_b32 v{t+8}, 2, v{V_LANE}
        v_lshlrev_b32 v{t+8}, 12, v{t+8}
        v_and_b32 v{t+9}, 3, v{V_LANE}
        v_lshl_add_u32 v{t+8}, v{t+9}, 4, v{t+8}
        s_and_b32 s64, s{S_J}, 3
        s_add_u32 s64, s64, {src*4}
        s_lshl_b32 s64, s64, 16
        s_lshl_b32 s65, {s_pp}, 6
        s_add_u32 s64, s64, s65
        s_add_u32 s64, s64, {H5}""")
        self.publish_granule(acc, t+4, t+8, "s64")
        a(f"""s_and_b32 s64, s{S_J}, 3
        s_add_u32 s64, s64, {src*4}
        s_lshl_b32 s64, s64, 8
        s_lshr_b32 s65, {s_pp}, 2
        s_lshl_b32 s65, s65, 2
        s_add_u32 s64, s64, s65
        s_add_u32 s64, s64, {FL_H5}
        s_and_b32 s65, {s_pp}, 3
        """)
        self.pub_flag("s64", cond="s_cmp_eq_u32 s65, 1", nrep=2)

    def tail_w0(self):
        a = self.a
        t = T0
        X = QB; A0 = QB + 8; A1 = QB + 12
        a.label(".Lt0")
        a(f"""
        v_lshrrev_b32 v{t}, 3, v{V_J16}
        v_lshlrev_b32 v{t}, 10, v{t}
        v_lshl_add_u32 v{t}, v{V_G}, 8, v{t}
        v_and_b32 v{t+1}, 7, v{V_J16}
        v_lshl_add_u32 v{t}, v{t+1}, 5, v{t}
        s_lshl_b32 s64, s{S_H}, 11
        s_add_u32 s64, s64, {H3S}
        v_lshrrev_b32 v{t+2}, 3, v{V_J16}
        v_lshlrev_b32 v{t+2}, 13, v{t+2}
        v_lshl_add_u32 v{t+2}, v{V_G}, 11, v{t+2}
        v_lshl_add_u32 v{t+2}, v{t+1}, 4, v{t+2}
        s_lshl_b32 s66, s{S_H}, 3
        s_add_u32 s66, s66, s{S_J}
        s_lshl_b32 s66, s66, 14
        s_add_u32 s66, s66, {H3}
        """)
        S = KREG
        a(f"""s_lshl_b32 s67, s{S_H}, 7
        s_add_u32 s67, s67, {FL_H3}""")
        self.sgate("s67", 16, sleep=self.o.get("gsleep", 3))
        self.stamp(9)
        lp2 = a.newlabel("h3p")
        a.label(lp2)
        a(f"""buffer_load_dwordx4 v[{S}:{S+3}], v{t}, {WS}, s64 offen sc1
        buffer_load_dwordx4 v[{S+4}:{S+7}], v{t}, {WS}, s64 offen offset:16 sc1""")
        for k in range(16):
            a(f"buffer_load_dwordx4 v[{SA+4*k}:{SA+4*k+3}], v{t+2}, {WS}, s66 offen offset:{128*k} sc1")
        self.set_flag(F_G3)
        a("s_waitcnt vmcnt(16)")
        lpx = a.newlabel("h3x")
        okx = a.newlabel("h3sok")
        a(f"v_xor_b32 v{t+1}, s{S_TAG}, v{S+1}")
        for w_ in (S+3, S+5, S+7):
            a(f"v_bitop3_b32 v{t+1}, v{t+1}, v{w_}, s{S_TAG} bitop3:0xf6")
        a(f"""v_cmp_ne_u32 vcc, 0, v{t+1}
        s_nop 1
        s_cbranch_vccz {okx}
        s_waitcnt vmcnt(0)
        s_sleep 1""")
        self.spin_fail(lp2)
        a.label(okx)
        W = S + 8
        a(f"""
        v_max_f32 v{W}, v{S}, v{S+4}
        s_nop 1
        v_max_f32_dpp v{W}, v{W}, v{W} quad_perm:[1,0,3,2] row_mask:0xf bank_mask:0xf
        s_nop 1
        v_max_f32_dpp v{W}, v{W}, v{W} quad_perm:[2,3,0,1] row_mask:0xf bank_mask:0xf
        s_nop 1
        v_max_f32_dpp v{W}, v{W}, v{W} row_half_mirror row_mask:0xf bank_mask:0xf
        """)
        self.xrow_reduce("v_max_f32", W, W+1)
        a(f"""
        v_sub_f32 v{W+2}, v{S}, v{W}
        v_sub_f32 v{W+3}, v{S+4}, v{W}
        v_exp_f32 v{W+2}, v{W+2}
        v_exp_f32 v{W+3}, v{W+3}
        s_nop 0
        v_cvt_pk_bf16_f32 v{W+4}, v{W+2}, v{W+3}
        v_mul_f32 v{W+5}, v{W+2}, v{S+2}
        v_fmac_f32 v{W+5}, v{W+3}, v{S+6}
        v_lshrrev_b32 v{W+6}, 3, v{V_J16}
        v_lshlrev_b32 v{W+6}, 7, v{W+6}
        v_lshl_add_u32 v{W+6}, v{V_G}, 5, v{W+6}
        v_and_b32 v{W+7}, 7, v{V_J16}
        v_lshl_add_u32 v{W+6}, v{W+7}, 2, v{W+6}
        v_add_u32 v{W+6}, {VEC0}, v{W+6}
        ds_write_b32 v{W+6}, v{W+4}
        """)
        self.vec_to_x(VEC0, X)
        a(f"""
        v_add_f32_dpp v{W+5}, v{W+5}, v{W+5} quad_perm:[1,0,3,2] row_mask:0xf bank_mask:0xf
        s_nop 1
        v_add_f32_dpp v{W+5}, v{W+5}, v{W+5} quad_perm:[2,3,0,1] row_mask:0xf bank_mask:0xf
        s_nop 1
        v_add_f32_dpp v{W+5}, v{W+5}, v{W+5} row_half_mirror row_mask:0xf bank_mask:0xf
        """)
        self.xrow_reduce("v_add_f32", W+5, W+1)
        a(f"v_rcp_f32 v{W+5}, v{W+5}")
        a(f"v_mov_b32 v{W+7}, 0")
        def pre(k):
            a(f"s_waitcnt vmcnt({15-k})")
            r = SA + 4*k
            a(f"v_max3_u32 v{W+7}, v{W+7}, v{r}, v{r+1}")
            a(f"v_max3_u32 v{W+7}, v{W+7}, v{r+2}, v{r+3}")
        self.diag_mfma(X, SA, ACC, A0, A1, pre=pre)
        ok = a.newlabel("h3ok")
        a(f"""v_cmp_eq_u32 vcc, -1, v{W+7}
        s_nop 1
        s_cbranch_vccz {ok}""")
        self.spin_fail(lp2)
        a.label(ok)
        self.stamp(10)
        self.wait_flag(F_WUV, 1)
        self.read_w_lds(LW0, PA)
        for r in range(4): a(f"v_mul_f32 v{ACC+r}, v{W+5}, v{ACC+r}")
        a(f"""
        v_cvt_pk_bf16_f32 v{t+4}, v{ACC}, v{ACC+1}
        v_cvt_pk_bf16_f32 v{t+5}, v{ACC+2}, v{ACC+3}
        v_and_b32 v{W+6}, 3, v{V_J16}
        v_and_b32 v{W+1}, 1, v{V_G}
        v_xor_b32 v{W+7}, v{W+6}, v{W+1}
        v_and_b32 v{W+7}, 1, v{W+7}
        v_lshlrev_b32 v{W+7}, 3, v{W+7}
        v_lshl_add_u32 v{W+7}, v{W+6}, 5, v{W+7}
        v_bfe_u32 v{W+6}, v{V_J16}, 2, 1
        v_lshl_add_u32 v{W+7}, v{W+6}, 4, v{W+7}
        v_lshrrev_b32 v{W+6}, 3, v{V_J16}
        v_lshl_add_u32 v{W+7}, v{W+6}, 7, v{W+7}
        v_add_u32 v{W+7}, {VEC0}, v{W+7}
        v_lshrrev_b32 v{W+1}, 1, v{V_G}
        v_cmp_eq_u32 vcc, v{W+1}, v{W+6}
        s_and_saveexec_b64 s[70:71], vcc
        ds_write_b64 v{W+7}, v[{t+4}:{t+5}]
        s_mov_b64 exec, s[70:71]
        """)
        self.vec_to_x(VEC0, X)
        self.diag_mfma(X, PA, ACC, A0, A1)
        self.gran_voff(t+8, t+9)
        a(f"""s_lshl_b32 s64, s{S_H}, 3
        s_add_u32 s64, s64, s{S_J}
        s_lshl_b32 s64, s64, 10
        s_add_u32 s64, s64, {H4}""")
        self.publish_granule(ACC, t+4, t+8, "s64")
        a(f"""s_lshl_b32 s64, s{S_H}, 7
        s_lshl_b32 s65, s{S_J}, 2
        s_add_u32 s64, s64, s65
        s_add_u32 s64, s64, {FL_H4}""")
        self.pub_flag("s64")
        self.stamp(11)
        a(f"""
        v_lshlrev_b32 v{t}, 10, v{V_G}
        v_lshl_add_u32 v{t}, v{V_J16}, 4, v{t}
        s_lshl_b32 s64, s{S_H}, 13
        s_lshr_b32 s65, s{S_J}, 2
        s_lshl_b32 s66, s65, 8
        s_add_u32 s64, s64, s66
        s_add_u32 s64, s64, {H4}
        s_add_u32 s66, s64, 4096
        """)
        SE = KREG
        for sg in range(2):
            for rg in range(2):
                a(f"v_and_b32 v{SE+2*sg+rg}, 0x3f803f80, v{MSK[sg][rg]}")
        self.wait_flag(F_WO, 1)
        self.read_w_lds(LW1, PA)
        a(f"""s_lshl_b32 s67, s{S_H}, 7
        s_add_u32 s67, s67, {FL_H4}""")
        self.sgate("s67", 8)
        lp = a.newlabel("h4")
        a.label(lp)
        for b in range(2):
            for ph in range(2):
                r = SA + 8*b + 4*ph
                a(f"buffer_load_dwordx4 v[{r}:{r+3}], v{t}, {WS}, {'s64' if ph == 0 else 's66'} offen offset:{512*b} sc1")
        self.set_flag(F_G4)
        a("s_waitcnt vmcnt(0)")
        words = []
        for q in range(4): words += [SA + 4*q + 1, SA + 4*q + 3]
        self.tagcheck(words, t+1, lp, sleep=1)
        self.stamp(12)
        for q in range(4): a(f"v_mov_b32 v{SA+4*q+1}, v{SA+4*q+2}")
        a("s_nop 1")
        first = True
        for b in range(2):
            for ph in range(2):
                r = SA + 8*b + 4*ph
                c = "0" if first else f"v[{ACC}:{ACC+3}]"
                first = False
                a(f"v_mfma_f32_16x16x16_bf16 v[{ACC}:{ACC+3}], v[{SE+2*b}:{SE+2*b+1}], v[{r}:{r+1}], {c}")
        a(f"""
        v_lshlrev_b32 v{t+6}, 7, v{V_G}
        v_lshl_add_u32 v{t+6}, v{V_J16}, 3, v{t+6}
        v_add_u32 v{t+6}, {VEC0}, v{t+6}
        v_cmp_gt_u32 vcc, 32, v{V_LANE}
        s_nop 4
        v_cvt_pk_bf16_f32 v{t+4}, v{ACC}, v{ACC+1}
        v_cvt_pk_bf16_f32 v{t+5}, v{ACC+2}, v{ACC+3}
        s_and_saveexec_b64 s[70:71], vcc
        ds_write_b64 v{t+6}, v[{t+4}:{t+5}]
        s_mov_b64 exec, s[70:71]
        """)
        self.vec_to_x(VEC0, X)
        self.diag_mfma(X, PA, ACC, A0, A1)
        a(f"""s_lshl_b32 s67, s{S_H}, 1
        s_lshr_b32 s65, s{S_J}, 2
        s_add_u32 s67, s67, s65""")
        self.publish_h5(ACC, 0, "s67")
        self.stamp(13)
        self.dump_stamps()
        a("s_branch .Lend")

    def tail_w1(self):
        a = self.a
        t = T0
        X = QB; A0 = QB + 8; A1 = QB + 12
        a.label(".Lt1")
        self.hqB("s72", "s73")

        a(f"""s_lshr_b32 s73, s{S_J}, 2
        v_and_b32 v{t}, 3, v{V_J16}
        v_lshlrev_b32 v{t}, 6, v{t}
        v_lshl_add_u32 v{t}, v{V_G}, 4, v{t}
        s_lshl_b32 s64, s72, 8
        s_add_u32 s64, s64, {H3BS}
        s_add_u32 s68, s64, 8192
        v_lshlrev_b32 v{t+2}, 9, v{V_G}
        v_lshl_add_u32 v{t+2}, v{V_J16}, 4, v{t+2}
        s_lshl_b32 s66, s72, 13
        s_lshl_b32 s67, s73, 8
        s_add_u32 s66, s66, s67
        s_add_u32 s66, s66, {H3B}
        """)
        self.wait_flag(F_WOB, 1, sleep=4)
        self.read_w_lds(LW2, PA)
        S = KREG
        a(f"""s_and_b32 s67, s2, 7
        s_lshl_b32 s67, s67, 2
        s_lshr_b32 s65, s{S_J}, 1
        s_add_u32 s67, s67, s65
        s_lshl_b32 s67, s67, 7
        s_add_u32 s67, s67, {FL_H3B}""")
        self.sgate("s67", 16, sleep=self.o.get("gsleep", 3))
        lp = a.newlabel("h3b")
        a.label(lp)
        a(f"""buffer_load_dwordx4 v[{S}:{S+3}], v{t}, {WS}, s64 offen sc1
        buffer_load_dwordx4 v[{S+4}:{S+7}], v{t}, {WS}, s68 offen sc1""")
        for b in range(2):
            for k in range(4):
                r = SA + 16*b + 4*k
                a(f"s_add_u32 s67, s66, {b*262144 + (k//2)*4096}")
                a(f"buffer_load_dwordx4 v[{r}:{r+3}], v{t+2}, {WS}, s67 offen offset:{(k%2)*2048} sc1")
        a("s_waitcnt vmcnt(8)")
        W = S + 8
        for b in range(2):
            m, l, w, L = S + 4*b, S + 2 + 4*b, W + b, W + 2 + b
            a(f"""v_mov_b32 v{W+4}, v{m}
            s_nop 1
            v_max_f32_dpp v{W+4}, v{W+4}, v{W+4} quad_perm:[1,0,3,2] row_mask:0xf bank_mask:0xf
            s_nop 1
            v_max_f32_dpp v{W+4}, v{W+4}, v{W+4} quad_perm:[2,3,0,1] row_mask:0xf bank_mask:0xf""")
            self.xrow_reduce("v_max_f32", W+4, W+5)
            a(f"""v_sub_f32 v{w}, v{m}, v{W+4}
            v_exp_f32 v{w}, v{w}
            s_nop 0
            v_mul_f32 v{L}, v{w}, v{l}
            s_nop 1
            v_add_f32_dpp v{L}, v{L}, v{L} quad_perm:[1,0,3,2] row_mask:0xf bank_mask:0xf
            s_nop 1
            v_add_f32_dpp v{L}, v{L}, v{L} quad_perm:[2,3,0,1] row_mask:0xf bank_mask:0xf""")
            self.xrow_reduce("v_add_f32", L, W+5)
            a(f"v_cvt_pk_bf16_f32 v{w}, v{w}, v{w}")
        a("s_waitcnt vmcnt(0)")
        words = [S+1, S+3, S+5, S+7]
        for q in range(8): words += [SA + 4*q + 1, SA + 4*q + 3]
        self.tagcheck(words, t+1, lp)
        self.stamp(9)
        for q in range(8): a(f"v_mov_b32 v{SA+4*q+1}, v{SA+4*q+2}")
        first = True
        for b in range(2):
            for k in range(4):
                r = SA + 16*b + 4*k
                A = A0 + 2*(k % 2)
                a(f"""v_mov_b32_dpp v{W+6}, v{W+b} quad_perm:[{k},{k},{k},{k}] row_mask:0xf bank_mask:0xf
                s_nop 0
                v_and_b32 v{A}, v{W+6}, v{MSK[b][0]}
                v_and_b32 v{A+1}, v{W+6}, v{MSK[b][1]}
                s_nop 1""")
                c = "0" if first else f"v[{ACC}:{ACC+3}]"
                first = False
                a(f"v_mfma_f32_16x16x16_bf16 v[{ACC}:{ACC+3}], v[{A}:{A+1}], v[{r}:{r+1}], {c}")
        a(f"""
        v_cmp_eq_u32 vcc, 1, v{V_G}
        s_nop 1
        v_cndmask_b32 v{W+2}, v{W+2}, v{W+3}, vcc
        v_rcp_f32 v{W+2}, v{W+2}
        s_nop 7
        """)
        for r in range(4): a(f"v_mul_f32 v{ACC+r}, v{W+2}, v{ACC+r}")
        a(f"""
        v_cvt_pk_bf16_f32 v{t+4}, v{ACC}, v{ACC+1}
        v_cvt_pk_bf16_f32 v{t+5}, v{ACC+2}, v{ACC+3}
        v_lshlrev_b32 v{t+6}, 7, v{V_G}
        v_lshl_add_u32 v{t+6}, v{V_J16}, 3, v{t+6}
        v_add_u32 v{t+6}, {VEC1}, v{t+6}
        v_cmp_gt_u32 vcc, 32, v{V_LANE}
        s_and_saveexec_b64 s[70:71], vcc
        ds_write_b64 v{t+6}, v[{t+4}:{t+5}]
        s_mov_b64 exec, s[70:71]
        """)
        self.vec_to_x(VEC1, X)
        self.diag_mfma(X, PA, ACC, A0, A1)
        a(f"""s_lshl_b32 s67, s72, 1
        s_add_u32 s67, s67, s73""")
        self.publish_h5(ACC, 1, "s67")
        self.stamp(10)
        self.dump_stamps()
        a("s_branch .Lend")

    def late_dma_issue(self, srdsgpr, srdbase, nbytes, rowstride_log2, s_off, ldsbase, vreg):
        a = self.a
        self.srd(srdsgpr, srdbase, nbytes)
        a(f"""v_lshlrev_b32 v{vreg}, {rowstride_log2 + 4}, v{V_G}
        v_lshl_add_u32 v{vreg}, v{V_J16}, 4, v{vreg}
        s_mov_b32 s67, {s_off}""")
        for k in range(16):
            a(f"s_mov_b32 m0, {ldsbase + k*1024}")
            a(f"s_nop 0")
            a(f"buffer_load_dwordx4 v{vreg}, s[{srdsgpr}:{srdsgpr+3}], s67 offen nt lds")
            if k < 15: a(f"s_add_u32 s67, s67, {1 << rowstride_log2}")

    def tail_w2(self):
        a = self.a
        t = T0
        a.label(".Lt2")
        a(f"""s_lshl_b32 s66, s{S_J}, 19
        s_lshl_b32 s65, s{S_H}, 8
        s_add_u32 s66, s66, s65""")
        if not self.o.get("wuv_early", 0):
            self.late_dma_issue(52, 24, 4194304, 13, "s66", LW0, t)
            self.set_flag(F_WUVI)
            a("s_waitcnt vmcnt(0)")
        else:
            a("s_waitcnt vmcnt(2)")
        self.set_flag(F_WUV)
        self.stamp_w2(9)
        if self.o.get("wogate3", 1): self.wait_flag(F_G3, 1, sleep=1)
        a(f"""s_lshl_b32 s66, s{S_H}, 17
        s_lshr_b32 s65, s{S_J}, 2
        s_lshl_b32 s65, s65, 16
        s_add_u32 s68, s65, s66
        s_and_b32 s65, s{S_J}, 3
        s_lshl_b32 s65, s65, 8
        s_add_u32 s68, s68, s65
        s_sub_u32 s69, s68, s66""")
        self.late_dma_issue(52, 26, 4194304, 10, "s68", LW1, t)
        self.hqB("s72", "s73")
        a(f"""s_lshl_b32 s66, s72, 17
        s_add_u32 s66, s66, s69""")
        self.late_dma_issue(56, 36, 4194304, 10, "s66", LW2, t+1)
        a("s_waitcnt vmcnt(16)")
        self.set_flag(F_WO)
        a("s_waitcnt vmcnt(0)")
        self.set_flag(F_WOB)
        self.stamp_w2(10)
        a(f"""s_cmp_ge_u32 s2, 128
        s_cbranch_scc1 .Lt2end
        s_lshl_b32 s64, s2, 12
        s_add_u32 s64, s64, {H5}
        v_lshlrev_b32 v{t}, 6, v{V_J16}
        v_lshl_add_u32 v{t}, v{V_G}, 4, v{t}
        """)
        a(f"""s_lshr_b32 s67, s2, 3
        s_lshl_b32 s67, s67, 7
        s_add_u32 s67, s67, {FL_H5}""")
        self.sgate("s67", 16, sleep=self.o.get("gsleep", 3))
        lp = a.newlabel("h5")
        a.label(lp)
        for u in range(4):
            a(f"buffer_load_dwordx4 v[{SA+4*u}:{SA+4*u+3}], v{t}, {WS}, s64 offen offset:{1024*u} sc1")
        a("s_waitcnt vmcnt(0)")
        words = []
        for q in range(4): words += [SA + 4*q + 1, SA + 4*q + 3]
        self.tagcheck(words, t+1, lp, sleep=1)
        self.stamp_w2(11)
        for u in range(4):
            r = SA + 4*u
            a(f"""v_lshlrev_b32 v{t+4}, 16, v{r}
            v_and_b32 v{t+5}, 0xffff0000, v{r}
            v_lshlrev_b32 v{t+6}, 16, v{r+2}
            v_and_b32 v{t+7}, 0xffff0000, v{r+2}""")
            for k in range(4):
                if u == 0: a(f"v_mov_b32 v{ACC+k}, v{t+4+k}")
                else: a(f"v_add_f32 v{ACC+k}, v{ACC+k}, v{t+4+k}")
        for sh in (8, 4, 2, 1):
            a("s_nop 1")
            for k in range(4):
                a(f"v_add_f32_dpp v{ACC+k}, v{ACC+k}, v{ACC+k} row_ror:{sh} row_mask:0xf bank_mask:0xf")
        a(f"""
        v_cvt_pk_bf16_f32 v{t+4}, v{ACC}, v{ACC+1}
        v_cvt_pk_bf16_f32 v{t+5}, v{ACC+2}, v{ACC+3}
        s_and_b32 s65, s2, 15
        s_lshr_b32 s66, s65, 2
        s_lshr_b32 s67, s66, 1
        s_lshl_b32 s67, s67, 11
        s_lshr_b32 s68, s2, 6
        s_lshl_b32 s68, s68, 10
        s_add_u32 s67, s67, s68
        s_bfe_u32 s68, s2, 0x20004
        s_lshl_b32 s68, s68, 8
        s_add_u32 s67, s67, s68
        s_and_b32 s68, s66, 1
        s_lshl_b32 s68, s68, 3
        s_add_u32 s67, s67, s68
        s_and_b32 s68, s65, 3
        s_lshl_b32 s68, s68, 6
        s_add_u32 s67, s67, s68
        v_lshlrev_b32 v{t+1}, 4, v{V_G}
        """)
        self.srd(56, 38, 4096)
        a(f"""
        v_cmp_eq_u32 vcc, 0, v{V_J16}
        s_and_saveexec_b64 s[70:71], vcc
        buffer_store_dwordx2 v[{t+4}:{t+5}], v{t+1}, s[56:59], s67 offen
        s_mov_b64 exec, s[70:71]
        s_cmp_lg_u32 s2, 0
        s_cbranch_scc1 .Lt2end
        v_mov_b32 v{t+1}, 0
        v_mov_b32 v{t+2}, s{S_TAG}
        s_mov_b64 exec, 1
        buffer_store_dword v{t+2}, v{t+1}, {WS}, 0 offen
        s_mov_b64 exec, -1
        """)
        a.label(".Lt2end")
        self.stamp_w2(12)
        self.dump_stamps()
        a("s_branch .Lend")

    def tail_w3(self):
        a = self.a
        t = T0
        m = M0_
        a.label(".Lt3")
        a(f"""
        v_lshlrev_b32 v{t}, 5, v{V_J16}
        v_add_u32 v{t}, {LBUF}, v{t}
        ds_read_b128 v[{QB}:{QB+3}], v{t}
        ds_read_b128 v[{QB+4}:{QB+7}], v{t} offset:16
        s_waitcnt lgkmcnt(0)
        v_add_f32 v{QB}, v{QB}, v{QB+1}
        v_add_f32 v{QB+2}, v{QB+2}, v{QB+3}
        v_add_f32 v{QB+4}, v{QB+4}, v{QB+5}
        v_add_f32 v{QB+6}, v{QB+6}, v{QB+7}
        v_add_f32 v{QB}, v{QB}, v{QB+2}
        v_add_f32 v{QB+4}, v{QB+4}, v{QB+6}
        v_add_f32 v{t+6}, v{QB}, v{QB+4}
        v_mov_b32 v{t+4}, v{m}
        v_mov_b32 v{t+5}, s{S_TAG}
        v_mov_b32 v{t+7}, s{S_TAG}
        v_lshlrev_b32 v{t}, 11, v{V_J16}
        s_lshl_b32 s64, s{S_AHALF}, 15
        s_lshl_b32 s65, s{S_AB}, 10
        s_add_u32 s64, s64, s65
        s_lshl_b32 s65, s{S_AS}, 4
        s_add_u32 s64, s64, s65
        s_add_u32 s64, s64, {H3S}
        v_cmp_gt_u32 vcc, 16, v{V_LANE}
        s_and_saveexec_b64 s[70:71], vcc
        buffer_store_dwordx4 v[{t+4}:{t+7}], v{t}, {WS}, s64 offen sc1
        s_mov_b64 exec, s[70:71]
        s_lshl_b32 s64, s{S_AHALF}, 11
        s_lshl_b32 s65, s{S_AB}, 5
        s_add_u32 s64, s64, s65
        s_lshr_b32 s65, s{S_AS}, 3
        s_lshl_b32 s65, s65, 2
        s_add_u32 s64, s64, s65
        s_add_u32 s64, s64, {FL_H3}
        s_and_b32 s65, s{S_AS}, 7
        """)
        self.pub_flag("s64", cond="s_cmp_eq_u32 s65, 5", nrep=16)
        self.stamp(9)
        self.dump_stamps()
        a("s_branch .Lend")

    def tail_w47(self):
        a = self.a
        t = T0
        a.label(".Lt47")
        a(f"s_sub_u32 s72, s{S_WAVE}, 4")
        VR = VREG
        self.wait_flag(self.o.get("vgate0", F_WUVI), 1, sleep=1)
        self.v_loads()
        self.stamp(9)
        self.wait_flag(F_QB, 4)
        QF = SA + 32
        a(f"""v_and_b32 v{t+1}, 3, v{V_J16}
        v_lshlrev_b32 v{t+1}, 8, v{t+1}
        v_lshl_add_u32 v{t+1}, v{V_G}, 4, v{t+1}
        v_add_u32 v{t+1}, {QBL}, v{t+1}""")
        for s in range(4):
            a(f"ds_read_b128 v[{QF+4*s}:{QF+4*s+3}], v{t+1} offset:{64*s}")
        a("s_waitcnt lgkmcnt(0) vmcnt(8)")
        SB = SA + 48
        for s in range(4):
            for tau in range(2):
                c = "0" if s == 0 else f"v[{SB+4*tau}:{SB+4*tau+3}]"
                a(f"v_mfma_f32_16x16x32_bf16 v[{SB+4*tau}:{SB+4*tau+3}], v[{KREG+16*tau+4*s}:{KREG+16*tau+4*s+3}], v[{QF+4*s}:{QF+4*s+3}], {c}")
        m = M0_
        a(f"""s_nop 7
        s_nop 1
        v_max3_f32 v{m}, v{SB}, v{SB+1}, v{SB+2}
        v_max3_f32 v{m}, v{m}, v{SB+3}, v{SB+4}
        v_max3_f32 v{m}, v{m}, v{SB+5}, v{SB+6}
        v_max_f32 v{m}, v{m}, v{SB+7}""")
        self.xrow_reduce("v_max_f32", m, m+2)
        for r in range(8): a(f"v_sub_f32 v{SB+r}, v{SB+r}, v{m}")
        for r in range(8): a(f"v_exp_f32 v{SB+r}, v{SB+r}")
        a(f"""s_nop 0
        v_add_f32 v{m+1}, v{SB}, v{SB+1}
        v_add_f32 v{m+2}, v{SB+2}, v{SB+3}
        v_add_f32 v{m+3}, v{SB+4}, v{SB+5}
        v_add_f32 v{m+4}, v{SB+6}, v{SB+7}
        v_add_f32 v{m+1}, v{m+1}, v{m+2}
        v_add_f32 v{m+3}, v{m+3}, v{m+4}
        v_add_f32 v{m+1}, v{m+1}, v{m+3}
        v_cvt_pk_bf16_f32 v{m+4}, v{SB}, v{SB+1}
        v_cvt_pk_bf16_f32 v{m+5}, v{SB+2}, v{SB+3}
        v_cvt_pk_bf16_f32 v{m+6}, v{SB+4}, v{SB+5}
        v_cvt_pk_bf16_f32 v{m+7}, v{SB+6}, v{SB+7}
        s_lshl_b32 s65, s72, 8
        s_add_u32 s65, s65, {PBL}
        v_lshlrev_b32 v{t+1}, 6, v{V_J16}
        v_lshl_add_u32 v{t+1}, v{V_G}, 3, v{t+1}
        v_add_u32 v{t+1}, s65, v{t+1}
        v_cmp_gt_u32 vcc, 4, v{V_J16}
        s_and_saveexec_b64 s[70:71], vcc
        ds_write_b64 v{t+1}, v[{m+4}:{m+5}]
        ds_write_b64 v{t+1}, v[{m+6}:{m+7}] offset:32
        s_mov_b64 exec, s[70:71]
        """)
        self.xrow_reduce("v_add_f32", m+1, m+2)
        PX = QB
        a(f"""
        v_lshrrev_b32 v{t+1}, 3, v{V_J16}
        v_lshlrev_b32 v{t+1}, 6, v{t+1}
        v_lshl_add_u32 v{t+1}, v{V_G}, 4, v{t+1}
        v_add_u32 v{t+1}, s65, v{t+1}
        s_waitcnt lgkmcnt(0)
        ds_read_b128 v[{PX}:{PX+3}], v{t+1}
        ds_read_b128 v[{PX+4}:{PX+7}], v{t+1} offset:128
        s_waitcnt lgkmcnt(0)
        """)
        self.stamp(10)

        sets = [QB+8, QB+12, QB+16, QB+20]
        OA = SA
        def perms(k, hp):
            A = sets[(2*k + hp) % 4]
            for kk in range(4):
                a(f"v_perm_b32 v{A+kk}, v{PX+4*hp+k//2}, v{PX+4*hp+k//2}, v{SEL[k%2][kk]}")
        perms(0, 0); perms(0, 1)
        for k in range(8):
            a(f"s_waitcnt vmcnt({7-k})")
            for hp in range(2):
                A = sets[(2*k + hp) % 4]
                c = "0" if k == 0 else f"v[{OA+4*hp}:{OA+4*hp+3}]"
                if k == 0 and hp == 0: a("s_nop 1")
                a(f"v_mfma_f32_16x16x32_bf16 v[{OA+4*hp}:{OA+4*hp+3}], v[{A}:{A+3}], v[{VR+4*k}:{VR+4*k+3}], {c}")
                if k + 1 < 8: perms(k + 1, hp)
                else: a("s_nop 1")
        a(f"""s_nop 7
        s_nop 1
        s_lshl_b32 s65, s72, 11
        s_add_u32 s65, s65, {OBL}
        v_lshlrev_b32 v{t+1}, 4, v{V_LANE}
        v_add_u32 v{t+1}, s65, v{t+1}
        ds_write_b128 v{t+1}, v[{OA}:{OA+3}]
        ds_write_b128 v{t+1}, v[{OA+4}:{OA+7}] offset:1024
        s_lshl_b32 s65, s72, 5
        s_add_u32 s65, s65, {OBS}
        v_lshlrev_b32 v{t+1}, 3, v{V_J16}
        v_add_u32 v{t+1}, s65, v{t+1}
        v_cmp_gt_u32 vcc, 4, v{V_LANE}
        s_and_saveexec_b64 s[70:71], vcc
        ds_write_b64 v{t+1}, v[{m}:{m+1}]
        s_mov_b64 exec, s[70:71]
        s_waitcnt lgkmcnt(0)
        v_mov_b32 v{t+1}, {FLAGS + 4*F_BARR}
        v_mov_b32 v{t+2}, 1
        s_mov_b64 exec, 1
        ds_add_rtn_u32 v{t+3}, v{t+1}, v{t+2}
        s_waitcnt lgkmcnt(0)
        s_mov_b64 exec, -1
        v_readfirstlane_b32 s65, v{t+3}
        s_nop 1
        s_cmp_lg_u32 s65, 3
        s_cbranch_scc1 .Lt47end
        """)
        a(f"""
        v_lshlrev_b32 v{t+1}, 4, v{V_LANE}
        v_add_u32 v{t+1}, {OBL}, v{t+1}
        v_lshrrev_b32 v{t+2}, 1, v{V_G}
        v_lshlrev_b32 v{t+2}, 3, v{t+2}
        v_add_u32 v{t+2}, {OBS}, v{t+2}
        """)
        OZ = SA
        ST = SA + 32
        for z in range(4):
            for hp in range(2):
                a(f"ds_read_b128 v[{OZ+8*z+4*hp}:{OZ+8*z+4*hp+3}], v{t+1} offset:{z*2048+hp*1024}")
        a("s_waitcnt lgkmcnt(4)")
        for z in range(4):
            for hp in range(2):
                a(f"ds_read_b64 v[{ST+4*z+2*hp}:{ST+4*z+2*hp+1}], v{t+2} offset:{z*32+hp*16}")
        a("s_waitcnt lgkmcnt(0)")
        F = SA + 48
        for hp in range(2):
            ms = [ST+4*z+2*hp for z in range(4)]
            a(f"v_max3_f32 v{F}, v{ms[0]}, v{ms[1]}, v{ms[2]}")
            a(f"v_max_f32 v{F}, v{F}, v{ms[3]}")
            for z in range(4): a(f"v_sub_f32 v{F+1+z}, v{ms[z]}, v{F}")
            for z in range(4): a(f"v_exp_f32 v{F+1+z}, v{F+1+z}")
            a("s_nop 0")
            a(f"v_mul_f32 v{F+5}, v{F+1}, v{ms[0]+1}")
            for z in range(1, 4): a(f"v_fmac_f32 v{F+5}, v{F+1+z}, v{ms[z]+1}")
            for r in range(4):
                a(f"v_mul_f32 v{F+6+r}, v{F+1}, v{OZ+4*hp+r}")
                for z in range(1, 4):
                    a(f"v_fmac_f32 v{F+6+r}, v{F+1+z}, v{OZ+8*z+4*hp+r}")
            q = QB + 8*hp
            a(f"""v_cvt_pk_bf16_f32 v{q}, v{F+6}, v{F+7}
            v_cvt_pk_bf16_f32 v{q+2}, v{F+8}, v{F+9}
            v_mov_b32 v{q+1}, s{S_TAG}
            v_mov_b32 v{q+3}, s{S_TAG}
            v_mov_b32 v{q+4}, v{F}
            v_mov_b32 v{q+5}, s{S_TAG}
            v_mov_b32 v{q+6}, v{F+5}
            v_mov_b32 v{q+7}, s{S_TAG}""")
        a(f"""
        s_lshr_b32 s64, s2, 7
        s_lshl_b32 s64, s64, 5
        s_and_b32 s65, s2, 7
        s_lshl_b32 s65, s65, 2
        s_add_u32 s64, s64, s65
        s_lshl_b32 s64, s64, 4
        s_bfe_u32 s65, s2, 0x40003
        s_add_u32 s64, s64, s65
        s_lshl_b32 s66, s64, 9
        s_add_u32 s66, s66, {H3B}
        s_add_u32 s67, s66, 16384
        s_lshl_b32 s68, s64, 4
        s_add_u32 s68, s68, {H3BS}
        v_lshrrev_b32 v{t+1}, 1, v{V_G}
        v_lshlrev_b32 v{t+2}, 13, v{t+1}
        v_lshl_add_u32 v{t+2}, v{V_J16}, 5, v{t+2}
        v_and_b32 v{t+3}, 1, v{V_G}
        v_lshl_add_u32 v{t+2}, v{t+3}, 4, v{t+2}
        buffer_store_dwordx4 v[{QB}:{QB+3}], v{t+2}, {WS}, s66 offen sc1
        buffer_store_dwordx4 v[{QB+8}:{QB+11}], v{t+2}, {WS}, s67 offen sc1
        v_lshlrev_b32 v{t+1}, 8, v{t+1}
        v_and_b32 v{t+3}, 31, v{V_LANE}
        v_cmp_eq_u32 vcc, 0, v{t+3}
        s_and_saveexec_b64 s[70:71], vcc
        buffer_store_dwordx4 v[{QB+4}:{QB+7}], v{t+1}, {WS}, s68 offen sc1
        buffer_store_dwordx4 v[{QB+12}:{QB+15}], v{t+1}, {WS}, s68 offen offset:512 sc1
        s_mov_b64 exec, s[70:71]
        s_and_b32 s64, s2, 7
        s_lshl_b32 s64, s64, 9
        s_lshr_b32 s65, s2, 7
        s_lshl_b32 s65, s65, 5
        s_add_u32 s64, s64, s65
        s_bfe_u32 s65, s2, 0x30004
        s_lshl_b32 s65, s65, 2
        s_add_u32 s64, s64, s65
        s_add_u32 s64, s64, {FL_H3B}
        """)
        self.pub_flag("s64", cond="s_bitcmp1_b32 s2, 3", nrep=4)
        a.label(".Lt47end")
        self.stamp(11)
        self.dump_stamps()
        a("s_branch .Lend")

    def build(self):
        a = self.a
        name = KNAME + "_kernel"
        a.raw(HEADER.rstrip())
        a.raw(f"; @launch grid=(256,1,1) block=(512,1,1) lds={LDS_TOTAL}")
        a.raw('.amdgcn_target "amdgcn-amd-amdhsa--gfx950"')
        kernel_begin(a, name)
        self.prologue()
        self.w0_front()
        self.w1_front()
        self.w2_front()
        self.w3_front()
        self.w47_front()
        self.attn()
        self.tail_w0()
        self.tail_w1()
        self.tail_w2()
        self.tail_w3()
        self.tail_w47()
        a.label(".Lend")
        a("s_endpgm")
        return a.text() + kernel_desc(name, 256, 102, 256)

if __name__ == "__main__":
    import argparse
    ap = argparse.ArgumentParser()
    ap.add_argument("-o", default="k2.s")
    ap.add_argument("--diag", action="store_true")
    ap.add_argument("--depth", type=int, default=24)
    ap.add_argument("--ldepth", type=int, default=4)
    ap.add_argument("--opt", action="append", default=[])
    args = ap.parse_args()
    opts = {k: int(v) for k, v in (x.split("=") for x in args.opt)}
    open(args.o, "w").write(G(diag=args.diag, depth=args.depth, ldepth=args.ldepth, opts=opts).build())
```

```python
import sys, struct
from asmlib import *

H1A  = 0x040000
H1B  = 0x080000
H2   = 0x0C0000
H4   = 0x100000
H3B  = 0x140000
H3BS = 0x1C0000
H3S  = 0x1C8000
H5   = 0x200000
H3   = 0x400000
FL    = 0x010000
FL_H1A = FL
FL_H4  = FL + 32*128
FL_H2  = FL + 64*128
FL_H3  = FL + 96*128
FL_H3B = FL + 128*128
FL_H5  = FL + 160*128
FL_H1B = FL + 192*128
LOC = 0x800000
STAMP = 0x1000000
CKV   = 0x00000
LK, LV = 0x0000, 0x8000
LW0, LW1, LW2 = 0x10000, 0x14000, 0x18000
QABS  = 0x20000
PBUF  = 0x24000
MAXB  = 0x25000
LBUF  = 0x25200
FLAGS = 0x25400
VEC0  = 0x25500
VEC1  = 0x25600
OBS   = 0x25700
QBL   = 0x25800
PBL   = 0x25C00
OBL   = 0x26000
LDS_TOTAL = 0x28000
F_LANDED, F_QABS, F_CLR, F_QB, F_BARR, F_WUV, F_WO, F_WOB, F_G3, F_QPUB, F_ISSUED, F_G4, F_G2, F_G1, F_G2I, F_REL0, F_REL1, F_REL2, F_G1D = range(19)

TAGC = 0x9E3779B9
CSF = (128 ** -0.5) * 1.4426950408889634
CS = struct.unpack("<I", struct.pack("<f", CSF))[0]

def Lsw(i):
    return (i & 1) | ((i & 2) << 2) | ((i & 4) >> 1) | ((i & 8) >> 1)

S_WAVE = 3
S_TAG, S_H, S_J, S_SPIN = 44, 45, 46, 47
WS = "s[48:51]"
S_V = 62
S_LAND = 63
S_AB, S_AS, S_AHALF = 74, 75, 76
S_KOFF = 79
V_LANE, V_J16, V_G = 1, 2, 3
SEL = [[4, 5, 6, 7], [8, 9, 10, 11]]
MSK = [[12, 13], [14, 15]]
AD_SA, AD_QB, AD_TRL, AD_TRH = 16, 20, 24, 28
T0 = 32
KREG = 48
SA = 80
PA = 144
VREG = 176
QB = 208
ACC = 240
M0_ = 244
V_ST = 255
WAVE2TILE = [7, 4, 0, 1, 2, 3, 5, 6]

class G:
    def __init__(self, diag=False, depth=24, spin_lim=200000, ldepth=4, opts=None):
        self.a = Asm()
        self.diag = diag
        self.depth = depth
        self.ldepth = ldepth
        self.spin_lim = spin_lim
        self.o = dict(kdelay=128, wqdelay=16, clrdelay=0)
        if opts: self.o.update(opts)
    def stamp(self, k):
        if self.diag:
            assert k < 16
            self.a(f"""s_memrealtime s[100:101]
            s_waitcnt lgkmcnt(0)
            v_writelane_b32 v{V_ST}, s100, {k}""")
    def stamp_w2(self, k):
        if not self.o.get('ldstamps'): self.stamp(k)
    def dump_stamps(self, n=16):
        a = self.a
        if not self.diag: return
        a(f"""s_lshl_b32 s64, s2, 3
        s_add_u32 s64, s64, s{S_WAVE}
        s_lshl_b32 s64, s64, 6
        s_add_u32 s64, s64, {STAMP}
        v_lshlrev_b32 v33, 2, v{V_LANE}
        s_mov_b64 exec, 0xffff
        buffer_store_dword v{V_ST}, v33, {WS}, s64 offen
        s_mov_b64 exec, -1""")
    def srd(self, s, base, nbytes):
        srd(self.a, s, base, base + 1, nbytes)
    def spin_fail(self, retry):
        a = self.a
        a(f"""s_add_u32 s{S_SPIN}, s{S_SPIN}, 1
        s_cmp_lt_u32 s{S_SPIN}, {self.spin_lim}
        s_cbranch_scc1 {retry}
        s_branch .Lend""")
    def wait_flag(self, idx, target, vt=T0+14, va=T0+15, dst="s65", sleep=0):
        a = self.a
        lp = a.newlabel("wf"); ok = a.newlabel("wfok")
        a(f"v_mov_b32 v{va}, {FLAGS + 4*idx}")
        a.label(lp)
        a(f"""ds_read_b32 v{vt}, v{va}
        s_waitcnt lgkmcnt(0)
        v_readfirstlane_b32 {dst}, v{vt}
        s_nop 1
        s_cmp_ge_u32 {dst}, {target}
        s_cbranch_scc1 {ok}""")
        if sleep: a(f"s_sleep {sleep}")
        self.spin_fail(lp)
        a.label(ok)
    def wait_landed(self, target):
        a = self.a
        sk = a.newlabel("wl")
        a(f"""s_cmp_ge_u32 s{S_LAND}, {target}
        s_cbranch_scc1 {sk}""")
        self.wait_flag(F_LANDED, target, dst=f"s{S_LAND}")
        a.label(sk)
    def set_flag(self, idx, val=1, vt=T0+14, va=T0+15, add=False):
        a = self.a
        a(f"v_mov_b32 v{va}, {FLAGS + 4*idx}")
        a(f"v_mov_b32 v{vt}, {val}")
        if add:
            a("s_mov_b64 exec, 1")
            a(f"ds_add_u32 v{va}, v{vt}")
            a("s_mov_b64 exec, -1")
        else:
            a(f"ds_write_b32 v{va}, v{vt}")
    def load_tag(self):
        self.a(f"s_load_dword s{S_TAG}, s[42:43], 0")
    def get_tag(self):
        self.a(f"""s_waitcnt lgkmcnt(0)
        s_add_u32 s{S_TAG}, s{S_TAG}, {TAGC}""")
    def poll_light(self, voff, soff, nlanes, sleep=2, vd=T0+12):
        a = self.a
        lp = a.newlabel("pl"); ok = a.newlabel("plok")
        a(f"""v_cmp_gt_u32 vcc, {nlanes}, v{V_LANE}
        s_and_saveexec_b64 s[70:71], vcc""")
        a.label(lp)
        a(f"""buffer_load_dwordx2 v[{vd}:{vd+1}], v{voff}, {WS}, {soff} offen sc1
        s_waitcnt vmcnt(0)
        v_cmp_ne_u32 vcc, s{S_TAG}, v{vd+1}
        s_nop 1
        s_cbranch_vccz {ok}""")
        if sleep: a(f"s_sleep {sleep}")
        self.spin_fail(lp)
        a.label(ok)
        a("s_mov_b64 exec, s[70:71]")
    def sgate(self, s_off, n, lim=None, sleep=2):
        a = self.a
        lim = lim or self.o.get("sgate_lim", 4000)
        assert n in (8, 16)
        B = 80
        a(f"""s_add_u32 s60, s42, {s_off}
        s_addc_u32 s61, s43, 0
        s_mov_b32 s65, 0""")
        lp = a.newlabel("sg"); ok = a.newlabel("sgok"); rt = a.newlabel("sgrt")
        a.label(lp)
        a(f"s_load_dwordx{n} s[{B}:{B+n-1}], s[60:61], 0 glc")
        a("s_waitcnt lgkmcnt(0)")
        for i in range(n):
            a(f"s_cmp_lg_u32 s{B+i}, s{S_TAG}")
            a(f"s_cbranch_scc1 {rt}")
        a(f"s_branch {ok}")
        a.label(rt)
        a(f"""s_sleep {sleep}
        s_add_u32 s65, s65, 1
        s_cmp_lt_u32 s65, {lim}
        s_cbranch_scc1 {lp}""")
        a.label(ok)
    def pub_flag(self, s_off, cond=None, nrep=1, vt=T0+14, va=T0+15):
        a = self.a
        sk = a.newlabel("pf")
        if cond:
            a(cond)
            a(f"s_cbranch_scc0 {sk}")
        a(f"""v_lshlrev_b32 v{va}, 7, v{V_LANE}
        v_mov_b32 v{vt}, s{S_TAG}
        s_mov_b64 exec, {(1 << nrep) - 1}
        buffer_store_dword v{vt}, v{va}, {WS}, {s_off} offen sc1
        s_mov_b64 exec, -1""")
        a.label(sk)
    def tagcheck(self, words, acc, retry, sleep=2, onfail=None):
        a = self.a
        a(f"v_xor_b32 v{acc}, s{S_TAG}, v{words[0]}")
        for w in words[1:]:
            a(f"v_bitop3_b32 v{acc}, v{acc}, v{w}, s{S_TAG} bitop3:0xf6")
        ok = a.newlabel("tok")
        a(f"""v_cmp_ne_u32 vcc, 0, v{acc}
        s_nop 1
        s_cbranch_vccz {ok}""")
        if onfail: onfail()
        else:
            if sleep: a(f"s_sleep {sleep}")
            self.spin_fail(retry)
        a.label(ok)
    def xrow_reduce(self, op, x, tmp, steps=(16, 32)):
        a = self.a
        for st in steps:
            a(f"""v_mov_b32 v{tmp}, v{x}
            s_nop 1
            v_permlane{st}_swap_b32 v{x}, v{tmp}
            s_nop 1
            {op} v{x}, v{x}, v{tmp}""")
    def diag_mfma(self, X, W, acc, A0, A1, n=16, pre=None):
        a = self.a
        def perms(t):
            A = A0 if t % 2 == 0 else A1
            for k in range(4):
                a(f"v_perm_b32 v{A+k}, v{X + t//2}, v{X + t//2}, v{SEL[t%2][k]}")
        perms(0)
        for t in range(n):
            A = A0 if t % 2 == 0 else A1
            if t + 1 < n: perms(t + 1)
            else: a("s_nop 1")
            if pre: pre(t)
            c = "0" if t == 0 else f"v[{acc}:{acc+3}]"
            a(f"v_mfma_f32_16x16x32_bf16 v[{acc}:{acc+3}], v[{A}:{A+3}], v[{W+4*t}:{W+4*t+3}], {c}")
    def publish_granule(self, acc, q, voff, soff, local=False):
        a = self.a
        a("s_nop 7")
        a("s_nop 1")
        a(f"""v_cvt_pk_bf16_f32 v{q}, v{acc}, v{acc+1}
        v_cvt_pk_bf16_f32 v{q+2}, v{acc+2}, v{acc+3}
        v_mov_b32 v{q+1}, s{S_TAG}
        v_mov_b32 v{q+3}, s{S_TAG}""")
        if local:
            a(f"""s_add_u32 s69, {soff}, {LOC}
            buffer_store_dwordx4 v[{q}:{q+3}], v{voff}, {WS}, s69 offen""")
        a(f"buffer_store_dwordx4 v[{q}:{q+3}], v{voff}, {WS}, {soff} offen sc1")
    def poll_switch(self, sregs, retry, cnt="s69", after=3, sleep=0):
        a = self.a
        sk = a.newlabel("psw")
        a(f"""s_add_u32 {cnt}, {cnt}, 1
        s_cmp_lg_u32 {cnt}, {after}
        s_cbranch_scc1 {sk}""")
        for r in sregs: a(f"s_sub_u32 {r}, {r}, {LOC}")
        a.label(sk)
        if sleep: a(f"s_sleep {sleep}")
        self.spin_fail(retry)
    def lsb_pat(self, dst, vidx, tmp):
        a = self.a
        a(f"""v_lshlrev_b32 v{tmp}, 3, v{vidx}
        v_lshrrev_b32 v{tmp}, v{tmp}, s{S_TAG}""") if False else None
        a(f"""v_lshlrev_b32 v{tmp}, 3, v{vidx}
        v_mov_b32 v{tmp+1}, s{S_TAG}
        v_lshrrev_b32 v{tmp}, v{tmp}, v{tmp+1}""")
        for i in range(4):
            a(f"""v_bfe_u32 v{dst+i}, v{tmp}, {2*i}, 1
            v_bfe_u32 v{tmp+1}, v{tmp}, {2*i+1}, 1
            v_lshl_or_b32 v{dst+i}, v{tmp+1}, 16, v{dst+i}""")
    def gran_voff(self, v, tmp):
        a = self.a
        a(f"""v_lshrrev_b32 v{v}, 1, v{V_G}
        v_lshlrev_b32 v{v}, 9, v{v}
        v_lshl_add_u32 v{v}, v{V_J16}, 5, v{v}
        v_and_b32 v{tmp}, 1, v{V_G}
        v_lshl_add_u32 v{v}, v{tmp}, 4, v{v}""")
    def hqB(self, dst, tmp):
        self.a(f"""s_and_b32 {dst}, s2, 7
        s_lshl_b32 {dst}, {dst}, 2
        s_bfe_u32 {tmp}, s2, 0x20003
        s_add_u32 {dst}, {dst}, {tmp}""")

    def prologue(self):
        a = self.a
        t = T0
        a(f"""
        s_cmp_ge_u32 s2, 256
        s_cbranch_scc1 .Lend
        s_load_dwordx16 s[16:31], s[0:1], 0
        s_load_dwordx8 s[32:39], s[0:1], 64
        s_load_dwordx4 s[40:43], s[0:1], 96""")
        if self.diag:
            a(f"s_memrealtime s[98:99]")
            a(f"v_mov_b32 v{V_ST}, 0")
        a(f"""
        v_and_b32 v{V_LANE}, 63, v0
        v_lshrrev_b32 v{t}, 6, v0
        v_and_b32 v{V_J16}, 15, v{V_LANE}
        v_readfirstlane_b32 s{S_WAVE}, v{t}
        v_lshrrev_b32 v{V_G}, 4, v{V_LANE}
        v_lshlrev_b32 v{t+1}, 2, v{V_LANE}
        v_add_u32 v{t+1}, {FLAGS}, v{t+1}
        v_mov_b32 v{t+2}, 0
        ds_write_b32 v{t+1}, v{t+2}
        s_and_b32 s{S_H}, s2, 31
        s_lshr_b32 s{S_J}, s2, 5
        s_mov_b32 s{S_SPIN}, 0
        s_mov_b32 s{S_LAND}, 0
        s_lshr_b32 s{S_AB}, s2, 7
        s_and_b32 s{S_AS}, s2, 15
        s_bfe_u32 s64, s2, 0x20005
        s_lshl_b32 s64, s64, 4
        s_or_b32 s{S_AS}, s{S_AS}, s64
        s_bfe_u32 s{S_AHALF}, s2, 0x10004
        """)
        packed = 0
        for w, tl in enumerate(WAVE2TILE): packed |= tl << (4*w)
        a(f"""s_lshl_b32 s64, s{S_WAVE}, 2
        s_lshr_b32 s{S_V}, {packed}, s64
        s_and_b32 s{S_V}, s{S_V}, 15""")
        a(f"""
        v_and_b32 v{t}, 1, v{V_J16}
        v_bfe_u32 v{t+1}, v{V_J16}, 1, 2
        v_cmp_eq_u32 vcc, 1, v{t}
        v_mov_b32 v{t+2}, 0x01000c0c
        v_mov_b32 v{t+3}, 0x03020c0c
        v_mov_b32 v{t+4}, 0x0c0c0100
        v_mov_b32 v{t+5}, 0x0c0c0302
        v_mov_b32 v{t+6}, 0x0c0c0c0c
        v_cndmask_b32 v{t+2}, v{t+4}, v{t+2}, vcc
        v_cndmask_b32 v{t+3}, v{t+5}, v{t+3}, vcc
        """)
        for k in range(4):
            a(f"""v_cmp_eq_u32 vcc, {k}, v{t+1}
            s_nop 1
            v_cndmask_b32 v{SEL[0][k]}, v{t+6}, v{t+2}, vcc
            v_cndmask_b32 v{SEL[1][k]}, v{t+6}, v{t+3}, vcc""")
        a(f"""
        v_cmp_eq_u32 vcc, 1, v{t}
        v_mov_b32 v{t+2}, 0xffff0000
        v_mov_b32 v{t+4}, 0x0000ffff
        v_cndmask_b32 v{t+2}, v{t+4}, v{t+2}, vcc
        v_lshrrev_b32 v{t+3}, 1, v{V_J16}
        """)
        for sg in range(2):
            for rg in range(2):
                a(f"""v_cmp_eq_u32 vcc, {sg*2+rg}, v{t+3}
                s_nop 1
                v_cndmask_b32 v{MSK[sg][rg]}, 0, v{t+2}, vcc""")
        a(f"""
        s_waitcnt lgkmcnt(0)
        s_barrier
        """)
        if self.diag: a(f"v_writelane_b32 v{V_ST}, s98, 0")
        self.stamp(15)
        self.srd(48, 42, 268435456)
        a(f"""
        s_cmp_eq_u32 s{S_WAVE}, 0
        s_cbranch_scc1 .Lw0
        s_cmp_eq_u32 s{S_WAVE}, 1
        s_cbranch_scc1 .Lw1
        s_cmp_eq_u32 s{S_WAVE}, 2
        s_cbranch_scc1 .Lw2
        s_cmp_eq_u32 s{S_WAVE}, 3
        s_cbranch_scc1 .Lw3
        s_branch .Lw47
        """)
    def attn_addr(self):
        a = self.a
        t = T0
        a(f"""
        v_and_b32 v{t}, 1, v{V_J16}
        v_and_b32 v{t+1}, 2, v{V_J16}
        v_lshl_or_b32 v{t}, v{t+1}, 2, v{t}
        v_lshrrev_b32 v{t+1}, 1, v{V_J16}
        v_and_b32 v{t+1}, 6, v{t+1}
        v_or_b32 v{t}, v{t}, v{t+1}              ; L(j16)
        v_xor_b32 v{t}, v{t}, v{V_G}             ; u
        v_lshlrev_b32 v{t}, 4, v{t}
        v_lshl_add_u32 v{t}, v{V_J16}, 10, v{t}
        s_lshl_b32 s64, s{S_V}, 14
        """)
        for q in range(4):
            a(f"v_xor_b32 v{AD_QB+q}, {q*64}, v{t}")
        for q in range(4):
            a(f"v_add_u32 v{AD_SA+q}, s64, v{AD_QB+q}")
            a(f"v_add_u32 v{AD_QB+q}, {QABS}, v{AD_QB+q}")
        a(f"""
        v_lshrrev_b32 v{t}, 2, v{V_LANE}          ; rho
        v_and_b32 v{t+1}, 1, v{t}
        v_and_b32 v{t+2}, 2, v{t}
        v_lshl_or_b32 v{t+1}, v{t+2}, 2, v{t+1}
        v_lshrrev_b32 v{t+2}, 1, v{t}
        v_and_b32 v{t+2}, 6, v{t+2}
        v_or_b32 v{t+1}, v{t+1}, v{t+2}          ; L(rho)
        v_and_b32 v{t+2}, 3, v{V_LANE}           ; cgrp
        v_lshlrev_b32 v{t+3}, 1, v{t+2}
        s_and_b32 s65, s{S_V}, 1
        s_lshl_b32 s65, s65, 3
        v_or_b32 v{t+3}, s65, v{t+3}
        v_xor_b32 v{t+3}, v{t+3}, v{t+1}
        v_lshlrev_b32 v{t+3}, 4, v{t+3}
        v_lshl_add_u32 v{t+3}, v{t}, 10, v{t+3}
        s_lshr_b32 s65, s{S_V}, 1
        s_lshl_b32 s65, s65, 8
        v_add_u32 v{t+3}, s65, v{t+3}
        v_and_b32 v{t+2}, 1, v{t+2}
        v_lshl_or_b32 v{t+3}, v{t+2}, 3, v{t+3}
        """)
        for tt in range(4):
            x = ((tt >> 1) << 4) | ((tt & 1) << 3)
            a(f"v_xor_b32 v{AD_TRL+tt}, {x}, v{t+3}")
            a(f"v_add_u32 v{AD_TRH+tt}, 0x10000, v{AD_TRL+tt}")
    def pa_reg(self, sg, t):
        return PA + 16*sg + 4*t
    def tr_reads(self, sg):
        a = self.a
        for t in range(4):
            for tau in range(2):
                row0 = 32*sg + 16*tau
                base = AD_TRL + t if row0 < 64 else AD_TRH + t
                off = (row0 % 64) * 1024
                r = self.pa_reg(sg, t) + 2*tau
                a(f"ds_read_b64_tr_b16 v[{r}:{r+1}], v{base} offset:{off}")
    def sa_reads(self):
        a = self.a
        for s in range(16):
            if s == 12: a("s_waitcnt lgkmcnt(4)")
            a(f"ds_read_b128 v[{SA+4*s}:{SA+4*s+3}], v{AD_SA+(s&3)} offset:{(s>>2)*256}")

    def p1_issue(self, xbase, wbase, s_col):
        a = self.a
        t = T0
        self.srd(56, xbase, 2048)
        self.srd(52, wbase, 4194304)
        a(f"""
        v_lshrrev_b32 v{t+8}, 3, v{V_J16}
        v_lshlrev_b32 v{t+8}, 10, v{t+8}
        v_lshl_add_u32 v{t+8}, v{V_G}, 5, v{t+8}
        s_lshl_b32 s64, s{S_J}, 7
        v_lshlrev_b32 v{t+9}, 17, v{V_G}
        v_lshl_add_u32 v{t+9}, v{V_J16}, 4, v{t+9}
        s_lshl_b32 s66, s{S_J}, 19
        s_add_u32 s66, s66, {s_col}
        s_mov_b32 s67, s66
        buffer_load_dwordx4 v[{M0_}:{M0_+3}], v{t+8}, s[56:59], s64 offen
        buffer_load_dwordx4 v[{M0_+4}:{M0_+7}], v{t+8}, s[56:59], s64 offen offset:16
        """)
        for k in range(16):
            a(f"buffer_load_dwordx4 v[{SA+4*k}:{SA+4*k+3}], v{t+9}, s[52:55], s67 offen nt")
            if k < 15: a("s_add_u32 s67, s67, 8192")
    def p1_compute(self, extra, hbase, s_head):
        a = self.a
        t = T0
        a(f"s_waitcnt vmcnt({16 + extra})")
        def pre(k):
            a(f"s_waitcnt vmcnt({15 - k + extra})")
        self.diag_mfma(M0_, SA, ACC, t, t+4, pre=pre)
        self.get_tag()
        self.gran_voff(t+8, t+9)
        a(f"""
        s_lshl_b32 s64, {s_head}, 3
        s_add_u32 s64, s64, s{S_J}
        s_lshl_b32 s64, s64, 10
        s_add_u32 s64, s64, {hbase}
        """)
        self.publish_granule(ACC, t+12, t+8, "s64", local=(hbase == H1A))

    def w0_front(self):
        a = self.a
        t = T0
        a.label(".Lw0")
        self.load_tag()
        a(f"s_lshl_b32 s68, s{S_H}, 8")
        self.p1_issue(16, 20, "s68")
        self.srd(56, 22, 4194304)
        a(f"""
        v_lshlrev_b32 v{t+7}, 15, v{V_J16}
        v_lshl_add_u32 v{t+7}, v{V_G}, 4, v{t+7}
        s_mov_b32 s67, s66
        """)
        for tt in range(4):
            for sp in range(4):
                r = PA + 16*tt + 4*sp
                a(f"buffer_load_dwordx4 v[{r}:{r+3}], v{t+7}, s[56:59], s67 offen offset:{64*sp} nt")
            if tt < 3: a("s_add_u32 s67, s67, 8192")
        self.attn_addr()
        self.p1_compute(16, H1A, f"s{S_H}")
        self.stamp(2)
        a(f"""
        v_lshrrev_b32 v{t}, 1, v{V_J16}
        v_lshlrev_b32 v{t}, 10, v{t}
        v_and_b32 v{t+1}, 1, v{V_J16}
        v_lshl_add_u32 v{t}, v{t+1}, 9, v{t}
        v_lshl_add_u32 v{t}, v{V_G}, 5, v{t}
        s_lshl_b32 s64, s{S_H}, 13
        s_add_u32 s64, s64, {H1A}
        """)
        a(f"""s_add_u32 s64, s64, {LOC}
        s_mov_b32 s69, 0""")
        if self.o.get("h1wait", 0): a(f"s_sleep {self.o['h1wait']}")
        lp = a.newlabel("h1")
        a.label(lp)
        for sp in range(4):
            for hf in range(2):
                r = QB + 8*sp + 4*hf
                a(f"buffer_load_dwordx4 v[{r}:{r+3}], v{t}, {WS}, s64 offen offset:{128*sp + 16*hf} sc1")
        a("s_waitcnt vmcnt(0)")
        words = []
        for q in range(8): words += [QB + 4*q + 1, QB + 4*q + 3]
        self.tagcheck(words, t+1, lp, onfail=lambda: self.poll_switch(["s64"], lp, after=4))
        self.set_flag(F_G1D)
        self.stamp(3)
        for sp in range(4):
            r = QB + 8*sp
            a(f"""v_mov_b32 v{r+1}, v{r+2}
            v_mov_b32 v{r+2}, v{r+4}
            v_mov_b32 v{r+3}, v{r+6}""")
        a("s_nop 1")
        D0 = KREG
        for sp in range(4):
            for tt in range(4):
                c = "0" if sp == 0 else f"v[{D0+4*tt}:{D0+4*tt+3}]"
                a(f"v_mfma_f32_16x16x32_bf16 v[{D0+4*tt}:{D0+4*tt+3}], v[{QB+8*sp}:{QB+8*sp+3}], v[{PA+16*tt+4*sp}:{PA+16*tt+4*sp+3}], {c}")
        a("s_nop 7"); a("s_nop 1")
        for tt in range(4):
            d = D0 + 4*tt
            a(f"v_add_f32 v{d}, v{d}, v{d+2}")
            a(f"v_add_f32 v{d+1}, v{d+1}, v{d+3}")
        a("s_nop 1")
        for tt in range(4):
            d = D0 + 4*tt
            a(f"v_permlane32_swap_b32 v{d}, v{d+1}")
        a("s_nop 1")
        for tt in range(4):
            d = D0 + 4*tt
            a(f"v_add_f32 v{d}, v{d}, v{d+1}")
        for tt in range(4):
            d = D0 + 4*tt
            a(f"v_mov_b32 v{d+1}, v{d}")
        a("s_nop 1")
        for tt in range(4):
            d = D0 + 4*tt
            a(f"v_permlane16_swap_b32 v{d}, v{d+1}")
        a("s_nop 1")
        for tt in range(4):
            d = D0 + 4*tt
            a(f"v_add_f32 v{d}, v{d}, v{d+1}")
            a(f"v_mul_f32 v{d}, {CS}, v{d}")
        a(f"""
        v_cvt_pk_bf16_f32 v{t+4}, v{D0}, v{D0+4}
        v_cvt_pk_bf16_f32 v{t+6}, v{D0+8}, v{D0+12}
        v_mov_b32 v{t+5}, s{S_TAG}
        v_mov_b32 v{t+7}, s{S_TAG}
        v_lshrrev_b32 v{t}, 1, v{V_G}
        v_lshlrev_b32 v{t}, 16, v{t}
        v_lshl_add_u32 v{t}, v{V_J16}, 4, v{t}
        s_lshl_b32 s64, s{S_H}, 3
        s_add_u32 s64, s64, s{S_J}
        s_lshl_b32 s64, s64, 8
        s_add_u32 s64, s64, {H2}
        """)
        a(f"""
        v_and_b32 v{t+1}, 1, v{V_G}
        v_cmp_eq_u32 vcc, 0, v{t+1}
        s_and_saveexec_b64 s[70:71], vcc
        buffer_store_dwordx4 v[{t+4}:{t+7}], v{t}, {WS}, s64 offen sc1
        s_mov_b64 exec, s[70:71]
        s_lshr_b32 s64, s{S_H}, 4
        s_lshl_b32 s64, s64, 11
        s_and_b32 s65, s{S_H}, 15
        s_lshl_b32 s65, s65, 2
        s_add_u32 s64, s64, s65
        s_add_u32 s64, s64, {FL_H2}
        s_and_b32 s65, s{S_H}, 7
        """)
        self.pub_flag("s64", cond=f"s_cmp_eq_u32 s65, s{S_J}", nrep=16)
        self.stamp(4)
        self.pre_sigma(0)
        self.pre_sigma(1)
        a(f"""s_and_b32 s69, s2, 31
        s_lshl_b32 s69, s69, 7
        s_add_u32 s69, s69, {FL_H2}""")
        self.sgate("s69", 16, sleep=self.o.get("g2sleep", 2))
        self.set_flag(F_G2)
        self.stamp(1)
        self.qabs_gather(0, mid=lambda: self.pre_sigma(2))
        self.own_late()
        a("s_branch .Lattn_s")

    def qabs_gather(self, z, mid=None):
        a = self.a
        t = T0
        def reg(hh, jh):
            return (QB + 8*hh + 4*jh) if hh < 4 else (KREG + 8*(hh-4) + 4*jh)
        a(f"""
        s_lshl_b32 s64, s{S_AB}, 5
        s_lshl_b32 s65, s{S_AHALF}, 4
        s_add_u32 s64, s64, s65
        s_add_u32 s64, s64, {8*z}
        s_lshl_b32 s64, s64, 11
        s_add_u32 s64, s64, {H2}
        v_lshlrev_b32 v{t}, 4, v{V_LANE}
        """)
        def gather():
            for hh in range(8):
                if hh % 2 == 0: a(f"s_add_u32 s66, s64, {hh*2048}")
                for jh in range(2):
                    r = reg(hh, jh)
                    off = (hh % 2) * 2048 + jh * 1024
                    a(f"buffer_load_dwordx4 v[{r}:{r+3}], v{t}, {WS}, s66 offen offset:{off} sc1")
        gather()
        self.set_flag(F_G2I, add=True)
        if mid: mid()
        a(f"""
        v_lshrrev_b32 v{t+2}, 5, v{V_LANE}
        v_lshlrev_b32 v{t+2}, 8, v{t+2}
        v_and_b32 v{t+3}, 1, v{V_G}
        v_lshl_add_u32 v{t+2}, v{t+3}, 7, v{t+2}
        v_lshrrev_b32 v{t+3}, 1, v{V_J16}
        v_lshl_add_u32 v{t+2}, v{t+3}, 4, v{t+2}
        v_and_b32 v{t+3}, 1, v{V_LANE}
        v_lshl_add_u32 v{t+2}, v{t+3}, 3, v{t+2}
        s_waitcnt vmcnt(0)
        """)
        chk = a.newlabel("h2chk")
        a(f"s_branch {chk}")
        lp = a.newlabel("h2")
        a.label(lp)
        gather()
        a("s_waitcnt vmcnt(0)")
        a.label(chk)
        words = []
        for hh in range(8):
            for jh in range(2): words += [reg(hh, jh) + 1, reg(hh, jh) + 3]
        self.tagcheck(words, t+1, lp)
        for hh in range(8):
            head = 8*z + hh
            a(f"v_xor_b32 v{t+4+(hh%2)}, {Lsw(head) << 4}, v{t+2}")
            a(f"v_add_u32 v{t+4+(hh%2)}, {QABS + head*1024}, v{t+4+(hh%2)}")
            for jh in range(2):
                r = reg(hh, jh)
                a(f"ds_write2_b32 v{t+4+(hh%2)}, v{r}, v{r+2} offset0:{jh*128} offset1:{jh*128+1}")
            if hh % 4 == 3: a("s_waitcnt lgkmcnt(4)")
        a("s_waitcnt lgkmcnt(0)")
        self.set_flag(F_QABS, add=True)
        self.stamp(3) if z == 1 else self.stamp(14)

    def w1_front(self):
        a = self.a
        t = T0
        a.label(".Lw1")
        self.load_tag()
        self.hqB("s72", "s73")
        a("s_lshl_b32 s68, s72, 8")
        if self.o.get("wqdelay", 0): self.wait_flag(F_ISSUED, self.o["wqdelay"], sleep=1)
        self.p1_issue(28, 34, "s68")
        self.attn_addr()
        self.p1_compute(0, H1B, "s72")
        a(f"""s_lshl_b32 s64, s72, 9
        s_lshl_b32 s65, s{S_J}, 2
        s_add_u32 s64, s64, s65
        s_add_u32 s64, s64, {FL_H1B}""")
        self.pub_flag("s64", nrep=4)
        self.stamp(2)
        for sg in range(3): self.pre_sigma(sg)
        a("s_branch .Lattn_s")
    def wq_reg(self, k):
        return (KREG + 4*k) if k < 8 else (VREG + 4*(k-8))
    def pre_sigma(self, sg):
        a = self.a
        self.wait_landed(2*sg + 2)
        self.tr_reads(sg)
        sk = a.newlabel("ps")
        a(f"""s_lshr_b32 s65, s{S_V}, 1
        s_cmp_lg_u32 s65, {sg}
        s_cbranch_scc1 {sk}
        s_waitcnt lgkmcnt(0)""")
        self.sa_reads()
        a.label(sk)
        a("s_waitcnt lgkmcnt(0)")
        self.set_flag(F_REL0 + sg, add=True)
    def own_late(self):
        a = self.a
        sk = a.newlabel("ol")
        a(f"""s_cmp_lt_u32 s{S_V}, 6
        s_cbranch_scc1 {sk}
        s_add_u32 s64, s{S_V}, 1""")
        sk2 = a.newlabel("ol2")
        a(f"""s_cmp_ge_u32 s{S_LAND}, s64
        s_cbranch_scc1 {sk2}""")
        self.wait_flag(F_LANDED, "s64", dst=f"s{S_LAND}")
        a.label(sk2)
        self.sa_reads()
        a.label(sk)

    def loader_plan(self):
        L = []
        for tl in range(8):
            for rho in range(16):
                L.append((CKV + (16*tl + rho)*1024, "ckv", "s72" if tl % 2 == 0 else "s73", (tl >> 1)*16384 + rho*1024, KREG + rho))
        for k in range(32): L.append((LK + k*1024, "k", "s77", k*1024, KREG + 16 + (k & 3)))
        for k in range(32): L.append((LV + k*1024, "v", "s77", k*1024, KREG + 20))
        for k in range(16): L.append((LW0 + k*1024, "wuv", "s78", k*8192, KREG + 21))
        for k in range(16): L.append((LW1 + k*1024, "wo", "s79", k*1024, KREG + 22))
        for k in range(16): L.append((LW2 + k*1024, "wob", "s68", k*1024, KREG + 22))
        return L
    def loader_emit(self, lo, hi, paced, st):
        a = self.a
        L = self.loader_plan()
        D = self.depth if lo < 128 else self.o.get("depth2", self.depth)
        srds = dict(ckv=(18, 16777216), k=(30, 33554432), v=(32, 33554432), wuv=(24, 4194304), wo=(26, 4194304), wob=(36, 4194304))
        for i in range(lo, hi):
            lds, key, base, off, vo = L[i]
            if i == self.o.get("n1", -1): self.wait_flag(F_G1D, 1)
            if lo < 128: D = self.o.get("depth1", self.depth) if i < self.o.get("n1", -1) else self.depth
            if i == 128: self.wait_flag(F_REL0, 8)
            if i == 160: self.wait_flag(F_REL1, 8)
            if i == 192: self.wait_flag(F_REL2, 8)
            if i == self.o.get("pause_at", 208):
                if st["ops"] and isinstance(st["ops"][-1], int): self.loader_wait(st["ops"][-1], st)
                self.wait_flag(F_WUV, 1, sleep=1)
            if paced and i - D >= st["landed"]:
                self.loader_wait(i - D, st)
            if st["srd"] != key:
                self.srd(52, *srds[key]); st["srd"] = key
            if key == "wob" and off == 0:
                self.hqB("s68", "s69")
                a(f"""s_lshl_b32 s68, s68, 17
                s_lshr_b32 s69, s{S_J}, 2
                s_lshl_b32 s69, s69, 16
                s_add_u32 s68, s68, s69
                s_and_b32 s69, s{S_J}, 3
                s_lshl_b32 s69, s69, 8
                s_add_u32 s68, s68, s69""")
            a(f"s_mov_b32 m0, {lds}")
            a(f"s_add_u32 s67, {base}, {off}")
            a(f"buffer_load_dwordx4 v{vo}, s[52:55], s67 offen nt lds")
            st["ops"].append(i)
            if (i + 1) % 16 == 0 and i < 128:
                a(f"v_mov_b32 v{M0_+2}, {i+1}")
                a(f"ds_write_b32 v{KREG+23}, v{M0_+2} offset:{4*F_ISSUED}")
            if i + 1 == min(D, 128) and not st.get("addr"):
                self.attn_addr(); st["addr"] = True
    def loader_wait(self, idx, st):
        a = self.a
        ops = st["ops"]
        pos = ops.index(idx)
        after = len(ops) - pos - 1
        a(f"s_waitcnt vmcnt({min(after, 63)})")
        del ops[:pos+1]
        old = st["landed"]
        st["landed"] = idx + 1
        for k in range(old // 16 + 1, st["landed"] // 16 + 1):
            self._landed(k)
    def _landed(self, k):
        a = self.a
        if self.o.get("ldstamps") and k <= 8: self.stamp([1,2,3,4,9,10,11,12][k-1])
        a(f"v_mov_b32 v{M0_+2}, {k}")
        a(f"ds_write_b32 v{KREG+23}, v{M0_+2} offset:{4*F_LANDED}")
        tile = WAVE2TILE[2]
        if k in (2, 4, 6):
            sg = k // 2 - 1
            self.tr_reads(sg)
            if tile >> 1 == sg:
                a("s_waitcnt lgkmcnt(0)")
                self.sa_reads()
            a("s_waitcnt lgkmcnt(0)")
            self.set_flag(F_REL0 + sg, add=True)
    def w2_front(self):
        a = self.a
        t = T0
        a.label(".Lw2")
        self.load_tag()
        a(f"""
        s_lshl_b32 s72, s{S_AB}, 23
        s_lshl_b32 s73, s{S_AS}, 17
        s_add_u32 s72, s72, s73
        s_lshl_b32 s68, s{S_AHALF}, 16
        s_xor_b32 s69, s68, 0x10000
        s_add_u32 s73, s72, s69
        s_add_u32 s72, s72, s68
        v_lshlrev_b32 v{M0_}, 4, v{V_LANE}
        """)
        for rho in range(16):
            a(f"v_xor_b32 v{KREG+rho}, {Lsw(rho) << 4}, v{M0_}")
        a(f"v_mov_b32 v{KREG+23}, {FLAGS}")
        st = dict(ops=[], landed=0, srd=None)
        self.ld_state = st
        D = self.o.get("depth1", self.depth) if self.o.get("n1", -1) > 0 else self.depth
        self.loader_emit(0, D, True, st)
        a(f"""
        s_lshr_b32 s68, s2, 7
        s_lshl_b32 s68, s68, 3
        s_and_b32 s65, s2, 7
        s_add_u32 s68, s68, s65
        s_lshl_b32 s68, s68, 13
        s_bfe_u32 s65, s2, 0x40003
        s_lshl_b32 s65, s65, 7
        s_add_u32 s68, s68, s65
        s_add_u32 s68, s68, 6144
        s_lshl_b32 s77, s68, 8
        s_lshl_b32 s78, s{S_J}, 19
        s_lshl_b32 s65, s{S_H}, 8
        s_add_u32 s78, s78, s65                  ; w_uv
        s_lshl_b32 s79, s{S_H}, 17
        s_lshr_b32 s65, s{S_J}, 2
        s_lshl_b32 s65, s65, 16
        s_add_u32 s79, s79, s65
        s_and_b32 s65, s{S_J}, 3
        s_lshl_b32 s65, s65, 8
        s_add_u32 s79, s79, s65                  ; w_o
        v_and_b32 v{t}, 1, v{V_G}
        v_and_b32 v{t+1}, 2, v{V_G}
        v_lshl_or_b32 v{t}, v{t+1}, 2, v{t}      ; L(g)
        v_xor_b32 v{t}, v{t}, v{V_J16}
        v_lshlrev_b32 v{t}, 4, v{t}
        v_lshl_add_u32 v{t}, v{V_G}, 8, v{t}
        """)
        for q in range(4):
            a(f"v_xor_b32 v{KREG+16+q}, {(q << 1) << 4}, v{t}")
        a(f"""
        v_lshlrev_b32 v{KREG+20}, 4, v{V_LANE}                  ; V: linear
        v_lshlrev_b32 v{KREG+21}, 17, v{V_G}
        v_lshl_add_u32 v{KREG+21}, v{V_J16}, 4, v{KREG+21}      ; w_uv: g<<17 | j16<<4
        v_lshlrev_b32 v{KREG+22}, 14, v{V_G}
        v_lshl_add_u32 v{KREG+22}, v{V_J16}, 4, v{KREG+22}      ; w_o/wo: g<<14 | j16<<4
        """)
        kpre = self.o.get("kpre", 0)
        self.loader_emit(D, 128 + kpre, True, st)
        if st["landed"] < 128: self.loader_wait(127, st)
        self.get_tag()
        a(f"s_mov_b32 s{S_LAND}, 8")
        if not self.o.get("ldstamps"): self.stamp(1)
        be = 128 + kpre + self.o.get("burst", 24)
        if be > 128 + kpre:
            self.wait_flag(F_G2I, 2)
            self.loader_emit(128 + kpre, be, False, st)
        self.ld_next = be
        a("s_branch .Lattn_s")

    def w3_front(self):
        a = self.a
        t = T0
        a.label(".Lw3")
        self.load_tag()
        self.attn_addr()
        self.get_tag()
        self.stamp(1)
        self.pre_sigma(0)
        self.pre_sigma(1)
        self.wait_flag(F_G2, 1, sleep=1)
        self.qabs_gather(1, mid=lambda: self.pre_sigma(2))
        a("s_branch .Lattn_s")

    def w47_front(self):
        a = self.a
        a.label(".Lw47")
        self.load_tag()
        self.attn_addr()
        a(f"s_sub_u32 s72, s{S_WAVE}, 4")
        self.get_tag()
        self.pre_sigma(0)
        self.pre_sigma(1)
        self.qb_gather(nv=0)
        self.stamp(1)
        self.pre_sigma(2)
        self.own_late()
        self.stamp(2)
        a("s_branch .Lattn_s")

    def qb_gather(self, mid=None, nv=8):
        a = self.a
        t = T0
        a(f"""s_and_b32 s73, s2, 7
        s_lshl_b32 s73, s73, 2
        s_add_u32 s73, s73, s72
        s_lshr_b32 s69, s2, 7
        s_lshl_b32 s64, s73, 13
        s_lshl_b32 s65, s69, 9
        s_add_u32 s64, s64, s65
        s_add_u32 s64, s64, {H1B}
        s_add_u32 s66, s64, 4096
        v_lshlrev_b32 v{t}, 10, v{V_G}
        v_lshl_add_u32 v{t}, v{V_J16}, 4, v{t}
        """)
        def gather():
            for ph in range(2):
                for dh in range(2):
                    r = QB + 8*ph + 4*dh
                    a(f"buffer_load_dwordx4 v[{r}:{r+3}], v{t}, {WS}, {'s64' if ph == 0 else 's66'} offen offset:{256*dh} sc1")
        a(f"""s_lshl_b32 s67, s73, 2
        s_bfe_u32 s65, s2, 0x20005
        s_add_u32 s67, s67, s65
        s_lshl_b32 s67, s67, 7
        s_add_u32 s67, s67, {FL_H1B}""")
        self.sgate("s67", 8, sleep=10)
        gather()
        if mid: mid()
        a(f"s_waitcnt vmcnt({nv})")
        chk = a.newlabel("h1bchk")
        a(f"s_branch {chk}")
        lp = a.newlabel("h1b")
        a.label(lp)
        gather()
        a("s_waitcnt vmcnt(0)")
        a.label(chk)
        words = []
        for q in range(4): words += [QB + 4*q + 1, QB + 4*q + 3]
        self.tagcheck(words, t+1, lp)
        for q in range(4): a(f"v_mov_b32 v{QB+4*q+1}, v{QB+4*q+2}")
        SE = KREG
        for sg in range(2):
            for rg in range(2):
                a(f"v_and_b32 v{SE+2*sg+rg}, 0x3f803f80, v{MSK[sg][rg]}")
        a("s_nop 1")
        first = True
        for ph in range(2):
            for dh in range(2):
                r = QB + 8*ph + 4*dh
                c = "0" if first else f"v[{ACC}:{ACC+3}]"
                first = False
                a(f"v_mfma_f32_16x16x16_bf16 v[{ACC}:{ACC+3}], v[{SE+2*dh}:{SE+2*dh+1}], v[{r}:{r+1}], {c}")
        a("s_nop 7"); a("s_nop 1")
        for r in range(4): a(f"v_mul_f32 v{ACC+r}, {CS}, v{ACC+r}")
        a(f"""
        v_cvt_pk_bf16_f32 v{t+4}, v{ACC}, v{ACC+1}
        v_cvt_pk_bf16_f32 v{t+5}, v{ACC+2}, v{ACC+3}
        v_lshlrev_b32 v{t+1}, 3, v{V_LANE}
        s_lshl_b32 s65, s72, 8
        s_add_u32 s65, s65, {QBL}
        v_add_u32 v{t+1}, s65, v{t+1}
        v_cmp_gt_u32 vcc, 32, v{V_LANE}
        s_and_saveexec_b64 s[70:71], vcc
        ds_write_b64 v{t+1}, v[{t+4}:{t+5}]
        s_mov_b64 exec, s[70:71]
        s_waitcnt lgkmcnt(0)
        """)
        self.set_flag(F_QB, add=True)

    def v_loads(self):
        a = self.a
        t = T0
        self.srd(56, 32, 33554432)
        a(f"""v_lshlrev_b32 v{t+11}, 11, v{V_G}
        v_lshl_add_u32 v{t+11}, v{V_J16}, 4, v{t+11}""")
        for k in range(8):
            a(f"buffer_load_dwordx4 v[{VREG+4*k}:{VREG+4*k+3}], v{t+11}, s[56:59], s{S_KOFF} offen offset:{256*k} nt")

    def attn(self):
        a = self.a
        t = T0
        a.label(".Lattn")
        for sg in range(2):
            self.wait_landed(2*sg + 2)
            self.tr_reads(sg)
        a.label(".Lattn_own")
        a(f"s_add_u32 s64, s{S_V}, 1")
        sk = a.newlabel("own")
        a(f"""s_cmp_ge_u32 s{S_LAND}, s64
        s_cbranch_scc1 {sk}""")
        self.wait_flag(F_LANDED, "s64", dst=f"s{S_LAND}")
        a.label(sk)
        a("s_waitcnt lgkmcnt(0)")
        self.sa_reads()
        a.label(".Lattn_s")
        self.stamp(5)
        self.wait_flag(F_QABS, 2)
        self.stamp(6)
        NB = 8
        def bread(s):
            r = QB + 4*(s % NB)
            a(f"ds_read_b128 v[{r}:{r+3}], v{AD_QB+(s&3)} offset:{(s>>2)*256}")
        for s in range(NB): bread(s)
        for s in range(16):
            rem = min(NB - 1, 15 - s)
            a(f"s_waitcnt lgkmcnt({rem})")
            r = QB + 4*(s % NB)
            c = "0" if s == 0 else f"v[{ACC}:{ACC+3}]"
            a(f"v_mfma_f32_16x16x32_bf16 v[{ACC}:{ACC+3}], v[{SA+4*s}:{SA+4*s+3}], v[{r}:{r+3}], {c}")
            if s + NB < 16: bread(s + NB)
        m = M0_
        a(f"""
        v_lshlrev_b32 v{t}, 5, v{V_J16}
        s_lshl_b32 s65, s{S_V}, 2
        v_add_u32 v{t}, s65, v{t}                ; head*32 + v*4
        v_add_u32 v{t+1}, {MAXB}, v{t}
        v_lshlrev_b32 v{t+2}, 5, v{V_J16}
        v_add_u32 v{t+2}, {MAXB}, v{t+2}
        s_nop 4
        v_max_f32 v{m}, v{ACC}, v{ACC+1}
        v_max3_f32 v{m}, v{m}, v{ACC+2}, v{ACC+3}""")
        self.xrow_reduce("v_max_f32", m, m+1)
        a(f"""
        v_cmp_gt_u32 vcc, 16, v{V_LANE}
        s_and_saveexec_b64 s[70:71], vcc
        ds_write_b32 v{t+1}, v{m}
        s_mov_b64 exec, s[70:71]
        s_waitcnt lgkmcnt(0)
        s_barrier
        ds_read_b128 v[{QB}:{QB+3}], v{t+2}
        ds_read_b128 v[{QB+4}:{QB+7}], v{t+2} offset:16
        """)
        self.tr_reads(3)
        a(f"""
        s_waitcnt lgkmcnt(8)
        v_max3_f32 v{m}, v{QB}, v{QB+1}, v{QB+2}
        v_max3_f32 v{m}, v{m}, v{QB+3}, v{QB+4}
        v_max3_f32 v{m}, v{m}, v{QB+5}, v{QB+6}
        v_max_f32 v{m}, v{m}, v{QB+7}
        """)
        for r in range(4): a(f"v_sub_f32 v{ACC+r}, v{ACC+r}, v{m}")
        for r in range(4): a(f"v_exp_f32 v{ACC+r}, v{ACC+r}")
        a(f"""s_nop 0
        v_add_f32 v{m+1}, v{ACC}, v{ACC+1}
        v_add_f32 v{m+2}, v{ACC+2}, v{ACC+3}
        v_cvt_pk_bf16_f32 v{m+4}, v{ACC}, v{ACC+1}
        v_cvt_pk_bf16_f32 v{m+5}, v{ACC+2}, v{ACC+3}
        v_add_f32 v{m+1}, v{m+1}, v{m+2}
        s_lshr_b32 s65, s{S_V}, 1
        s_lshl_b32 s65, s65, 10
        s_and_b32 s66, s{S_V}, 1
        s_lshl_b32 s66, s66, 3
        s_add_u32 s65, s65, s66
        s_add_u32 s65, s65, {PBUF}
        v_lshlrev_b32 v{t+2}, 4, v{V_LANE}
        v_add_u32 v{t+3}, s65, v{t+2}
        ds_write_b64 v{t+3}, v[{m+4}:{m+5}]
        """)
        self.xrow_reduce("v_add_f32", m+1, m+2)
        a(f"""
        v_add_u32 v{t+1}, {LBUF}, v{t}
        v_cmp_gt_u32 vcc, 16, v{V_LANE}
        s_and_saveexec_b64 s[70:71], vcc
        ds_write_b32 v{t+1}, v{m+1}
        s_mov_b64 exec, s[70:71]
        v_add_u32 v{t+2}, {PBUF}, v{t+2}
        s_waitcnt lgkmcnt(0)
        s_barrier
        """)
        self.stamp(7)
        for sg in range(4):
            a(f"ds_read_b128 v[{QB+4*sg}:{QB+4*sg+3}], v{t+2} offset:{sg*1024}")
        if self.o.get("h3early", 0):
            sk3 = a.newlabel("h3e")
            a(f"""s_cmp_lg_u32 s{S_WAVE}, 3
            s_cbranch_scc1 {sk3}""")
            self.h3_flag()
            a.label(sk3)
        PV = SA + 32
        for sg in range(4):
            a(f"s_waitcnt lgkmcnt({3-sg})")
            for tt in range(4):
                r = self.pa_reg(sg, tt)
                c = "0" if sg == 0 else f"v[{PV+4*tt}:{PV+4*tt+3}]"
                a(f"v_mfma_f32_16x16x32_bf16 v[{PV+4*tt}:{PV+4*tt+3}], v[{r}:{r+3}], v[{QB+4*sg}:{QB+4*sg+3}], {c}")
        a(f"""
        v_lshlrev_b32 v{t+2}, 17, v{V_J16}
        v_lshl_add_u32 v{t+2}, v{V_G}, 4, v{t+2}
        s_lshl_b32 s64, s{S_AHALF}, 21
        s_lshl_b32 s65, s{S_V}, 14
        s_add_u32 s64, s64, s65
        s_lshl_b32 s65, s{S_AB}, 13
        s_add_u32 s64, s64, s65
        s_lshl_b32 s65, s{S_AS}, 7
        s_add_u32 s64, s64, s65
        s_add_u32 s64, s64, {H3}
        s_mov_b32 s67, 0xfffefffe
        """)
        self.lsb_pat(M0_+6, V_G, t+4)
        O = SA + 48
        for tt in range(4):
            d = PV + 4*tt
            a(f"v_cvt_pk_bf16_f32 v{O+2*tt}, v{d}, v{d+1}")
            a(f"v_cvt_pk_bf16_f32 v{O+2*tt+1}, v{d+2}, v{d+3}")
        for r in range(8): a(f"v_and_or_b32 v{O+r}, v{O+r}, s67, v{M0_+6+(r%4)}")
        TT = O + 8
        for r in range(4): a(f"v_mov_b32 v{TT+r}, v{O+4+r}")
        a("s_nop 0")
        for r in range(4): a(f"v_mov_b32_dpp v{O+4+r}, v{O+r} row_ror:8 row_mask:0xf bank_mask:0x3")
        for r in range(4): a(f"v_mov_b32_dpp v{O+r}, v{TT+r} row_ror:8 row_mask:0xf bank_mask:0xc")
        a(f"""v_and_b32 v{t+2}, 7, v{V_J16}
        v_lshlrev_b32 v{t+2}, 17, v{t+2}
        v_lshrrev_b32 v{t+3}, 3, v{V_J16}
        v_lshl_add_u32 v{t+2}, v{t+3}, 6, v{t+2}
        v_lshl_add_u32 v{t+2}, v{V_G}, 4, v{t+2}
        s_add_u32 s65, s64, 0x100000
        buffer_store_dwordx4 v[{O}:{O+3}], v{t+2}, {WS}, s64 offen sc1
        buffer_store_dwordx4 v[{O+4}:{O+7}], v{t+2}, {WS}, s65 offen sc1
        """)
        self.stamp(8)
        a(f"""
        s_cmp_eq_u32 s{S_WAVE}, 0
        s_cbranch_scc1 .Lt0
        s_cmp_eq_u32 s{S_WAVE}, 1
        s_cbranch_scc1 .Lt1
        s_cmp_eq_u32 s{S_WAVE}, 2
        s_cbranch_scc1 .Lt2
        s_cmp_eq_u32 s{S_WAVE}, 3
        s_cbranch_scc1 .Lt3
        s_branch .Lt47
        """)

    def read_w_lds(self, base, dst):
        a = self.a
        t = T0
        a(f"v_lshlrev_b32 v{t+13}, 4, v{V_LANE}")
        a(f"v_add_u32 v{t+13}, {base}, v{t+13}")
        for k in range(16):
            if k == 12: a("s_waitcnt lgkmcnt(4)")
            a(f"ds_read_b128 v[{dst+4*k}:{dst+4*k+3}], v{t+13} offset:{k*1024}")
    def vec_to_x(self, vec, X):
        a = self.a
        t = T0
        a(f"""v_lshrrev_b32 v{t+13}, 3, v{V_J16}
        v_lshlrev_b32 v{t+13}, 7, v{t+13}
        v_lshl_add_u32 v{t+13}, v{V_G}, 5, v{t+13}
        v_add_u32 v{t+13}, {vec}, v{t+13}
        s_waitcnt lgkmcnt(0)
        ds_read_b128 v[{X}:{X+3}], v{t+13}
        ds_read_b128 v[{X+4}:{X+7}], v{t+13} offset:16
        s_waitcnt lgkmcnt(0)""")
    def publish_h5(self, acc, src, s_pp):
        a = self.a
        t = T0
        a(f"""v_lshrrev_b32 v{t+8}, 2, v{V_LANE}
        v_lshlrev_b32 v{t+8}, 12, v{t+8}
        v_and_b32 v{t+9}, 3, v{V_LANE}
        v_lshl_add_u32 v{t+8}, v{t+9}, 4, v{t+8}
        s_and_b32 s64, s{S_J}, 3
        s_add_u32 s64, s64, {src*4}
        s_lshl_b32 s64, s64, 16
        s_lshl_b32 s65, {s_pp}, 6
        s_add_u32 s64, s64, s65
        s_add_u32 s64, s64, {H5}""")
        self.publish_granule(acc, t+4, t+8, "s64")
        a(f"""s_and_b32 s64, s{S_J}, 3
        s_add_u32 s64, s64, {src*4}
        s_lshl_b32 s64, s64, 8
        s_lshr_b32 s65, {s_pp}, 2
        s_lshl_b32 s65, s65, 2
        s_add_u32 s64, s64, s65
        s_add_u32 s64, s64, {FL_H5}
        s_and_b32 s65, {s_pp}, 3
        """)
        self.pub_flag("s64", cond="s_cmp_eq_u32 s65, 1", nrep=2)

    def tail_w0(self):
        a = self.a
        t = T0
        X = QB; A0 = QB + 8; A1 = QB + 12
        a.label(".Lt0")
        a(f"""
        v_lshrrev_b32 v{t}, 3, v{V_J16}
        v_lshlrev_b32 v{t}, 10, v{t}
        v_lshl_add_u32 v{t}, v{V_G}, 8, v{t}
        v_and_b32 v{t+1}, 7, v{V_J16}
        v_lshl_add_u32 v{t}, v{t+1}, 5, v{t}
        s_lshl_b32 s64, s{S_H}, 11
        s_add_u32 s64, s64, {H3S}
        v_lshrrev_b32 v{t+2}, 3, v{V_J16}
        v_lshlrev_b32 v{t+2}, 13, v{t+2}
        v_lshl_add_u32 v{t+2}, v{V_G}, 11, v{t+2}
        v_lshl_add_u32 v{t+2}, v{t+1}, 4, v{t+2}
        s_lshl_b32 s66, s{S_H}, 3
        s_add_u32 s66, s66, s{S_J}
        s_lshl_b32 s66, s66, 14
        s_add_u32 s66, s66, {H3}
        """)
        S = KREG
        PT = KREG + 16
        a(f"v_and_b32 v{PT+4}, 3, v{V_J16}")
        self.lsb_pat(PT, PT+4, PT+5)
        a(f"""s_lshl_b32 s67, s{S_H}, 7
        s_add_u32 s67, s67, {FL_H3}""")
        self.sgate("s67", 16, sleep=self.o.get("gsleep", 3))
        self.stamp(9)
        lp2 = a.newlabel("h3p")
        a.label(lp2)
        a(f"""buffer_load_dwordx4 v[{S}:{S+3}], v{t}, {WS}, s64 offen sc1
        buffer_load_dwordx4 v[{S+4}:{S+7}], v{t}, {WS}, s64 offen offset:16 sc1""")
        for k in range(16):
            a(f"buffer_load_dwordx4 v[{SA+4*k}:{SA+4*k+3}], v{t+2}, {WS}, s66 offen offset:{128*k} sc1")
        self.set_flag(F_G3)
        a("s_waitcnt vmcnt(16)")
        lpx = a.newlabel("h3x")
        okx = a.newlabel("h3sok")
        a(f"v_xor_b32 v{t+1}, s{S_TAG}, v{S+1}")
        for w_ in (S+3, S+5, S+7):
            a(f"v_bitop3_b32 v{t+1}, v{t+1}, v{w_}, s{S_TAG} bitop3:0xf6")
        a(f"""v_cmp_ne_u32 vcc, 0, v{t+1}
        s_nop 1
        s_cbranch_vccz {okx}
        s_waitcnt vmcnt(0)
        s_sleep 1""")
        self.spin_fail(lp2)
        a.label(okx)
        W = S + 8
        a(f"""
        v_max_f32 v{W}, v{S}, v{S+4}
        s_nop 1
        v_max_f32_dpp v{W}, v{W}, v{W} quad_perm:[1,0,3,2] row_mask:0xf bank_mask:0xf
        s_nop 1
        v_max_f32_dpp v{W}, v{W}, v{W} quad_perm:[2,3,0,1] row_mask:0xf bank_mask:0xf
        s_nop 1
        v_max_f32_dpp v{W}, v{W}, v{W} row_half_mirror row_mask:0xf bank_mask:0xf
        """)
        self.xrow_reduce("v_max_f32", W, W+1)
        a(f"""
        v_sub_f32 v{W+2}, v{S}, v{W}
        v_sub_f32 v{W+3}, v{S+4}, v{W}
        v_exp_f32 v{W+2}, v{W+2}
        v_exp_f32 v{W+3}, v{W+3}
        s_nop 0
        v_cvt_pk_bf16_f32 v{W+4}, v{W+2}, v{W+3}
        v_mul_f32 v{W+5}, v{W+2}, v{S+2}
        v_fmac_f32 v{W+5}, v{W+3}, v{S+6}
        v_lshrrev_b32 v{W+6}, 3, v{V_J16}
        v_lshlrev_b32 v{W+6}, 7, v{W+6}
        v_lshl_add_u32 v{W+6}, v{V_G}, 5, v{W+6}
        v_and_b32 v{W+7}, 7, v{V_J16}
        v_lshl_add_u32 v{W+6}, v{W+7}, 2, v{W+6}
        v_add_u32 v{W+6}, {VEC0}, v{W+6}
        ds_write_b32 v{W+6}, v{W+4}
        """)
        self.vec_to_x(VEC0, X)
        a(f"""
        v_add_f32_dpp v{W+5}, v{W+5}, v{W+5} quad_perm:[1,0,3,2] row_mask:0xf bank_mask:0xf
        s_nop 1
        v_add_f32_dpp v{W+5}, v{W+5}, v{W+5} quad_perm:[2,3,0,1] row_mask:0xf bank_mask:0xf
        s_nop 1
        v_add_f32_dpp v{W+5}, v{W+5}, v{W+5} row_half_mirror row_mask:0xf bank_mask:0xf
        """)
        self.xrow_reduce("v_add_f32", W+5, W+1)
        a(f"v_rcp_f32 v{W+5}, v{W+5}")
        a(f"v_mov_b32 v{W+7}, 0")
        def pre(k):
            a(f"s_waitcnt vmcnt({15-k})")
            r = SA + 4*k
            for i in range(4):
                a(f"v_bitop3_b32 v{W+7}, v{W+7}, v{r+i}, v{PT+i} bitop3:0xf6")
        self.diag_mfma(X, SA, ACC, A0, A1, pre=pre)
        ok = a.newlabel("h3ok")
        a(f"""v_and_b32 v{W+7}, 0x00010001, v{W+7}
        v_cmp_ne_u32 vcc, 0, v{W+7}
        s_nop 1
        s_cbranch_vccz {ok}""")
        self.spin_fail(lp2)
        a.label(ok)
        self.set_flag(F_WUV)
        self.stamp(10)
        self.wait_flag(F_LANDED, 13)
        self.read_w_lds(LW0, PA)
        for r in range(4): a(f"v_mul_f32 v{ACC+r}, v{W+5}, v{ACC+r}")
        a(f"""
        v_cvt_pk_bf16_f32 v{t+4}, v{ACC}, v{ACC+1}
        v_cvt_pk_bf16_f32 v{t+5}, v{ACC+2}, v{ACC+3}
        v_and_b32 v{W+6}, 3, v{V_J16}
        v_and_b32 v{W+1}, 1, v{V_G}
        v_xor_b32 v{W+7}, v{W+6}, v{W+1}
        v_and_b32 v{W+7}, 1, v{W+7}
        v_lshlrev_b32 v{W+7}, 3, v{W+7}
        v_lshl_add_u32 v{W+7}, v{W+6}, 5, v{W+7}
        v_bfe_u32 v{W+6}, v{V_J16}, 2, 1
        v_lshl_add_u32 v{W+7}, v{W+6}, 4, v{W+7}
        v_lshrrev_b32 v{W+6}, 3, v{V_J16}
        v_lshl_add_u32 v{W+7}, v{W+6}, 7, v{W+7}
        v_add_u32 v{W+7}, {VEC0}, v{W+7}
        v_lshrrev_b32 v{W+1}, 1, v{V_G}
        v_cmp_eq_u32 vcc, v{W+1}, v{W+6}
        s_and_saveexec_b64 s[70:71], vcc
        ds_write_b64 v{W+7}, v[{t+4}:{t+5}]
        s_mov_b64 exec, s[70:71]
        """)
        self.vec_to_x(VEC0, X)
        self.diag_mfma(X, PA, ACC, A0, A1)
        self.gran_voff(t+8, t+9)
        a(f"""s_lshl_b32 s64, s{S_H}, 3
        s_add_u32 s64, s64, s{S_J}
        s_lshl_b32 s64, s64, 10
        s_add_u32 s64, s64, {H4}""")
        self.publish_granule(ACC, t+4, t+8, "s64", local=True)
        self.stamp(11)
        a(f"""
        v_lshlrev_b32 v{t}, 10, v{V_G}
        v_lshl_add_u32 v{t}, v{V_J16}, 4, v{t}
        s_lshl_b32 s64, s{S_H}, 13
        s_lshr_b32 s65, s{S_J}, 2
        s_lshl_b32 s66, s65, 8
        s_add_u32 s64, s64, s66
        s_add_u32 s64, s64, {H4}
        s_add_u32 s66, s64, 4096
        """)
        SE = KREG
        for sg in range(2):
            for rg in range(2):
                a(f"v_and_b32 v{SE+2*sg+rg}, 0x3f803f80, v{MSK[sg][rg]}")
        self.wait_flag(F_LANDED, 14)
        self.read_w_lds(LW1, PA)
        a(f"""s_add_u32 s64, s64, {LOC}
        s_add_u32 s66, s66, {LOC}
        s_mov_b32 s69, 0""")
        lp = a.newlabel("h4")
        a.label(lp)
        for b in range(2):
            for ph in range(2):
                r = SA + 8*b + 4*ph
                a(f"buffer_load_dwordx4 v[{r}:{r+3}], v{t}, {WS}, {'s64' if ph == 0 else 's66'} offen offset:{512*b} sc1")
        a("s_waitcnt vmcnt(0)")
        words = []
        for q in range(4): words += [SA + 4*q + 1, SA + 4*q + 3]
        self.tagcheck(words, t+1, lp, onfail=lambda: self.poll_switch(["s64", "s66"], lp, after=6))
        self.stamp(12)
        for q in range(4): a(f"v_mov_b32 v{SA+4*q+1}, v{SA+4*q+2}")
        a("s_nop 1")
        first = True
        for b in range(2):
            for ph in range(2):
                r = SA + 8*b + 4*ph
                c = "0" if first else f"v[{ACC}:{ACC+3}]"
                first = False
                a(f"v_mfma_f32_16x16x16_bf16 v[{ACC}:{ACC+3}], v[{SE+2*b}:{SE+2*b+1}], v[{r}:{r+1}], {c}")
        a(f"""
        v_lshlrev_b32 v{t+6}, 7, v{V_G}
        v_lshl_add_u32 v{t+6}, v{V_J16}, 3, v{t+6}
        v_add_u32 v{t+6}, {VEC0}, v{t+6}
        v_cmp_gt_u32 vcc, 32, v{V_LANE}
        s_nop 4
        v_cvt_pk_bf16_f32 v{t+4}, v{ACC}, v{ACC+1}
        v_cvt_pk_bf16_f32 v{t+5}, v{ACC+2}, v{ACC+3}
        s_and_saveexec_b64 s[70:71], vcc
        ds_write_b64 v{t+6}, v[{t+4}:{t+5}]
        s_mov_b64 exec, s[70:71]
        """)
        self.vec_to_x(VEC0, X)
        self.diag_mfma(X, PA, ACC, A0, A1)
        a(f"""s_lshl_b32 s67, s{S_H}, 1
        s_lshr_b32 s65, s{S_J}, 2
        s_add_u32 s67, s67, s65""")
        self.publish_h5(ACC, 0, "s67")
        self.stamp(13)
        self.dump_stamps()
        a("s_branch .Lend")

    def tail_w1(self):
        a = self.a
        t = T0
        X = QB; A0 = QB + 8; A1 = QB + 12
        a.label(".Lt1")
        self.hqB("s72", "s73")

        a(f"""s_lshr_b32 s73, s{S_J}, 2
        v_and_b32 v{t}, 3, v{V_J16}
        v_lshlrev_b32 v{t}, 6, v{t}
        v_lshl_add_u32 v{t}, v{V_G}, 4, v{t}
        s_lshl_b32 s64, s72, 8
        s_add_u32 s64, s64, {H3BS}
        s_add_u32 s68, s64, 8192
        v_lshlrev_b32 v{t+2}, 9, v{V_G}
        v_lshl_add_u32 v{t+2}, v{V_J16}, 4, v{t+2}
        s_lshl_b32 s66, s72, 13
        s_lshl_b32 s67, s73, 8
        s_add_u32 s66, s66, s67
        s_add_u32 s66, s66, {H3B}
        """)
        S = KREG
        a(f"""s_and_b32 s67, s2, 7
        s_lshl_b32 s67, s67, 2
        s_lshr_b32 s65, s{S_J}, 1
        s_add_u32 s67, s67, s65
        s_lshl_b32 s67, s67, 7
        s_add_u32 s67, s67, {FL_H3B}""")
        self.sgate("s67", 16, sleep=self.o.get("gsleep", 3))
        lp = a.newlabel("h3b")
        a.label(lp)
        a(f"""buffer_load_dwordx4 v[{S}:{S+3}], v{t}, {WS}, s64 offen sc1
        buffer_load_dwordx4 v[{S+4}:{S+7}], v{t}, {WS}, s68 offen sc1""")
        for b in range(2):
            for k in range(4):
                r = SA + 16*b + 4*k
                a(f"s_add_u32 s67, s66, {b*262144 + (k//2)*4096}")
                a(f"buffer_load_dwordx4 v[{r}:{r+3}], v{t+2}, {WS}, s67 offen offset:{(k%2)*2048} sc1")
        a("s_waitcnt vmcnt(8)")
        W = S + 8
        for b in range(2):
            m, l, w, L = S + 4*b, S + 2 + 4*b, W + b, W + 2 + b
            a(f"""v_mov_b32 v{W+4}, v{m}
            s_nop 1
            v_max_f32_dpp v{W+4}, v{W+4}, v{W+4} quad_perm:[1,0,3,2] row_mask:0xf bank_mask:0xf
            s_nop 1
            v_max_f32_dpp v{W+4}, v{W+4}, v{W+4} quad_perm:[2,3,0,1] row_mask:0xf bank_mask:0xf""")
            self.xrow_reduce("v_max_f32", W+4, W+5)
            a(f"""v_sub_f32 v{w}, v{m}, v{W+4}
            v_exp_f32 v{w}, v{w}
            s_nop 0
            v_mul_f32 v{L}, v{w}, v{l}
            s_nop 1
            v_add_f32_dpp v{L}, v{L}, v{L} quad_perm:[1,0,3,2] row_mask:0xf bank_mask:0xf
            s_nop 1
            v_add_f32_dpp v{L}, v{L}, v{L} quad_perm:[2,3,0,1] row_mask:0xf bank_mask:0xf""")
            self.xrow_reduce("v_add_f32", L, W+5)
            a(f"v_cvt_pk_bf16_f32 v{w}, v{w}, v{w}")
        a("s_waitcnt vmcnt(0)")
        words = [S+1, S+3, S+5, S+7]
        for q in range(8): words += [SA + 4*q + 1, SA + 4*q + 3]
        self.tagcheck(words, t+1, lp)
        self.stamp(9)
        for q in range(8): a(f"v_mov_b32 v{SA+4*q+1}, v{SA+4*q+2}")
        first = True
        for b in range(2):
            for k in range(4):
                r = SA + 16*b + 4*k
                A = A0 + 2*(k % 2)
                a(f"""v_mov_b32_dpp v{W+6}, v{W+b} quad_perm:[{k},{k},{k},{k}] row_mask:0xf bank_mask:0xf
                s_nop 0
                v_and_b32 v{A}, v{W+6}, v{MSK[b][0]}
                v_and_b32 v{A+1}, v{W+6}, v{MSK[b][1]}
                s_nop 1""")
                c = "0" if first else f"v[{ACC}:{ACC+3}]"
                first = False
                a(f"v_mfma_f32_16x16x16_bf16 v[{ACC}:{ACC+3}], v[{A}:{A+1}], v[{r}:{r+1}], {c}")
        a(f"""
        v_cmp_eq_u32 vcc, 1, v{V_G}
        s_nop 1
        v_cndmask_b32 v{W+2}, v{W+2}, v{W+3}, vcc
        v_rcp_f32 v{W+2}, v{W+2}
        s_nop 7
        """)
        for r in range(4): a(f"v_mul_f32 v{ACC+r}, v{W+2}, v{ACC+r}")
        a(f"""
        v_cvt_pk_bf16_f32 v{t+4}, v{ACC}, v{ACC+1}
        v_cvt_pk_bf16_f32 v{t+5}, v{ACC+2}, v{ACC+3}
        v_lshlrev_b32 v{t+6}, 7, v{V_G}
        v_lshl_add_u32 v{t+6}, v{V_J16}, 3, v{t+6}
        v_add_u32 v{t+6}, {VEC1}, v{t+6}
        v_cmp_gt_u32 vcc, 32, v{V_LANE}
        s_and_saveexec_b64 s[70:71], vcc
        ds_write_b64 v{t+6}, v[{t+4}:{t+5}]
        s_mov_b64 exec, s[70:71]
        """)
        self.wait_flag(F_LANDED, 15, sleep=1)
        self.read_w_lds(LW2, PA)
        self.vec_to_x(VEC1, X)
        self.diag_mfma(X, PA, ACC, A0, A1)
        a(f"""s_lshl_b32 s67, s72, 1
        s_add_u32 s67, s67, s73""")
        self.publish_h5(ACC, 1, "s67")
        self.stamp(10)
        self.dump_stamps()
        a("s_branch .Lend")

    def late_dma_issue(self, srdsgpr, srdbase, nbytes, rowstride_log2, s_off, ldsbase, vreg):
        a = self.a
        self.srd(srdsgpr, srdbase, nbytes)
        a(f"""v_lshlrev_b32 v{vreg}, {rowstride_log2 + 4}, v{V_G}
        v_lshl_add_u32 v{vreg}, v{V_J16}, 4, v{vreg}
        s_mov_b32 s67, {s_off}""")
        for k in range(16):
            a(f"s_mov_b32 m0, {ldsbase + k*1024}")
            a(f"s_nop 0")
            a(f"buffer_load_dwordx4 v{vreg}, s[{srdsgpr}:{srdsgpr+3}], s67 offen nt lds")
            if k < 15: a(f"s_add_u32 s67, s67, {1 << rowstride_log2}")

    def tail_w2(self):
        a = self.a
        t = T0
        a.label(".Lt2")
        st = self.ld_state
        st["ops"] += ["st0", "st1"]
        st["srd"] = None
        a(f"""
        v_lshlrev_b32 v{KREG+20}, 4, v{V_LANE}
        v_lshlrev_b32 v{KREG+21}, 17, v{V_G}
        v_lshl_add_u32 v{KREG+21}, v{V_J16}, 4, v{KREG+21}
        v_lshlrev_b32 v{KREG+22}, 14, v{V_G}
        v_lshl_add_u32 v{KREG+22}, v{V_J16}, 4, v{KREG+22}
        v_mov_b32 v{KREG+23}, {FLAGS}
        """)
        self.loader_emit(self.ld_next, 240, True, st)
        for idx in range(st["landed"] // 16 * 16 + 15, 240, 16):
            if idx >= st["landed"]: self.loader_wait(idx, st)
        self.stamp_w2(10)
        a(f"""s_cmp_ge_u32 s2, 128
        s_cbranch_scc1 .Lt2end
        s_lshl_b32 s64, s2, 12
        s_add_u32 s64, s64, {H5}
        v_lshlrev_b32 v{t}, 6, v{V_J16}
        v_lshl_add_u32 v{t}, v{V_G}, 4, v{t}
        """)
        a(f"""s_lshr_b32 s67, s2, 3
        s_lshl_b32 s67, s67, 7
        s_add_u32 s67, s67, {FL_H5}""")
        self.sgate("s67", 16, sleep=self.o.get("gsleep", 3))
        lp = a.newlabel("h5")
        a.label(lp)
        for u in range(4):
            a(f"buffer_load_dwordx4 v[{SA+4*u}:{SA+4*u+3}], v{t}, {WS}, s64 offen offset:{1024*u} sc1")
        a("s_waitcnt vmcnt(0)")
        words = []
        for q in range(4): words += [SA + 4*q + 1, SA + 4*q + 3]
        self.tagcheck(words, t+1, lp, sleep=1)
        self.stamp_w2(11)
        for u in range(4):
            r = SA + 4*u
            a(f"""v_lshlrev_b32 v{t+4}, 16, v{r}
            v_and_b32 v{t+5}, 0xffff0000, v{r}
            v_lshlrev_b32 v{t+6}, 16, v{r+2}
            v_and_b32 v{t+7}, 0xffff0000, v{r+2}""")
            for k in range(4):
                if u == 0: a(f"v_mov_b32 v{ACC+k}, v{t+4+k}")
                else: a(f"v_add_f32 v{ACC+k}, v{ACC+k}, v{t+4+k}")
        for sh in (8, 4, 2, 1):
            a("s_nop 1")
            for k in range(4):
                a(f"v_add_f32_dpp v{ACC+k}, v{ACC+k}, v{ACC+k} row_ror:{sh} row_mask:0xf bank_mask:0xf")
        a(f"""
        v_cvt_pk_bf16_f32 v{t+4}, v{ACC}, v{ACC+1}
        v_cvt_pk_bf16_f32 v{t+5}, v{ACC+2}, v{ACC+3}
        s_and_b32 s65, s2, 15
        s_lshr_b32 s66, s65, 2
        s_lshr_b32 s67, s66, 1
        s_lshl_b32 s67, s67, 11
        s_lshr_b32 s68, s2, 6
        s_lshl_b32 s68, s68, 10
        s_add_u32 s67, s67, s68
        s_bfe_u32 s68, s2, 0x20004
        s_lshl_b32 s68, s68, 8
        s_add_u32 s67, s67, s68
        s_and_b32 s68, s66, 1
        s_lshl_b32 s68, s68, 3
        s_add_u32 s67, s67, s68
        s_and_b32 s68, s65, 3
        s_lshl_b32 s68, s68, 6
        s_add_u32 s67, s67, s68
        v_lshlrev_b32 v{t+1}, 4, v{V_G}
        """)
        self.srd(56, 38, 4096)
        a(f"""
        v_cmp_eq_u32 vcc, 0, v{V_J16}
        s_and_saveexec_b64 s[70:71], vcc
        buffer_store_dwordx2 v[{t+4}:{t+5}], v{t+1}, s[56:59], s67 offen
        s_mov_b64 exec, s[70:71]
        s_cmp_lg_u32 s2, 0
        s_cbranch_scc1 .Lt2end
        v_mov_b32 v{t+1}, 0
        v_mov_b32 v{t+2}, s{S_TAG}
        s_mov_b64 exec, 1
        buffer_store_dword v{t+2}, v{t+1}, {WS}, 0 offen
        s_mov_b64 exec, -1
        """)
        a.label(".Lt2end")
        self.stamp_w2(12)
        self.dump_stamps()
        a("s_branch .Lend")

    def h3_flag(self):
        a = self.a
        a(f"""s_lshl_b32 s64, s{S_AHALF}, 11
        s_lshl_b32 s65, s{S_AB}, 5
        s_add_u32 s64, s64, s65
        s_lshr_b32 s65, s{S_AS}, 3
        s_lshl_b32 s65, s65, 2
        s_add_u32 s64, s64, s65
        s_add_u32 s64, s64, {FL_H3}
        s_and_b32 s65, s{S_AS}, 7
        """)
        self.pub_flag("s64", cond="s_cmp_eq_u32 s65, 5", nrep=16)
    def tail_w3(self):
        a = self.a
        t = T0
        m = M0_
        a.label(".Lt3")
        a(f"""
        v_lshlrev_b32 v{t}, 5, v{V_J16}
        v_add_u32 v{t}, {LBUF}, v{t}
        ds_read_b128 v[{QB}:{QB+3}], v{t}
        ds_read_b128 v[{QB+4}:{QB+7}], v{t} offset:16
        s_waitcnt lgkmcnt(0)
        v_add_f32 v{QB}, v{QB}, v{QB+1}
        v_add_f32 v{QB+2}, v{QB+2}, v{QB+3}
        v_add_f32 v{QB+4}, v{QB+4}, v{QB+5}
        v_add_f32 v{QB+6}, v{QB+6}, v{QB+7}
        v_add_f32 v{QB}, v{QB}, v{QB+2}
        v_add_f32 v{QB+4}, v{QB+4}, v{QB+6}
        v_add_f32 v{t+6}, v{QB}, v{QB+4}
        v_mov_b32 v{t+4}, v{m}
        v_mov_b32 v{t+5}, s{S_TAG}
        v_mov_b32 v{t+7}, s{S_TAG}
        v_lshlrev_b32 v{t}, 11, v{V_J16}
        s_lshl_b32 s64, s{S_AHALF}, 15
        s_lshl_b32 s65, s{S_AB}, 10
        s_add_u32 s64, s64, s65
        s_lshl_b32 s65, s{S_AS}, 4
        s_add_u32 s64, s64, s65
        s_add_u32 s64, s64, {H3S}
        v_cmp_gt_u32 vcc, 16, v{V_LANE}
        s_and_saveexec_b64 s[70:71], vcc
        buffer_store_dwordx4 v[{t+4}:{t+7}], v{t}, {WS}, s64 offen sc1
        s_mov_b64 exec, s[70:71]
""")
        if not self.o.get("h3early", 0): self.h3_flag()
        self.stamp(9)
        self.dump_stamps()
        a("s_branch .Lend")

    def tail_w47(self):
        a = self.a
        t = T0
        a.label(".Lt47")
        a(f"s_sub_u32 s72, s{S_WAVE}, 4")
        VR = VREG
        a(f"""
        v_and_b32 v{t+2}, 1, v{V_J16}
        v_and_b32 v{t+3}, 2, v{V_J16}
        v_lshl_or_b32 v{t+2}, v{t+3}, 2, v{t+2}
        v_lshrrev_b32 v{t+3}, 1, v{V_J16}
        v_and_b32 v{t+3}, 6, v{t+3}
        v_or_b32 v{t+2}, v{t+2}, v{t+3}
        v_xor_b32 v{t+2}, v{t+2}, v{V_G}
        v_lshlrev_b32 v{t+2}, 4, v{t+2}
        v_lshl_add_u32 v{t+2}, v{V_J16}, 8, v{t+2}
        s_lshl_b32 s66, s72, 13
        v_add_u32 v{t+2}, s66, v{t+2}
        v_lshlrev_b32 v{t+8}, 11, v{V_G}
        v_lshl_add_u32 v{t+8}, v{V_J16}, 4, v{t+8}
        s_add_u32 s66, s66, {LV}
        v_add_u32 v{t+8}, s66, v{t+8}            ; V addr
        """)
        for s_ in range(4):
            a(f"v_xor_b32 v{t+4+s_}, {s_*64}, v{t+2}")
        self.wait_flag(F_LANDED, 10, sleep=1)
        for tau in range(2):
            for s_ in range(4):
                r = KREG + 16*tau + 4*s_
                a(f"ds_read_b128 v[{r}:{r+3}], v{t+4+s_} offset:{LK + tau*4096}")
        self.stamp(9)
        self.wait_flag(F_QB, 4)
        QF = SA + 32
        a(f"""v_and_b32 v{t+1}, 3, v{V_J16}
        v_lshlrev_b32 v{t+1}, 8, v{t+1}
        v_lshl_add_u32 v{t+1}, v{V_G}, 4, v{t+1}
        v_add_u32 v{t+1}, {QBL}, v{t+1}""")
        for s in range(4):
            a(f"ds_read_b128 v[{QF+4*s}:{QF+4*s+3}], v{t+1} offset:{64*s}")
        a("s_waitcnt lgkmcnt(0)")
        SB = SA + 48
        for s in range(4):
            for tau in range(2):
                c = "0" if s == 0 else f"v[{SB+4*tau}:{SB+4*tau+3}]"
                a(f"v_mfma_f32_16x16x32_bf16 v[{SB+4*tau}:{SB+4*tau+3}], v[{KREG+16*tau+4*s}:{KREG+16*tau+4*s+3}], v[{QF+4*s}:{QF+4*s+3}], {c}")
        m = M0_
        a(f"""s_nop 7
        s_nop 1
        v_max3_f32 v{m}, v{SB}, v{SB+1}, v{SB+2}
        v_max3_f32 v{m}, v{m}, v{SB+3}, v{SB+4}
        v_max3_f32 v{m}, v{m}, v{SB+5}, v{SB+6}
        v_max_f32 v{m}, v{m}, v{SB+7}""")
        self.xrow_reduce("v_max_f32", m, m+2)
        for r in range(8): a(f"v_sub_f32 v{SB+r}, v{SB+r}, v{m}")
        for r in range(8): a(f"v_exp_f32 v{SB+r}, v{SB+r}")
        a(f"""s_nop 0
        v_add_f32 v{m+1}, v{SB}, v{SB+1}
        v_add_f32 v{m+2}, v{SB+2}, v{SB+3}
        v_add_f32 v{m+3}, v{SB+4}, v{SB+5}
        v_add_f32 v{m+4}, v{SB+6}, v{SB+7}
        v_add_f32 v{m+1}, v{m+1}, v{m+2}
        v_add_f32 v{m+3}, v{m+3}, v{m+4}
        v_add_f32 v{m+1}, v{m+1}, v{m+3}
        v_cvt_pk_bf16_f32 v{m+4}, v{SB}, v{SB+1}
        v_cvt_pk_bf16_f32 v{m+5}, v{SB+2}, v{SB+3}
        v_cvt_pk_bf16_f32 v{m+6}, v{SB+4}, v{SB+5}
        v_cvt_pk_bf16_f32 v{m+7}, v{SB+6}, v{SB+7}
        s_lshl_b32 s65, s72, 8
        s_add_u32 s65, s65, {PBL}
        v_lshlrev_b32 v{t+1}, 6, v{V_J16}
        v_lshl_add_u32 v{t+1}, v{V_G}, 3, v{t+1}
        v_add_u32 v{t+1}, s65, v{t+1}
        v_cmp_gt_u32 vcc, 4, v{V_J16}
        s_and_saveexec_b64 s[70:71], vcc
        ds_write_b64 v{t+1}, v[{m+4}:{m+5}]
        ds_write_b64 v{t+1}, v[{m+6}:{m+7}] offset:32
        s_mov_b64 exec, s[70:71]
        """)
        self.xrow_reduce("v_add_f32", m+1, m+2)
        PX = QB
        a(f"""
        v_lshrrev_b32 v{t+1}, 3, v{V_J16}
        v_lshlrev_b32 v{t+1}, 6, v{t+1}
        v_lshl_add_u32 v{t+1}, v{V_G}, 4, v{t+1}
        v_add_u32 v{t+1}, s65, v{t+1}
        s_waitcnt lgkmcnt(0)
        ds_read_b128 v[{PX}:{PX+3}], v{t+1}
        ds_read_b128 v[{PX+4}:{PX+7}], v{t+1} offset:128
        s_waitcnt lgkmcnt(0)
        """)
        self.stamp(10)

        self.wait_flag(F_LANDED, 12, sleep=1)
        for k in range(8):
            a(f"ds_read_b128 v[{VR+4*k}:{VR+4*k+3}], v{t+8} offset:{256*k}")
        sets = [QB+8, QB+12, QB+16, QB+20]
        OA = SA
        def perms(k, hp):
            A = sets[(2*k + hp) % 4]
            for kk in range(4):
                a(f"v_perm_b32 v{A+kk}, v{PX+4*hp+k//2}, v{PX+4*hp+k//2}, v{SEL[k%2][kk]}")
        perms(0, 0); perms(0, 1)
        for k in range(8):
            a(f"s_waitcnt lgkmcnt({7-k})")
            for hp in range(2):
                A = sets[(2*k + hp) % 4]
                c = "0" if k == 0 else f"v[{OA+4*hp}:{OA+4*hp+3}]"
                if k == 0 and hp == 0: a("s_nop 1")
                a(f"v_mfma_f32_16x16x32_bf16 v[{OA+4*hp}:{OA+4*hp+3}], v[{A}:{A+3}], v[{VR+4*k}:{VR+4*k+3}], {c}")
                if k + 1 < 8: perms(k + 1, hp)
                else: a("s_nop 1")
        a(f"""s_nop 7
        s_nop 1
        s_lshl_b32 s65, s72, 11
        s_add_u32 s65, s65, {OBL}
        v_lshlrev_b32 v{t+1}, 4, v{V_LANE}
        v_add_u32 v{t+1}, s65, v{t+1}
        ds_write_b128 v{t+1}, v[{OA}:{OA+3}]
        ds_write_b128 v{t+1}, v[{OA+4}:{OA+7}] offset:1024
        s_lshl_b32 s65, s72, 5
        s_add_u32 s65, s65, {OBS}
        v_lshlrev_b32 v{t+1}, 3, v{V_J16}
        v_add_u32 v{t+1}, s65, v{t+1}
        v_cmp_gt_u32 vcc, 4, v{V_LANE}
        s_and_saveexec_b64 s[70:71], vcc
        ds_write_b64 v{t+1}, v[{m}:{m+1}]
        s_mov_b64 exec, s[70:71]
        s_waitcnt lgkmcnt(0)
        v_mov_b32 v{t+1}, {FLAGS + 4*F_BARR}
        v_mov_b32 v{t+2}, 1
        s_mov_b64 exec, 1
        ds_add_rtn_u32 v{t+3}, v{t+1}, v{t+2}
        s_waitcnt lgkmcnt(0)
        s_mov_b64 exec, -1
        v_readfirstlane_b32 s65, v{t+3}
        s_nop 1
        s_cmp_lg_u32 s65, 3
        s_cbranch_scc1 .Lt47end
        """)
        a(f"""
        v_lshlrev_b32 v{t+1}, 4, v{V_LANE}
        v_add_u32 v{t+1}, {OBL}, v{t+1}
        v_lshrrev_b32 v{t+2}, 1, v{V_G}
        v_lshlrev_b32 v{t+2}, 3, v{t+2}
        v_add_u32 v{t+2}, {OBS}, v{t+2}
        """)
        OZ = SA
        ST = SA + 32
        for z in range(4):
            for hp in range(2):
                a(f"ds_read_b128 v[{OZ+8*z+4*hp}:{OZ+8*z+4*hp+3}], v{t+1} offset:{z*2048+hp*1024}")
        a("s_waitcnt lgkmcnt(4)")
        for z in range(4):
            for hp in range(2):
                a(f"ds_read_b64 v[{ST+4*z+2*hp}:{ST+4*z+2*hp+1}], v{t+2} offset:{z*32+hp*16}")
        a("s_waitcnt lgkmcnt(0)")
        F = SA + 48
        for hp in range(2):
            ms = [ST+4*z+2*hp for z in range(4)]
            a(f"v_max3_f32 v{F}, v{ms[0]}, v{ms[1]}, v{ms[2]}")
            a(f"v_max_f32 v{F}, v{F}, v{ms[3]}")
            for z in range(4): a(f"v_sub_f32 v{F+1+z}, v{ms[z]}, v{F}")
            for z in range(4): a(f"v_exp_f32 v{F+1+z}, v{F+1+z}")
            a("s_nop 0")
            a(f"v_mul_f32 v{F+5}, v{F+1}, v{ms[0]+1}")
            for z in range(1, 4): a(f"v_fmac_f32 v{F+5}, v{F+1+z}, v{ms[z]+1}")
            for r in range(4):
                a(f"v_mul_f32 v{F+6+r}, v{F+1}, v{OZ+4*hp+r}")
                for z in range(1, 4):
                    a(f"v_fmac_f32 v{F+6+r}, v{F+1+z}, v{OZ+8*z+4*hp+r}")
            q = QB + 8*hp
            a(f"""v_cvt_pk_bf16_f32 v{q}, v{F+6}, v{F+7}
            v_cvt_pk_bf16_f32 v{q+2}, v{F+8}, v{F+9}
            v_mov_b32 v{q+1}, s{S_TAG}
            v_mov_b32 v{q+3}, s{S_TAG}
            v_mov_b32 v{q+4}, v{F}
            v_mov_b32 v{q+5}, s{S_TAG}
            v_mov_b32 v{q+6}, v{F+5}
            v_mov_b32 v{q+7}, s{S_TAG}""")
        a(f"""
        s_lshr_b32 s64, s2, 7
        s_lshl_b32 s64, s64, 5
        s_and_b32 s65, s2, 7
        s_lshl_b32 s65, s65, 2
        s_add_u32 s64, s64, s65
        s_lshl_b32 s64, s64, 4
        s_bfe_u32 s65, s2, 0x40003
        s_add_u32 s64, s64, s65
        s_lshl_b32 s66, s64, 9
        s_add_u32 s66, s66, {H3B}
        s_add_u32 s67, s66, 16384
        s_lshl_b32 s68, s64, 4
        s_add_u32 s68, s68, {H3BS}
        v_lshrrev_b32 v{t+1}, 1, v{V_G}
        v_lshlrev_b32 v{t+2}, 13, v{t+1}
        v_lshl_add_u32 v{t+2}, v{V_J16}, 5, v{t+2}
        v_and_b32 v{t+3}, 1, v{V_G}
        v_lshl_add_u32 v{t+2}, v{t+3}, 4, v{t+2}
        buffer_store_dwordx4 v[{QB}:{QB+3}], v{t+2}, {WS}, s66 offen sc1
        buffer_store_dwordx4 v[{QB+8}:{QB+11}], v{t+2}, {WS}, s67 offen sc1
        v_lshlrev_b32 v{t+1}, 8, v{t+1}
        v_and_b32 v{t+3}, 31, v{V_LANE}
        v_cmp_eq_u32 vcc, 0, v{t+3}
        s_and_saveexec_b64 s[70:71], vcc
        buffer_store_dwordx4 v[{QB+4}:{QB+7}], v{t+1}, {WS}, s68 offen sc1
        buffer_store_dwordx4 v[{QB+12}:{QB+15}], v{t+1}, {WS}, s68 offen offset:512 sc1
        s_mov_b64 exec, s[70:71]
        s_and_b32 s64, s2, 7
        s_lshl_b32 s64, s64, 9
        s_lshr_b32 s65, s2, 7
        s_lshl_b32 s65, s65, 5
        s_add_u32 s64, s64, s65
        s_bfe_u32 s65, s2, 0x30004
        s_lshl_b32 s65, s65, 2
        s_add_u32 s64, s64, s65
        s_add_u32 s64, s64, {FL_H3B}
        """)
        self.pub_flag("s64", cond="s_bitcmp1_b32 s2, 3", nrep=4)
        a.label(".Lt47end")
        self.stamp(11)
        self.dump_stamps()
        a("s_branch .Lend")

    def build(self):
        a = self.a
        name = KNAME + "_kernel"
        a.raw(HEADER.rstrip())
        a.raw(f"; @launch grid=(256,1,1) block=(512,1,1) lds={LDS_TOTAL}")
        a.raw('.amdgcn_target "amdgcn-amd-amdhsa--gfx950"')
        kernel_begin(a, name)
        self.prologue()
        self.w0_front()
        self.w1_front()
        self.w2_front()
        self.w3_front()
        self.w47_front()
        self.attn()
        self.tail_w0()
        self.tail_w1()
        self.tail_w2()
        self.tail_w3()
        self.tail_w47()
        a.label(".Lend")
        a("s_endpgm")
        return a.text() + kernel_desc(name, 256, 102, 256)

if __name__ == "__main__":
    import argparse
    ap = argparse.ArgumentParser()
    ap.add_argument("-o", default="k2.s")
    ap.add_argument("--diag", action="store_true")
    ap.add_argument("--depth", type=int, default=24)
    ap.add_argument("--ldepth", type=int, default=4)
    ap.add_argument("--opt", action="append", default=[])
    args = ap.parse_args()
    opts = {k: int(v) for k, v in (x.split("=") for x in args.opt)}
    open(args.o, "w").write(G(diag=args.diag, depth=args.depth, ldepth=args.ldepth, opts=opts).build())
```

```python
import sys, struct
from asmlib import *

H1A  = 0x040000
H1B  = 0x080000
H2   = 0x0C0000
H4   = 0x100000
H3B  = 0x140000
H3BS = 0x1C0000
H3S  = 0x1C8000
H5   = 0x200000
H3   = 0x400000
FL    = 0x010000
FL_H1A = FL
FL_H4  = FL + 32*128
FL_H2  = FL + 64*128
FL_H3  = FL + 96*128
FL_H3B = FL + 128*128
FL_H5  = FL + 160*128
FL_H1B = FL + 192*128
LOC = 0x800000
STAMP = 0x1000000
CKV   = 0x00000
LK, LV = 0x0000, 0x8000
LW0, LW1, LW2 = 0x10000, 0x14000, 0x18000
QABS  = 0x20000
PBUF  = 0x24000
MAXB  = 0x25000
LBUF  = 0x25200
FLAGS = 0x25400
VEC0  = 0x25500
VEC1  = 0x25600
OBS   = 0x25700
QBL   = 0x25800
PBL   = 0x25C00
OBL   = 0x26000
LDS_TOTAL = 0x28000
F_LANDED, F_QABS, F_CLR, F_QB, F_BARR, F_WUV, F_WO, F_WOB, F_G3, F_QPUB, F_ISSUED, F_G4, F_G2, F_G1, F_G2I, F_REL0, F_REL1, F_REL2, F_G1D = range(19)

TAGC = 0x9E3779B9
CSF = (128 ** -0.5) * 1.4426950408889634
CS = struct.unpack("<I", struct.pack("<f", CSF))[0]

def Lsw(i):
    return (i & 1) | ((i & 2) << 2) | ((i & 4) >> 1) | ((i & 8) >> 1)

S_WAVE = 3
S_TAG, S_H, S_J, S_SPIN = 44, 45, 46, 47
WS = "s[48:51]"
S_V = 62
S_LAND = 63
S_AB, S_AS, S_AHALF = 74, 75, 76
S_KOFF = 79
V_LANE, V_J16, V_G = 1, 2, 3
SEL = [[4, 5, 6, 7], [8, 9, 10, 11]]
MSK = [[12, 13], [14, 15]]
AD_SA, AD_QB, AD_TRL, AD_TRH = 16, 20, 24, 28
T0 = 32
KREG = 48
SA = 80
PA = 144
VREG = 176
QB = 208
ACC = 240
M0_ = 244
V_ST = 255
WAVE2TILE = [7, 4, 0, 1, 2, 3, 5, 6]

class G:
    def __init__(self, diag=False, depth=24, spin_lim=200000, ldepth=4, opts=None):
        self.a = Asm()
        self.diag = diag
        self.depth = depth
        self.ldepth = ldepth
        self.spin_lim = spin_lim
        self.o = dict(kdelay=128, wqdelay=16, clrdelay=0)
        if opts: self.o.update(opts)
    def stamp(self, k):
        if self.diag:
            assert k < 16
            self.a(f"""s_memrealtime s[100:101]
            s_waitcnt lgkmcnt(0)
            v_writelane_b32 v{V_ST}, s100, {k}""")
    def stamp_w2(self, k):
        if not self.o.get('ldstamps'): self.stamp(k)
    def dump_stamps(self, n=16):
        a = self.a
        if not self.diag: return
        a(f"""s_lshl_b32 s64, s2, 3
        s_add_u32 s64, s64, s{S_WAVE}
        s_lshl_b32 s64, s64, 6
        s_add_u32 s64, s64, {STAMP}
        v_lshlrev_b32 v33, 2, v{V_LANE}
        s_mov_b64 exec, 0xffff
        buffer_store_dword v{V_ST}, v33, {WS}, s64 offen
        s_mov_b64 exec, -1""")
    def srd(self, s, base, nbytes):
        srd(self.a, s, base, base + 1, nbytes)
    def spin_fail(self, retry):
        a = self.a
        a(f"""s_add_u32 s{S_SPIN}, s{S_SPIN}, 1
        s_cmp_lt_u32 s{S_SPIN}, {self.spin_lim}
        s_cbranch_scc1 {retry}
        s_branch .Lend""")
    def wait_flag(self, idx, target, vt=T0+14, va=T0+15, dst="s65", sleep=0):
        a = self.a
        lp = a.newlabel("wf"); ok = a.newlabel("wfok")
        a(f"v_mov_b32 v{va}, {FLAGS + 4*idx}")
        a.label(lp)
        a(f"""ds_read_b32 v{vt}, v{va}
        s_waitcnt lgkmcnt(0)
        v_readfirstlane_b32 {dst}, v{vt}
        s_nop 1
        s_cmp_ge_u32 {dst}, {target}
        s_cbranch_scc1 {ok}""")
        if sleep: a(f"s_sleep {sleep}")
        self.spin_fail(lp)
        a.label(ok)
    def wait_landed(self, target):
        a = self.a
        sk = a.newlabel("wl")
        a(f"""s_cmp_ge_u32 s{S_LAND}, {target}
        s_cbranch_scc1 {sk}""")
        self.wait_flag(F_LANDED, target, dst=f"s{S_LAND}")
        a.label(sk)
    def set_flag(self, idx, val=1, vt=T0+14, va=T0+15, add=False):
        a = self.a
        a(f"v_mov_b32 v{va}, {FLAGS + 4*idx}")
        a(f"v_mov_b32 v{vt}, {val}")
        if add:
            a("s_mov_b64 exec, 1")
            a(f"ds_add_u32 v{va}, v{vt}")
            a("s_mov_b64 exec, -1")
        else:
            a(f"ds_write_b32 v{va}, v{vt}")
    def load_tag(self):
        self.a(f"s_load_dword s{S_TAG}, s[42:43], 0")
    def get_tag(self):
        self.a(f"""s_waitcnt lgkmcnt(0)
        s_add_u32 s{S_TAG}, s{S_TAG}, {TAGC}""")
    def poll_light(self, voff, soff, nlanes, sleep=2, vd=T0+12):
        a = self.a
        lp = a.newlabel("pl"); ok = a.newlabel("plok")
        a(f"""v_cmp_gt_u32 vcc, {nlanes}, v{V_LANE}
        s_and_saveexec_b64 s[70:71], vcc""")
        a.label(lp)
        a(f"""buffer_load_dwordx2 v[{vd}:{vd+1}], v{voff}, {WS}, {soff} offen sc1
        s_waitcnt vmcnt(0)
        v_cmp_ne_u32 vcc, s{S_TAG}, v{vd+1}
        s_nop 1
        s_cbranch_vccz {ok}""")
        if sleep: a(f"s_sleep {sleep}")
        self.spin_fail(lp)
        a.label(ok)
        a("s_mov_b64 exec, s[70:71]")
    def sgate(self, s_off, n, lim=None, sleep=2):
        a = self.a
        lim = lim or self.o.get("sgate_lim", 4000)
        assert n in (8, 16)
        B = 80
        a(f"""s_add_u32 s60, s42, {s_off}
        s_addc_u32 s61, s43, 0
        s_mov_b32 s65, 0""")
        lp = a.newlabel("sg"); ok = a.newlabel("sgok"); rt = a.newlabel("sgrt")
        a.label(lp)
        a(f"s_load_dwordx{n} s[{B}:{B+n-1}], s[60:61], 0 glc")
        a("s_waitcnt lgkmcnt(0)")
        for i in range(n):
            a(f"s_cmp_lg_u32 s{B+i}, s{S_TAG}")
            a(f"s_cbranch_scc1 {rt}")
        a(f"s_branch {ok}")
        a.label(rt)
        a(f"""s_sleep {sleep}
        s_add_u32 s65, s65, 1
        s_cmp_lt_u32 s65, {lim}
        s_cbranch_scc1 {lp}""")
        a.label(ok)
    def pub_flag(self, s_off, cond=None, nrep=1, vt=T0+14, va=T0+15):
        a = self.a
        sk = a.newlabel("pf")
        if cond:
            a(cond)
            a(f"s_cbranch_scc0 {sk}")
        a(f"""v_lshlrev_b32 v{va}, 7, v{V_LANE}
        v_mov_b32 v{vt}, s{S_TAG}
        s_mov_b64 exec, {(1 << nrep) - 1}
        buffer_store_dword v{vt}, v{va}, {WS}, {s_off} offen sc1
        s_mov_b64 exec, -1""")
        a.label(sk)
    def tagcheck(self, words, acc, retry, sleep=2, onfail=None):
        a = self.a
        a(f"v_xor_b32 v{acc}, s{S_TAG}, v{words[0]}")
        for w in words[1:]:
            a(f"v_bitop3_b32 v{acc}, v{acc}, v{w}, s{S_TAG} bitop3:0xf6")
        ok = a.newlabel("tok")
        a(f"""v_cmp_ne_u32 vcc, 0, v{acc}
        s_nop 1
        s_cbranch_vccz {ok}""")
        if onfail: onfail()
        else:
            if sleep: a(f"s_sleep {sleep}")
            self.spin_fail(retry)
        a.label(ok)
    def xrow_reduce(self, op, x, tmp, steps=(16, 32)):
        a = self.a
        for st in steps:
            a(f"""v_mov_b32 v{tmp}, v{x}
            s_nop 1
            v_permlane{st}_swap_b32 v{x}, v{tmp}
            s_nop 1
            {op} v{x}, v{x}, v{tmp}""")
    def diag_mfma(self, X, W, acc, A0, A1, n=16, pre=None, pre_first=False):
        a = self.a
        def perms(t):
            A = A0 if t % 2 == 0 else A1
            for k in range(4):
                a(f"v_perm_b32 v{A+k}, v{X + t//2}, v{X + t//2}, v{SEL[t%2][k]}")
        perms(0)
        for t in range(n):
            A = A0 if t % 2 == 0 else A1
            if pre and pre_first: pre(t)
            if t + 1 < n: perms(t + 1)
            else: a("s_nop 1")
            if pre and not pre_first: pre(t)
            c = "0" if t == 0 else f"v[{acc}:{acc+3}]"
            a(f"v_mfma_f32_16x16x32_bf16 v[{acc}:{acc+3}], v[{A}:{A+3}], v[{W+4*t}:{W+4*t+3}], {c}")
    def publish_granule(self, acc, q, voff, soff, local=False):
        a = self.a
        a("s_nop 7")
        a("s_nop 1")
        a(f"""v_cvt_pk_bf16_f32 v{q}, v{acc}, v{acc+1}
        v_cvt_pk_bf16_f32 v{q+2}, v{acc+2}, v{acc+3}
        v_mov_b32 v{q+1}, s{S_TAG}
        v_mov_b32 v{q+3}, s{S_TAG}""")
        if local:
            a(f"""s_add_u32 s69, {soff}, {LOC}
            buffer_store_dwordx4 v[{q}:{q+3}], v{voff}, {WS}, s69 offen""")
        a(f"buffer_store_dwordx4 v[{q}:{q+3}], v{voff}, {WS}, {soff} offen sc1")
    def poll_switch(self, sregs, retry, cnt="s69", after=3, sleep=0):
        a = self.a
        sk = a.newlabel("psw")
        a(f"""s_add_u32 {cnt}, {cnt}, 1
        s_cmp_lg_u32 {cnt}, {after}
        s_cbranch_scc1 {sk}""")
        for r in sregs: a(f"s_sub_u32 {r}, {r}, {LOC}")
        a.label(sk)
        if sleep: a(f"s_sleep {sleep}")
        self.spin_fail(retry)
    def lsb_pat(self, dst, vidx, tmp):
        a = self.a
        a(f"""v_lshlrev_b32 v{tmp}, 3, v{vidx}
        v_lshrrev_b32 v{tmp}, v{tmp}, s{S_TAG}""") if False else None
        a(f"""v_lshlrev_b32 v{tmp}, 3, v{vidx}
        v_mov_b32 v{tmp+1}, s{S_TAG}
        v_lshrrev_b32 v{tmp}, v{tmp}, v{tmp+1}""")
        for i in range(4):
            a(f"""v_bfe_u32 v{dst+i}, v{tmp}, {2*i}, 1
            v_bfe_u32 v{tmp+1}, v{tmp}, {2*i+1}, 1
            v_lshl_or_b32 v{dst+i}, v{tmp+1}, 16, v{dst+i}""")
    def gran_voff(self, v, tmp):
        a = self.a
        a(f"""v_lshrrev_b32 v{v}, 1, v{V_G}
        v_lshlrev_b32 v{v}, 9, v{v}
        v_lshl_add_u32 v{v}, v{V_J16}, 5, v{v}
        v_and_b32 v{tmp}, 1, v{V_G}
        v_lshl_add_u32 v{v}, v{tmp}, 4, v{v}""")
    def hqB(self, dst, tmp):
        self.a(f"""s_and_b32 {dst}, s2, 7
        s_lshl_b32 {dst}, {dst}, 2
        s_bfe_u32 {tmp}, s2, 0x20003
        s_add_u32 {dst}, {dst}, {tmp}""")

    def prologue(self):
        a = self.a
        t = T0
        a(f"""
        s_cmp_ge_u32 s2, 256
        s_cbranch_scc1 .Lend
        s_load_dwordx16 s[16:31], s[0:1], 0
        s_load_dwordx8 s[32:39], s[0:1], 64
        s_load_dwordx4 s[40:43], s[0:1], 96""")
        if self.diag:
            a(f"s_memrealtime s[98:99]")
            a(f"v_mov_b32 v{V_ST}, 0")
        a(f"""
        v_and_b32 v{V_LANE}, 63, v0
        v_lshrrev_b32 v{t}, 6, v0
        v_and_b32 v{V_J16}, 15, v{V_LANE}
        v_readfirstlane_b32 s{S_WAVE}, v{t}
        v_lshrrev_b32 v{V_G}, 4, v{V_LANE}
        v_lshlrev_b32 v{t+1}, 2, v{V_LANE}
        v_add_u32 v{t+1}, {FLAGS}, v{t+1}
        v_mov_b32 v{t+2}, 0
        ds_write_b32 v{t+1}, v{t+2}
        s_and_b32 s{S_H}, s2, 31
        s_lshr_b32 s{S_J}, s2, 5
        s_mov_b32 s{S_SPIN}, 0
        s_mov_b32 s{S_LAND}, 0
        s_lshr_b32 s{S_AB}, s2, 7
        s_and_b32 s{S_AS}, s2, 15
        s_bfe_u32 s64, s2, 0x20005
        s_lshl_b32 s64, s64, 4
        s_or_b32 s{S_AS}, s{S_AS}, s64
        s_bfe_u32 s{S_AHALF}, s2, 0x10004
        """)
        packed = 0
        for w, tl in enumerate(WAVE2TILE): packed |= tl << (4*w)
        a(f"""s_lshl_b32 s64, s{S_WAVE}, 2
        s_lshr_b32 s{S_V}, {packed}, s64
        s_and_b32 s{S_V}, s{S_V}, 15""")
        a(f"""
        v_and_b32 v{t}, 1, v{V_J16}
        v_bfe_u32 v{t+1}, v{V_J16}, 1, 2
        v_cmp_eq_u32 vcc, 1, v{t}
        v_mov_b32 v{t+2}, 0x01000c0c
        v_mov_b32 v{t+3}, 0x03020c0c
        v_mov_b32 v{t+4}, 0x0c0c0100
        v_mov_b32 v{t+5}, 0x0c0c0302
        v_mov_b32 v{t+6}, 0x0c0c0c0c
        v_cndmask_b32 v{t+2}, v{t+4}, v{t+2}, vcc
        v_cndmask_b32 v{t+3}, v{t+5}, v{t+3}, vcc
        """)
        for k in range(4):
            a(f"""v_cmp_eq_u32 vcc, {k}, v{t+1}
            s_nop 1
            v_cndmask_b32 v{SEL[0][k]}, v{t+6}, v{t+2}, vcc
            v_cndmask_b32 v{SEL[1][k]}, v{t+6}, v{t+3}, vcc""")
        a(f"""
        v_cmp_eq_u32 vcc, 1, v{t}
        v_mov_b32 v{t+2}, 0xffff0000
        v_mov_b32 v{t+4}, 0x0000ffff
        v_cndmask_b32 v{t+2}, v{t+4}, v{t+2}, vcc
        v_lshrrev_b32 v{t+3}, 1, v{V_J16}
        """)
        for sg in range(2):
            for rg in range(2):
                a(f"""v_cmp_eq_u32 vcc, {sg*2+rg}, v{t+3}
                s_nop 1
                v_cndmask_b32 v{MSK[sg][rg]}, 0, v{t+2}, vcc""")
        a(f"""
        s_waitcnt lgkmcnt(0)
        s_barrier
        """)
        if self.diag: a(f"v_writelane_b32 v{V_ST}, s98, 0")
        self.stamp(15)
        self.srd(48, 42, 268435456)
        a(f"""
        s_cmp_eq_u32 s{S_WAVE}, 0
        s_cbranch_scc1 .Lw0
        s_cmp_eq_u32 s{S_WAVE}, 1
        s_cbranch_scc1 .Lw1
        s_cmp_eq_u32 s{S_WAVE}, 2
        s_cbranch_scc1 .Lw2
        s_cmp_eq_u32 s{S_WAVE}, 3
        s_cbranch_scc1 .Lw3
        s_branch .Lw47
        """)
    def attn_addr(self):
        a = self.a
        t = T0
        a(f"""
        v_and_b32 v{t}, 1, v{V_J16}
        v_and_b32 v{t+1}, 2, v{V_J16}
        v_lshl_or_b32 v{t}, v{t+1}, 2, v{t}
        v_lshrrev_b32 v{t+1}, 1, v{V_J16}
        v_and_b32 v{t+1}, 6, v{t+1}
        v_or_b32 v{t}, v{t}, v{t+1}              ; L(j16)
        v_xor_b32 v{t}, v{t}, v{V_G}             ; u
        v_lshlrev_b32 v{t}, 4, v{t}
        v_lshl_add_u32 v{t}, v{V_J16}, 10, v{t}
        s_lshl_b32 s64, s{S_V}, 14
        """)
        for q in range(4):
            a(f"v_xor_b32 v{AD_QB+q}, {q*64}, v{t}")
        for q in range(4):
            a(f"v_add_u32 v{AD_SA+q}, s64, v{AD_QB+q}")
            a(f"v_add_u32 v{AD_QB+q}, {QABS}, v{AD_QB+q}")
        a(f"""
        v_lshrrev_b32 v{t}, 2, v{V_LANE}          ; rho
        v_and_b32 v{t+1}, 1, v{t}
        v_and_b32 v{t+2}, 2, v{t}
        v_lshl_or_b32 v{t+1}, v{t+2}, 2, v{t+1}
        v_lshrrev_b32 v{t+2}, 1, v{t}
        v_and_b32 v{t+2}, 6, v{t+2}
        v_or_b32 v{t+1}, v{t+1}, v{t+2}          ; L(rho)
        v_and_b32 v{t+2}, 3, v{V_LANE}           ; cgrp
        v_lshlrev_b32 v{t+3}, 1, v{t+2}
        s_and_b32 s65, s{S_V}, 1
        s_lshl_b32 s65, s65, 3
        v_or_b32 v{t+3}, s65, v{t+3}
        v_xor_b32 v{t+3}, v{t+3}, v{t+1}
        v_lshlrev_b32 v{t+3}, 4, v{t+3}
        v_lshl_add_u32 v{t+3}, v{t}, 10, v{t+3}
        s_lshr_b32 s65, s{S_V}, 1
        s_lshl_b32 s65, s65, 8
        v_add_u32 v{t+3}, s65, v{t+3}
        v_and_b32 v{t+2}, 1, v{t+2}
        v_lshl_or_b32 v{t+3}, v{t+2}, 3, v{t+3}
        """)
        for tt in range(4):
            x = ((tt >> 1) << 4) | ((tt & 1) << 3)
            a(f"v_xor_b32 v{AD_TRL+tt}, {x}, v{t+3}")
            a(f"v_add_u32 v{AD_TRH+tt}, 0x10000, v{AD_TRL+tt}")
    def pa_reg(self, sg, t):
        return PA + 16*sg + 4*t
    def tr_reads(self, sg):
        a = self.a
        for t in range(4):
            for tau in range(2):
                row0 = 32*sg + 16*tau
                base = AD_TRL + t if row0 < 64 else AD_TRH + t
                off = (row0 % 64) * 1024
                r = self.pa_reg(sg, t) + 2*tau
                a(f"ds_read_b64_tr_b16 v[{r}:{r+1}], v{base} offset:{off}")
    def sa_reads(self):
        a = self.a
        for s in range(16):
            if s == 12: a("s_waitcnt lgkmcnt(4)")
            a(f"ds_read_b128 v[{SA+4*s}:{SA+4*s+3}], v{AD_SA+(s&3)} offset:{(s>>2)*256}")

    def p1_issue(self, xbase, wbase, s_col):
        a = self.a
        t = T0
        self.srd(56, xbase, 2048)
        self.srd(52, wbase, 4194304)
        a(f"""
        v_lshrrev_b32 v{t+8}, 3, v{V_J16}
        v_lshlrev_b32 v{t+8}, 10, v{t+8}
        v_lshl_add_u32 v{t+8}, v{V_G}, 5, v{t+8}
        s_lshl_b32 s64, s{S_J}, 7
        v_lshlrev_b32 v{t+9}, 17, v{V_G}
        v_lshl_add_u32 v{t+9}, v{V_J16}, 4, v{t+9}
        s_lshl_b32 s66, s{S_J}, 19
        s_add_u32 s66, s66, {s_col}
        s_mov_b32 s67, s66
        buffer_load_dwordx4 v[{M0_}:{M0_+3}], v{t+8}, s[56:59], s64 offen
        buffer_load_dwordx4 v[{M0_+4}:{M0_+7}], v{t+8}, s[56:59], s64 offen offset:16
        """)
        for k in range(16):
            a(f"buffer_load_dwordx4 v[{SA+4*k}:{SA+4*k+3}], v{t+9}, s[52:55], s67 offen nt")
            if k < 15: a("s_add_u32 s67, s67, 8192")
    def p1_compute(self, extra, hbase, s_head):
        a = self.a
        t = T0
        a(f"s_waitcnt vmcnt({16 + extra})")
        def pre(k):
            a(f"s_waitcnt vmcnt({15 - k + extra})")
        self.diag_mfma(M0_, SA, ACC, t, t+4, pre=pre)
        self.get_tag()
        self.gran_voff(t+8, t+9)
        a(f"""
        s_lshl_b32 s64, {s_head}, 3
        s_add_u32 s64, s64, s{S_J}
        s_lshl_b32 s64, s64, 10
        s_add_u32 s64, s64, {hbase}
        """)
        self.publish_granule(ACC, t+12, t+8, "s64", local=(hbase == H1A))

    def w0_front(self):
        a = self.a
        t = T0
        a.label(".Lw0")
        if self.o.get("prio", 1): a("s_setprio 3")
        self.load_tag()
        a(f"s_lshl_b32 s68, s{S_H}, 8")
        self.p1_issue(16, 20, "s68")
        self.srd(56, 22, 4194304)
        a(f"""
        v_lshlrev_b32 v{t+7}, 15, v{V_J16}
        v_lshl_add_u32 v{t+7}, v{V_G}, 4, v{t+7}
        s_mov_b32 s67, s66
        """)
        for tt in range(4):
            for sp in range(4):
                r = PA + 16*tt + 4*sp
                a(f"buffer_load_dwordx4 v[{r}:{r+3}], v{t+7}, s[56:59], s67 offen offset:{64*sp} nt")
            if tt < 3: a("s_add_u32 s67, s67, 8192")
        self.attn_addr()
        self.p1_compute(16, H1A, f"s{S_H}")
        self.stamp(2)
        a(f"""
        v_lshrrev_b32 v{t}, 1, v{V_J16}
        v_lshlrev_b32 v{t}, 10, v{t}
        v_and_b32 v{t+1}, 1, v{V_J16}
        v_lshl_add_u32 v{t}, v{t+1}, 9, v{t}
        v_lshl_add_u32 v{t}, v{V_G}, 5, v{t}
        s_lshl_b32 s64, s{S_H}, 13
        s_add_u32 s64, s64, {H1A}
        """)
        a(f"""s_add_u32 s64, s64, {LOC}
        s_mov_b32 s69, 0""")
        if self.o.get("h1wait", 0): a(f"s_sleep {self.o['h1wait']}")
        lp = a.newlabel("h1")
        a.label(lp)
        for sp in range(4):
            for hf in range(2):
                r = QB + 8*sp + 4*hf
                a(f"buffer_load_dwordx4 v[{r}:{r+3}], v{t}, {WS}, s64 offen offset:{128*sp + 16*hf} sc1")
        a("s_waitcnt vmcnt(0)")
        words = []
        for q in range(8): words += [QB + 4*q + 1, QB + 4*q + 3]
        self.tagcheck(words, t+1, lp, onfail=lambda: self.poll_switch(["s64"], lp, after=4))
        self.set_flag(F_G1D)
        self.stamp(3)
        for sp in range(4):
            r = QB + 8*sp
            a(f"""v_mov_b32 v{r+1}, v{r+2}
            v_mov_b32 v{r+2}, v{r+4}
            v_mov_b32 v{r+3}, v{r+6}""")
        a("s_nop 1")
        D0 = KREG
        for sp in range(4):
            for tt in range(4):
                c = "0" if sp == 0 else f"v[{D0+4*tt}:{D0+4*tt+3}]"
                a(f"v_mfma_f32_16x16x32_bf16 v[{D0+4*tt}:{D0+4*tt+3}], v[{QB+8*sp}:{QB+8*sp+3}], v[{PA+16*tt+4*sp}:{PA+16*tt+4*sp+3}], {c}")
        a("s_nop 7"); a("s_nop 1")
        for tt in range(4):
            d = D0 + 4*tt
            a(f"v_add_f32 v{d}, v{d}, v{d+2}")
            a(f"v_add_f32 v{d+1}, v{d+1}, v{d+3}")
        a("s_nop 1")
        for tt in range(4):
            d = D0 + 4*tt
            a(f"v_permlane32_swap_b32 v{d}, v{d+1}")
        a("s_nop 1")
        for tt in range(4):
            d = D0 + 4*tt
            a(f"v_add_f32 v{d}, v{d}, v{d+1}")
        for tt in range(4):
            d = D0 + 4*tt
            a(f"v_mov_b32 v{d+1}, v{d}")
        a("s_nop 1")
        for tt in range(4):
            d = D0 + 4*tt
            a(f"v_permlane16_swap_b32 v{d}, v{d+1}")
        a("s_nop 1")
        for tt in range(4):
            d = D0 + 4*tt
            a(f"v_add_f32 v{d}, v{d}, v{d+1}")
            a(f"v_mul_f32 v{d}, {CS}, v{d}")
        a(f"""
        v_cvt_pk_bf16_f32 v{t+4}, v{D0}, v{D0+4}
        v_cvt_pk_bf16_f32 v{t+6}, v{D0+8}, v{D0+12}
        v_mov_b32 v{t+5}, s{S_TAG}
        v_mov_b32 v{t+7}, s{S_TAG}
        v_lshrrev_b32 v{t}, 1, v{V_G}
        v_lshlrev_b32 v{t}, 16, v{t}
        v_lshl_add_u32 v{t}, v{V_J16}, 4, v{t}
        s_lshl_b32 s64, s{S_H}, 3
        s_add_u32 s64, s64, s{S_J}
        s_lshl_b32 s64, s64, 8
        s_add_u32 s64, s64, {H2}
        """)
        a(f"""
        v_and_b32 v{t+1}, 1, v{V_G}
        v_cmp_eq_u32 vcc, 0, v{t+1}
        s_and_saveexec_b64 s[70:71], vcc
        buffer_store_dwordx4 v[{t+4}:{t+7}], v{t}, {WS}, s64 offen sc1
        s_mov_b64 exec, s[70:71]
        s_lshr_b32 s64, s{S_H}, 4
        s_lshl_b32 s64, s64, 11
        s_and_b32 s65, s{S_H}, 15
        s_lshl_b32 s65, s65, 2
        s_add_u32 s64, s64, s65
        s_add_u32 s64, s64, {FL_H2}
        s_and_b32 s65, s{S_H}, 7
        """)
        self.pub_flag("s64", cond=f"s_cmp_eq_u32 s65, s{S_J}", nrep=16)
        self.stamp(4)
        self.pre_sigma(0)
        self.pre_sigma(1)
        a(f"""s_and_b32 s69, s2, 31
        s_lshl_b32 s69, s69, 7
        s_add_u32 s69, s69, {FL_H2}""")
        self.sgate("s69", 16, sleep=self.o.get("g2sleep", 2))
        self.set_flag(F_G2)
        self.stamp(1)
        self.qabs_gather(0, mid=lambda: self.pre_sigma(2))
        self.own_late()
        a("s_branch .Lattn_s")

    def qabs_gather(self, z, mid=None):
        a = self.a
        t = T0
        def reg(hh, jh):
            return (QB + 8*hh + 4*jh) if hh < 4 else (KREG + 8*(hh-4) + 4*jh)
        a(f"""
        s_lshl_b32 s64, s{S_AB}, 5
        s_lshl_b32 s65, s{S_AHALF}, 4
        s_add_u32 s64, s64, s65
        s_add_u32 s64, s64, {8*z}
        s_lshl_b32 s64, s64, 11
        s_add_u32 s64, s64, {H2}
        v_lshlrev_b32 v{t}, 4, v{V_LANE}
        """)
        def gather():
            for hh in range(8):
                if hh % 2 == 0: a(f"s_add_u32 s66, s64, {hh*2048}")
                for jh in range(2):
                    r = reg(hh, jh)
                    off = (hh % 2) * 2048 + jh * 1024
                    a(f"buffer_load_dwordx4 v[{r}:{r+3}], v{t}, {WS}, s66 offen offset:{off} sc1")
        gather()
        self.set_flag(F_G2I, add=True)
        if mid: mid()
        a(f"""
        v_lshrrev_b32 v{t+2}, 5, v{V_LANE}
        v_lshlrev_b32 v{t+2}, 8, v{t+2}
        v_and_b32 v{t+3}, 1, v{V_G}
        v_lshl_add_u32 v{t+2}, v{t+3}, 7, v{t+2}
        v_lshrrev_b32 v{t+3}, 1, v{V_J16}
        v_lshl_add_u32 v{t+2}, v{t+3}, 4, v{t+2}
        v_and_b32 v{t+3}, 1, v{V_LANE}
        v_lshl_add_u32 v{t+2}, v{t+3}, 3, v{t+2}
        s_waitcnt vmcnt(0)
        """)
        chk = a.newlabel("h2chk")
        a(f"s_branch {chk}")
        lp = a.newlabel("h2")
        a.label(lp)
        gather()
        a("s_waitcnt vmcnt(0)")
        a.label(chk)
        words = []
        for hh in range(8):
            for jh in range(2): words += [reg(hh, jh) + 1, reg(hh, jh) + 3]
        self.tagcheck(words, t+1, lp)
        for hh in range(8):
            head = 8*z + hh
            a(f"v_xor_b32 v{t+4+(hh%2)}, {Lsw(head) << 4}, v{t+2}")
            a(f"v_add_u32 v{t+4+(hh%2)}, {QABS + head*1024}, v{t+4+(hh%2)}")
            for jh in range(2):
                r = reg(hh, jh)
                a(f"ds_write2_b32 v{t+4+(hh%2)}, v{r}, v{r+2} offset0:{jh*128} offset1:{jh*128+1}")
            if hh % 4 == 3: a("s_waitcnt lgkmcnt(4)")
        a("s_waitcnt lgkmcnt(0)")
        self.set_flag(F_QABS, add=True)
        self.stamp(3) if z == 1 else self.stamp(14)

    def w1_front(self):
        a = self.a
        t = T0
        a.label(".Lw1")
        self.load_tag()
        self.hqB("s72", "s73")
        a("s_lshl_b32 s68, s72, 8")
        if self.o.get("wqdelay", 0): self.wait_flag(F_ISSUED, self.o["wqdelay"], sleep=1)
        self.p1_issue(28, 34, "s68")
        self.attn_addr()
        self.p1_compute(0, H1B, "s72")
        a(f"""s_lshl_b32 s64, s72, 9
        s_lshl_b32 s65, s{S_J}, 2
        s_add_u32 s64, s64, s65
        s_add_u32 s64, s64, {FL_H1B}""")
        self.pub_flag("s64", nrep=4)
        self.stamp(2)
        for sg in range(3): self.pre_sigma(sg)
        a("s_branch .Lattn_s")
    def wq_reg(self, k):
        return (KREG + 4*k) if k < 8 else (VREG + 4*(k-8))
    def pre_sigma(self, sg):
        a = self.a
        self.wait_landed(2*sg + 2)
        self.tr_reads(sg)
        sk = a.newlabel("ps")
        a(f"""s_lshr_b32 s65, s{S_V}, 1
        s_cmp_lg_u32 s65, {sg}
        s_cbranch_scc1 {sk}
        s_waitcnt lgkmcnt(0)""")
        self.sa_reads()
        a.label(sk)
        a("s_waitcnt lgkmcnt(0)")
        self.set_flag(F_REL0 + sg, add=True)
    def own_late(self):
        a = self.a
        sk = a.newlabel("ol")
        a(f"""s_cmp_lt_u32 s{S_V}, 6
        s_cbranch_scc1 {sk}
        s_add_u32 s64, s{S_V}, 1""")
        sk2 = a.newlabel("ol2")
        a(f"""s_cmp_ge_u32 s{S_LAND}, s64
        s_cbranch_scc1 {sk2}""")
        self.wait_flag(F_LANDED, "s64", dst=f"s{S_LAND}")
        a.label(sk2)
        self.sa_reads()
        a.label(sk)

    def loader_plan(self):
        L = []
        for tl in range(8):
            for rho in range(16):
                L.append((CKV + (16*tl + rho)*1024, "ckv", "s72" if tl % 2 == 0 else "s73", (tl >> 1)*16384 + rho*1024, KREG + rho))
        for k in range(32): L.append((LK + k*1024, "k", "s77", k*1024, KREG + 16 + (k & 3)))
        V_ = [(LV + k*1024, "v", "s77", k*1024, KREG + 20) for k in range(32)]
        U_ = [(LW0 + k*1024, "wuv", "s78", k*8192, KREG + 21) for k in range(16)]
        L += (U_ + V_) if self.o.get("wuvfirst", 0) else (V_ + U_)
        A_ = [(LW1 + k*1024, "wo", "s79", k*1024, KREG + 22) for k in range(16)]
        B_ = [(LW2 + k*1024, "wob", "s68", k*1024, KREG + 22) for k in range(16)]
        L += (B_ + A_) if self.o.get("wobfirst", 1) else (A_ + B_)
        return L
    def loader_emit(self, lo, hi, paced, st):
        a = self.a
        L = self.loader_plan()
        D = self.depth if lo < 128 else self.o.get("depth2", self.depth)
        srds = dict(ckv=(18, 16777216), k=(30, 33554432), v=(32, 33554432), wuv=(24, 4194304), wo=(26, 4194304), wob=(36, 4194304))
        for i in range(lo, hi):
            lds, key, base, off, vo = L[i]
            if i == self.o.get("n1", -1): self.wait_flag(F_G1D, 1)
            if lo < 128: D = self.o.get("depth1", self.depth) if i < self.o.get("n1", -1) else self.depth
            if i == 128: self.wait_flag(F_REL0, 8)
            if self.o.get("wuvfirst", 0):
                if i == 160: self.wait_flag(F_REL2, 8)
                if i == 176: self.wait_flag(F_REL1, 8)
            else:
                if i == 160: self.wait_flag(F_REL1, 8)
                if i == 192: self.wait_flag(F_REL2, 8)
            if i == self.o.get("pause_at", 208):
                if st["ops"] and isinstance(st["ops"][-1], int): self.loader_wait(st["ops"][-1], st)
                self.wait_flag(F_WUV, 1, sleep=1)
            if paced and i - D >= st["landed"]:
                self.loader_wait(i - D, st)
            if st["srd"] != key:
                self.srd(52, *srds[key]); st["srd"] = key
            if key == "wob" and off == 0:
                self.hqB("s68", "s69")
                a(f"""s_lshl_b32 s68, s68, 17
                s_lshr_b32 s69, s{S_J}, 2
                s_lshl_b32 s69, s69, 16
                s_add_u32 s68, s68, s69
                s_and_b32 s69, s{S_J}, 3
                s_lshl_b32 s69, s69, 8
                s_add_u32 s68, s68, s69""")
            a(f"s_mov_b32 m0, {lds}")
            a(f"s_add_u32 s67, {base}, {off}")
            a(f"buffer_load_dwordx4 v{vo}, s[52:55], s67 offen nt lds")
            st["ops"].append(i)
            if (i + 1) % 16 == 0 and i < 128:
                a(f"v_mov_b32 v{M0_+2}, {i+1}")
                a(f"ds_write_b32 v{KREG+23}, v{M0_+2} offset:{4*F_ISSUED}")
            if i + 1 == min(D, 128) and not st.get("addr"):
                self.attn_addr(); st["addr"] = True
    def loader_wait(self, idx, st):
        a = self.a
        ops = st["ops"]
        pos = ops.index(idx)
        after = len(ops) - pos - 1
        a(f"s_waitcnt vmcnt({min(after, 63)})")
        del ops[:pos+1]
        old = st["landed"]
        st["landed"] = idx + 1
        for k in range(old // 16 + 1, st["landed"] // 16 + 1):
            self._landed(k)
    def _landed(self, k):
        a = self.a
        if self.o.get("ldstamps") and k <= 8: self.stamp([1,2,3,4,9,10,11,12][k-1])
        a(f"v_mov_b32 v{M0_+2}, {k}")
        a(f"ds_write_b32 v{KREG+23}, v{M0_+2} offset:{4*F_LANDED}")
        tile = WAVE2TILE[2]
        if k in (2, 4, 6):
            sg = k // 2 - 1
            self.tr_reads(sg)
            if tile >> 1 == sg:
                a("s_waitcnt lgkmcnt(0)")
                self.sa_reads()
            a("s_waitcnt lgkmcnt(0)")
            self.set_flag(F_REL0 + sg, add=True)
    def w2_front(self):
        a = self.a
        t = T0
        a.label(".Lw2")
        self.load_tag()
        a(f"""
        s_lshl_b32 s72, s{S_AB}, 23
        s_lshl_b32 s73, s{S_AS}, 17
        s_add_u32 s72, s72, s73
        s_lshl_b32 s68, s{S_AHALF}, 16
        s_xor_b32 s69, s68, 0x10000
        s_add_u32 s73, s72, s69
        s_add_u32 s72, s72, s68
        v_lshlrev_b32 v{M0_}, 4, v{V_LANE}
        """)
        for rho in range(16):
            a(f"v_xor_b32 v{KREG+rho}, {Lsw(rho) << 4}, v{M0_}")
        a(f"v_mov_b32 v{KREG+23}, {FLAGS}")
        st = dict(ops=[], landed=0, srd=None)
        self.ld_state = st
        D = self.o.get("depth1", self.depth) if self.o.get("n1", -1) > 0 else self.depth
        self.loader_emit(0, D, True, st)
        a(f"""
        s_lshr_b32 s68, s2, 7
        s_lshl_b32 s68, s68, 3
        s_and_b32 s65, s2, 7
        s_add_u32 s68, s68, s65
        s_lshl_b32 s68, s68, 13
        s_bfe_u32 s65, s2, 0x40003
        s_lshl_b32 s65, s65, 7
        s_add_u32 s68, s68, s65
        s_add_u32 s68, s68, 6144
        s_lshl_b32 s77, s68, 8
        s_lshl_b32 s78, s{S_J}, 19
        s_lshl_b32 s65, s{S_H}, 8
        s_add_u32 s78, s78, s65                  ; w_uv
        s_lshl_b32 s79, s{S_H}, 17
        s_lshr_b32 s65, s{S_J}, 2
        s_lshl_b32 s65, s65, 16
        s_add_u32 s79, s79, s65
        s_and_b32 s65, s{S_J}, 3
        s_lshl_b32 s65, s65, 8
        s_add_u32 s79, s79, s65                  ; w_o
        v_and_b32 v{t}, 1, v{V_G}
        v_and_b32 v{t+1}, 2, v{V_G}
        v_lshl_or_b32 v{t}, v{t+1}, 2, v{t}      ; L(g)
        v_xor_b32 v{t}, v{t}, v{V_J16}
        v_lshlrev_b32 v{t}, 4, v{t}
        v_lshl_add_u32 v{t}, v{V_G}, 8, v{t}
        """)
        for q in range(4):
            a(f"v_xor_b32 v{KREG+16+q}, {(q << 1) << 4}, v{t}")
        a(f"""
        v_lshlrev_b32 v{KREG+20}, 4, v{V_LANE}                  ; V: linear
        v_lshlrev_b32 v{KREG+21}, 17, v{V_G}
        v_lshl_add_u32 v{KREG+21}, v{V_J16}, 4, v{KREG+21}      ; w_uv: g<<17 | j16<<4
        v_lshlrev_b32 v{KREG+22}, 14, v{V_G}
        v_lshl_add_u32 v{KREG+22}, v{V_J16}, 4, v{KREG+22}      ; w_o/wo: g<<14 | j16<<4
        """)
        kpre = self.o.get("kpre", 0)
        self.loader_emit(D, 128 + kpre, True, st)
        if st["landed"] < 128: self.loader_wait(127, st)
        self.get_tag()
        a(f"s_mov_b32 s{S_LAND}, 8")
        if not self.o.get("ldstamps"): self.stamp(1)
        be = 128 + kpre + self.o.get("burst", 24)
        if be > 128 + kpre:
            self.wait_flag(F_G2I, 2)
            self.loader_emit(128 + kpre, be, False, st)
        self.ld_next = be
        a("s_branch .Lattn_s")

    def w3_front(self):
        a = self.a
        t = T0
        a.label(".Lw3")
        self.load_tag()
        self.attn_addr()
        self.get_tag()
        self.stamp(1)
        self.pre_sigma(0)
        self.pre_sigma(1)
        self.wait_flag(F_G2, 1, sleep=1)
        self.qabs_gather(1, mid=lambda: self.pre_sigma(2))
        a("s_branch .Lattn_s")

    def w47_front(self):
        a = self.a
        a.label(".Lw47")
        self.load_tag()
        self.attn_addr()
        a(f"s_sub_u32 s72, s{S_WAVE}, 4")
        self.get_tag()
        self.pre_sigma(0)
        self.pre_sigma(1)
        self.qb_gather(nv=0)
        self.stamp(1)
        self.pre_sigma(2)
        self.own_late()
        self.stamp(2)
        a("s_branch .Lattn_s")

    def qb_gather(self, mid=None, nv=8):
        a = self.a
        t = T0
        a(f"""s_and_b32 s73, s2, 7
        s_lshl_b32 s73, s73, 2
        s_add_u32 s73, s73, s72
        s_lshr_b32 s69, s2, 7
        s_lshl_b32 s64, s73, 13
        s_lshl_b32 s65, s69, 9
        s_add_u32 s64, s64, s65
        s_add_u32 s64, s64, {H1B}
        s_add_u32 s66, s64, 4096
        v_lshlrev_b32 v{t}, 10, v{V_G}
        v_lshl_add_u32 v{t}, v{V_J16}, 4, v{t}
        """)
        def gather():
            for ph in range(2):
                for dh in range(2):
                    r = QB + 8*ph + 4*dh
                    a(f"buffer_load_dwordx4 v[{r}:{r+3}], v{t}, {WS}, {'s64' if ph == 0 else 's66'} offen offset:{256*dh} sc1")
        a(f"""s_lshl_b32 s67, s73, 2
        s_bfe_u32 s65, s2, 0x20005
        s_add_u32 s67, s67, s65
        s_lshl_b32 s67, s67, 7
        s_add_u32 s67, s67, {FL_H1B}""")
        self.sgate("s67", 8, sleep=10)
        gather()
        if mid: mid()
        a(f"s_waitcnt vmcnt({nv})")
        chk = a.newlabel("h1bchk")
        a(f"s_branch {chk}")
        lp = a.newlabel("h1b")
        a.label(lp)
        gather()
        a("s_waitcnt vmcnt(0)")
        a.label(chk)
        words = []
        for q in range(4): words += [QB + 4*q + 1, QB + 4*q + 3]
        self.tagcheck(words, t+1, lp)
        for q in range(4): a(f"v_mov_b32 v{QB+4*q+1}, v{QB+4*q+2}")
        SE = KREG
        for sg in range(2):
            for rg in range(2):
                a(f"v_and_b32 v{SE+2*sg+rg}, 0x3f803f80, v{MSK[sg][rg]}")
        a("s_nop 1")
        first = True
        for ph in range(2):
            for dh in range(2):
                r = QB + 8*ph + 4*dh
                c = "0" if first else f"v[{ACC}:{ACC+3}]"
                first = False
                a(f"v_mfma_f32_16x16x16_bf16 v[{ACC}:{ACC+3}], v[{SE+2*dh}:{SE+2*dh+1}], v[{r}:{r+1}], {c}")
        a("s_nop 7"); a("s_nop 1")
        for r in range(4): a(f"v_mul_f32 v{ACC+r}, {CS}, v{ACC+r}")
        a(f"""
        v_cvt_pk_bf16_f32 v{t+4}, v{ACC}, v{ACC+1}
        v_cvt_pk_bf16_f32 v{t+5}, v{ACC+2}, v{ACC+3}
        v_lshlrev_b32 v{t+1}, 3, v{V_LANE}
        s_lshl_b32 s65, s72, 8
        s_add_u32 s65, s65, {QBL}
        v_add_u32 v{t+1}, s65, v{t+1}
        v_cmp_gt_u32 vcc, 32, v{V_LANE}
        s_and_saveexec_b64 s[70:71], vcc
        ds_write_b64 v{t+1}, v[{t+4}:{t+5}]
        s_mov_b64 exec, s[70:71]
        s_waitcnt lgkmcnt(0)
        """)
        self.set_flag(F_QB, add=True)

    def v_loads(self):
        a = self.a
        t = T0
        self.srd(56, 32, 33554432)
        a(f"""v_lshlrev_b32 v{t+11}, 11, v{V_G}
        v_lshl_add_u32 v{t+11}, v{V_J16}, 4, v{t+11}""")
        for k in range(8):
            a(f"buffer_load_dwordx4 v[{VREG+4*k}:{VREG+4*k+3}], v{t+11}, s[56:59], s{S_KOFF} offen offset:{256*k} nt")

    def attn(self):
        a = self.a
        t = T0
        a.label(".Lattn")
        for sg in range(2):
            self.wait_landed(2*sg + 2)
            self.tr_reads(sg)
        a.label(".Lattn_own")
        a(f"s_add_u32 s64, s{S_V}, 1")
        sk = a.newlabel("own")
        a(f"""s_cmp_ge_u32 s{S_LAND}, s64
        s_cbranch_scc1 {sk}""")
        self.wait_flag(F_LANDED, "s64", dst=f"s{S_LAND}")
        a.label(sk)
        a("s_waitcnt lgkmcnt(0)")
        self.sa_reads()
        a.label(".Lattn_s")
        self.stamp(5)
        self.wait_flag(F_QABS, 2)
        self.stamp(6)
        NB = 8
        def bread(s):
            r = QB + 4*(s % NB)
            a(f"ds_read_b128 v[{r}:{r+3}], v{AD_QB+(s&3)} offset:{(s>>2)*256}")
        for s in range(NB): bread(s)
        for s in range(16):
            rem = min(NB - 1, 15 - s)
            a(f"s_waitcnt lgkmcnt({rem})")
            r = QB + 4*(s % NB)
            c = "0" if s == 0 else f"v[{ACC}:{ACC+3}]"
            a(f"v_mfma_f32_16x16x32_bf16 v[{ACC}:{ACC+3}], v[{SA+4*s}:{SA+4*s+3}], v[{r}:{r+3}], {c}")
            if s + NB < 16: bread(s + NB)
        m = M0_
        a(f"""
        v_lshlrev_b32 v{t}, 5, v{V_J16}
        s_lshl_b32 s65, s{S_V}, 2
        v_add_u32 v{t}, s65, v{t}                ; head*32 + v*4
        v_add_u32 v{t+1}, {MAXB}, v{t}
        v_lshlrev_b32 v{t+2}, 5, v{V_J16}
        v_add_u32 v{t+2}, {MAXB}, v{t+2}
        s_nop 4
        v_max_f32 v{m}, v{ACC}, v{ACC+1}
        v_max3_f32 v{m}, v{m}, v{ACC+2}, v{ACC+3}""")
        self.xrow_reduce("v_max_f32", m, m+1)
        a(f"""
        v_cmp_gt_u32 vcc, 16, v{V_LANE}
        s_and_saveexec_b64 s[70:71], vcc
        ds_write_b32 v{t+1}, v{m}
        s_mov_b64 exec, s[70:71]
        s_waitcnt lgkmcnt(0)
        s_barrier
        ds_read_b128 v[{QB}:{QB+3}], v{t+2}
        ds_read_b128 v[{QB+4}:{QB+7}], v{t+2} offset:16
        """)
        self.tr_reads(3)
        a(f"""
        s_waitcnt lgkmcnt(8)
        v_max3_f32 v{m}, v{QB}, v{QB+1}, v{QB+2}
        v_max3_f32 v{m}, v{m}, v{QB+3}, v{QB+4}
        v_max3_f32 v{m}, v{m}, v{QB+5}, v{QB+6}
        v_max_f32 v{m}, v{m}, v{QB+7}
        """)
        for r in range(4): a(f"v_sub_f32 v{ACC+r}, v{ACC+r}, v{m}")
        for r in range(4): a(f"v_exp_f32 v{ACC+r}, v{ACC+r}")
        a(f"""s_nop 0
        v_add_f32 v{m+1}, v{ACC}, v{ACC+1}
        v_add_f32 v{m+2}, v{ACC+2}, v{ACC+3}
        v_cvt_pk_bf16_f32 v{m+4}, v{ACC}, v{ACC+1}
        v_cvt_pk_bf16_f32 v{m+5}, v{ACC+2}, v{ACC+3}
        v_add_f32 v{m+1}, v{m+1}, v{m+2}
        s_lshr_b32 s65, s{S_V}, 1
        s_lshl_b32 s65, s65, 10
        s_and_b32 s66, s{S_V}, 1
        s_lshl_b32 s66, s66, 3
        s_add_u32 s65, s65, s66
        s_add_u32 s65, s65, {PBUF}
        v_lshlrev_b32 v{t+2}, 4, v{V_LANE}
        v_add_u32 v{t+3}, s65, v{t+2}
        ds_write_b64 v{t+3}, v[{m+4}:{m+5}]
        """)
        self.xrow_reduce("v_add_f32", m+1, m+2)
        a(f"""
        v_add_u32 v{t+1}, {LBUF}, v{t}
        v_cmp_gt_u32 vcc, 16, v{V_LANE}
        s_and_saveexec_b64 s[70:71], vcc
        ds_write_b32 v{t+1}, v{m+1}
        s_mov_b64 exec, s[70:71]
        v_add_u32 v{t+2}, {PBUF}, v{t+2}
        s_waitcnt lgkmcnt(0)
        s_barrier
        """)
        self.stamp(7)
        for sg in range(4):
            a(f"ds_read_b128 v[{QB+4*sg}:{QB+4*sg+3}], v{t+2} offset:{sg*1024}")
        if self.o.get("h3early", 0):
            sk3 = a.newlabel("h3e")
            a(f"""s_cmp_lg_u32 s{S_WAVE}, 3
            s_cbranch_scc1 {sk3}""")
            self.h3_flag()
            a.label(sk3)
        PV = SA + 32
        for sg in range(4):
            a(f"s_waitcnt lgkmcnt({3-sg})")
            for tt in range(4):
                r = self.pa_reg(sg, tt)
                c = "0" if sg == 0 else f"v[{PV+4*tt}:{PV+4*tt+3}]"
                a(f"v_mfma_f32_16x16x32_bf16 v[{PV+4*tt}:{PV+4*tt+3}], v[{r}:{r+3}], v[{QB+4*sg}:{QB+4*sg+3}], {c}")
        a(f"""
        v_lshlrev_b32 v{t+2}, 17, v{V_J16}
        v_lshl_add_u32 v{t+2}, v{V_G}, 4, v{t+2}
        s_lshl_b32 s64, s{S_AHALF}, 21
        s_lshl_b32 s65, s{S_V}, 14
        s_add_u32 s64, s64, s65
        s_lshl_b32 s65, s{S_AB}, 13
        s_add_u32 s64, s64, s65
        s_lshl_b32 s65, s{S_AS}, 7
        s_add_u32 s64, s64, s65
        s_add_u32 s64, s64, {H3}
        s_mov_b32 s67, 0xfffefffe
        """)
        self.lsb_pat(M0_+6, V_G, t+4)
        O = SA + 48
        for tt in range(4):
            d = PV + 4*tt
            a(f"v_cvt_pk_bf16_f32 v{O+2*tt}, v{d}, v{d+1}")
            a(f"v_cvt_pk_bf16_f32 v{O+2*tt+1}, v{d+2}, v{d+3}")
        for r in range(8): a(f"v_and_or_b32 v{O+r}, v{O+r}, s67, v{M0_+6+(r%4)}")
        TT = O + 8
        for r in range(4): a(f"v_mov_b32 v{TT+r}, v{O+4+r}")
        a("s_nop 0")
        for r in range(4): a(f"v_mov_b32_dpp v{O+4+r}, v{O+r} row_ror:8 row_mask:0xf bank_mask:0x3")
        for r in range(4): a(f"v_mov_b32_dpp v{O+r}, v{TT+r} row_ror:8 row_mask:0xf bank_mask:0xc")
        a(f"""v_and_b32 v{t+2}, 7, v{V_J16}
        v_lshlrev_b32 v{t+2}, 17, v{t+2}
        v_lshrrev_b32 v{t+3}, 3, v{V_J16}
        v_lshl_add_u32 v{t+2}, v{t+3}, 6, v{t+2}
        v_lshl_add_u32 v{t+2}, v{V_G}, 4, v{t+2}
        s_add_u32 s65, s64, 0x100000
        buffer_store_dwordx4 v[{O}:{O+3}], v{t+2}, {WS}, s64 offen sc1
        buffer_store_dwordx4 v[{O+4}:{O+7}], v{t+2}, {WS}, s65 offen sc1
        """)
        self.stamp(8)
        a(f"""
        s_cmp_eq_u32 s{S_WAVE}, 0
        s_cbranch_scc1 .Lt0
        s_cmp_eq_u32 s{S_WAVE}, 1
        s_cbranch_scc1 .Lt1
        s_cmp_eq_u32 s{S_WAVE}, 2
        s_cbranch_scc1 .Lt2
        s_cmp_eq_u32 s{S_WAVE}, 3
        s_cbranch_scc1 .Lt3
        s_branch .Lt47
        """)

    def read_w_lds(self, base, dst):
        a = self.a
        t = T0
        a(f"v_lshlrev_b32 v{t+13}, 4, v{V_LANE}")
        a(f"v_add_u32 v{t+13}, {base}, v{t+13}")
        for k in range(16):
            if k == 12: a("s_waitcnt lgkmcnt(4)")
            a(f"ds_read_b128 v[{dst+4*k}:{dst+4*k+3}], v{t+13} offset:{k*1024}")
    def vec_to_x(self, vec, X):
        a = self.a
        t = T0
        a(f"""v_lshrrev_b32 v{t+13}, 3, v{V_J16}
        v_lshlrev_b32 v{t+13}, 7, v{t+13}
        v_lshl_add_u32 v{t+13}, v{V_G}, 5, v{t+13}
        v_add_u32 v{t+13}, {vec}, v{t+13}
        s_waitcnt lgkmcnt(0)
        ds_read_b128 v[{X}:{X+3}], v{t+13}
        ds_read_b128 v[{X+4}:{X+7}], v{t+13} offset:16
        s_waitcnt lgkmcnt(0)""")
    def publish_h5(self, acc, src, s_pp):
        a = self.a
        t = T0
        a(f"""v_lshrrev_b32 v{t+8}, 2, v{V_LANE}
        v_lshlrev_b32 v{t+8}, 12, v{t+8}
        v_and_b32 v{t+9}, 3, v{V_LANE}
        v_lshl_add_u32 v{t+8}, v{t+9}, 4, v{t+8}
        s_and_b32 s64, s{S_J}, 3
        s_add_u32 s64, s64, {src*4}
        s_lshl_b32 s64, s64, 16
        s_lshl_b32 s65, {s_pp}, 6
        s_add_u32 s64, s64, s65
        s_add_u32 s64, s64, {H5}""")
        self.publish_granule(acc, t+4, t+8, "s64")
        a(f"""s_and_b32 s64, s{S_J}, 3
        s_add_u32 s64, s64, {src*4}
        s_lshl_b32 s64, s64, 8
        s_lshr_b32 s65, {s_pp}, 2
        s_lshl_b32 s65, s65, 2
        s_add_u32 s64, s64, s65
        s_add_u32 s64, s64, {FL_H5}
        s_and_b32 s65, {s_pp}, 3
        """)
        self.pub_flag("s64", cond="s_cmp_eq_u32 s65, 1", nrep=2)

    def tail_w0(self):
        a = self.a
        t = T0
        X = QB; A0 = QB + 8; A1 = QB + 12
        a.label(".Lt0")
        a(f"""
        v_lshrrev_b32 v{t}, 3, v{V_J16}
        v_lshlrev_b32 v{t}, 10, v{t}
        v_lshl_add_u32 v{t}, v{V_G}, 8, v{t}
        v_and_b32 v{t+1}, 7, v{V_J16}
        v_lshl_add_u32 v{t}, v{t+1}, 5, v{t}
        s_lshl_b32 s64, s{S_H}, 11
        s_add_u32 s64, s64, {H3S}
        v_lshrrev_b32 v{t+2}, 3, v{V_J16}
        v_lshlrev_b32 v{t+2}, 13, v{t+2}
        v_lshl_add_u32 v{t+2}, v{V_G}, 11, v{t+2}
        v_lshl_add_u32 v{t+2}, v{t+1}, 4, v{t+2}
        s_lshl_b32 s66, s{S_H}, 3
        s_add_u32 s66, s66, s{S_J}
        s_lshl_b32 s66, s66, 14
        s_add_u32 s66, s66, {H3}
        """)
        S = KREG
        PT = KREG + 16
        a(f"v_and_b32 v{PT+4}, 3, v{V_J16}")
        self.lsb_pat(PT, PT+4, PT+5)
        a(f"""s_lshl_b32 s67, s{S_H}, 7
        s_add_u32 s67, s67, {FL_H3}""")
        if self.diag: self.stamp(15)
        self.sgate("s67", 16, sleep=self.o.get("gsleep", 3))
        if self.diag and self.o.get("cnt"): a(f"v_writelane_b32 v{V_ST}, s65, 1")
        self.stamp(9)
        lp2 = a.newlabel("h3p")
        a.label(lp2)
        a(f"""buffer_load_dwordx4 v[{S}:{S+3}], v{t}, {WS}, s64 offen sc1
        buffer_load_dwordx4 v[{S+4}:{S+7}], v{t}, {WS}, s64 offen offset:16 sc1""")
        for k in range(16):
            a(f"buffer_load_dwordx4 v[{SA+4*k}:{SA+4*k+3}], v{t+2}, {WS}, s66 offen offset:{128*k} sc1")
        self.set_flag(F_G3)
        a("s_waitcnt vmcnt(16)")
        lpx = a.newlabel("h3x")
        okx = a.newlabel("h3sok")
        a(f"v_xor_b32 v{t+1}, s{S_TAG}, v{S+1}")
        for w_ in (S+3, S+5, S+7):
            a(f"v_bitop3_b32 v{t+1}, v{t+1}, v{w_}, s{S_TAG} bitop3:0xf6")
        a(f"""v_cmp_ne_u32 vcc, 0, v{t+1}
        s_nop 1
        s_cbranch_vccz {okx}
        s_waitcnt vmcnt(0)
        s_sleep 1""")
        self.spin_fail(lp2)
        a.label(okx)
        W = S + 8
        a(f"""
        v_max_f32 v{W}, v{S}, v{S+4}
        s_nop 1
        v_max_f32_dpp v{W}, v{W}, v{W} quad_perm:[1,0,3,2] row_mask:0xf bank_mask:0xf
        s_nop 1
        v_max_f32_dpp v{W}, v{W}, v{W} quad_perm:[2,3,0,1] row_mask:0xf bank_mask:0xf
        s_nop 1
        v_max_f32_dpp v{W}, v{W}, v{W} row_half_mirror row_mask:0xf bank_mask:0xf
        """)
        self.xrow_reduce("v_max_f32", W, W+1)
        a(f"""
        v_sub_f32 v{W+2}, v{S}, v{W}
        v_sub_f32 v{W+3}, v{S+4}, v{W}
        v_exp_f32 v{W+2}, v{W+2}
        v_exp_f32 v{W+3}, v{W+3}
        s_nop 0
        v_cvt_pk_bf16_f32 v{W+4}, v{W+2}, v{W+3}
        v_mul_f32 v{W+5}, v{W+2}, v{S+2}
        v_fmac_f32 v{W+5}, v{W+3}, v{S+6}
        v_lshrrev_b32 v{W+6}, 3, v{V_J16}
        v_lshlrev_b32 v{W+6}, 7, v{W+6}
        v_lshl_add_u32 v{W+6}, v{V_G}, 5, v{W+6}
        v_and_b32 v{W+7}, 7, v{V_J16}
        v_lshl_add_u32 v{W+6}, v{W+7}, 2, v{W+6}
        v_add_u32 v{W+6}, {VEC0}, v{W+6}
        ds_write_b32 v{W+6}, v{W+4}
        """)
        self.vec_to_x(VEC0, X)
        a(f"""
        v_add_f32_dpp v{W+5}, v{W+5}, v{W+5} quad_perm:[1,0,3,2] row_mask:0xf bank_mask:0xf
        s_nop 1
        v_add_f32_dpp v{W+5}, v{W+5}, v{W+5} quad_perm:[2,3,0,1] row_mask:0xf bank_mask:0xf
        s_nop 1
        v_add_f32_dpp v{W+5}, v{W+5}, v{W+5} row_half_mirror row_mask:0xf bank_mask:0xf
        """)
        self.xrow_reduce("v_add_f32", W+5, W+1)
        a(f"v_rcp_f32 v{W+5}, v{W+5}")
        a(f"v_mov_b32 v{W+7}, 0")
        def pre(k):
            a(f"s_waitcnt vmcnt({15-k})")
            r = SA + 4*k
            for i in range(4):
                a(f"v_bitop3_b32 v{W+7}, v{W+7}, v{r+i}, v{PT+i} bitop3:0xf6")
            for i in range(4):
                a(f"v_and_b32 v{r+i}, s68, v{r+i}")
        a("s_mov_b32 s68, 0xfffefffe")
        self.diag_mfma(X, SA, ACC, A0, A1, pre=pre, pre_first=True)
        ok = a.newlabel("h3ok")
        a(f"""v_and_b32 v{W+7}, 0x00010001, v{W+7}
        v_cmp_ne_u32 vcc, 0, v{W+7}
        s_nop 1
        s_cbranch_vccz {ok}""")
        self.spin_fail(lp2)
        a.label(ok)
        self.set_flag(F_WUV)
        self.stamp(10)
        self.wait_flag(F_LANDED, 11 if self.o.get("wuvfirst", 0) else 13)
        self.read_w_lds(LW0, PA)
        for r in range(4): a(f"v_mul_f32 v{ACC+r}, v{W+5}, v{ACC+r}")
        a(f"""
        v_cvt_pk_bf16_f32 v{t+4}, v{ACC}, v{ACC+1}
        v_cvt_pk_bf16_f32 v{t+5}, v{ACC+2}, v{ACC+3}
        v_and_b32 v{W+6}, 3, v{V_J16}
        v_and_b32 v{W+1}, 1, v{V_G}
        v_xor_b32 v{W+7}, v{W+6}, v{W+1}
        v_and_b32 v{W+7}, 1, v{W+7}
        v_lshlrev_b32 v{W+7}, 3, v{W+7}
        v_lshl_add_u32 v{W+7}, v{W+6}, 5, v{W+7}
        v_bfe_u32 v{W+6}, v{V_J16}, 2, 1
        v_lshl_add_u32 v{W+7}, v{W+6}, 4, v{W+7}
        v_lshrrev_b32 v{W+6}, 3, v{V_J16}
        v_lshl_add_u32 v{W+7}, v{W+6}, 7, v{W+7}
        v_add_u32 v{W+7}, {VEC0}, v{W+7}
        v_lshrrev_b32 v{W+1}, 1, v{V_G}
        v_cmp_eq_u32 vcc, v{W+1}, v{W+6}
        s_and_saveexec_b64 s[70:71], vcc
        ds_write_b64 v{W+7}, v[{t+4}:{t+5}]
        s_mov_b64 exec, s[70:71]
        """)
        self.vec_to_x(VEC0, X)
        self.diag_mfma(X, PA, ACC, A0, A1)
        self.gran_voff(t+8, t+9)
        a(f"""s_lshl_b32 s64, s{S_H}, 3
        s_add_u32 s64, s64, s{S_J}
        s_lshl_b32 s64, s64, 10
        s_add_u32 s64, s64, {H4}""")
        self.publish_granule(ACC, t+4, t+8, "s64", local=True)
        self.stamp(11)
        a(f"""
        v_lshlrev_b32 v{t}, 10, v{V_G}
        v_lshl_add_u32 v{t}, v{V_J16}, 4, v{t}
        s_lshl_b32 s64, s{S_H}, 13
        s_lshr_b32 s65, s{S_J}, 2
        s_lshl_b32 s66, s65, 8
        s_add_u32 s64, s64, s66
        s_add_u32 s64, s64, {H4}
        s_add_u32 s66, s64, 4096
        """)
        SE = KREG
        for sg in range(2):
            for rg in range(2):
                a(f"v_and_b32 v{SE+2*sg+rg}, 0x3f803f80, v{MSK[sg][rg]}")
        self.wait_flag(F_LANDED, 15 if self.o.get("wobfirst", 1) else 14)
        self.read_w_lds(LW1, PA)
        a(f"""s_add_u32 s64, s64, {LOC}
        s_add_u32 s66, s66, {LOC}
        s_mov_b32 s69, 0""")
        lp = a.newlabel("h4")
        a.label(lp)
        for b in range(2):
            for ph in range(2):
                r = SA + 8*b + 4*ph
                a(f"buffer_load_dwordx4 v[{r}:{r+3}], v{t}, {WS}, {'s64' if ph == 0 else 's66'} offen offset:{512*b} sc1")
        a("s_waitcnt vmcnt(0)")
        words = []
        for q in range(4): words += [SA + 4*q + 1, SA + 4*q + 3]
        self.tagcheck(words, t+1, lp, onfail=lambda: self.poll_switch(["s64", "s66"], lp, after=6))
        self.stamp(12)
        for q in range(4): a(f"v_mov_b32 v{SA+4*q+1}, v{SA+4*q+2}")
        a("s_nop 1")
        first = True
        for b in range(2):
            for ph in range(2):
                r = SA + 8*b + 4*ph
                c = "0" if first else f"v[{ACC}:{ACC+3}]"
                first = False
                a(f"v_mfma_f32_16x16x16_bf16 v[{ACC}:{ACC+3}], v[{SE+2*b}:{SE+2*b+1}], v[{r}:{r+1}], {c}")
        a(f"""
        v_lshlrev_b32 v{t+6}, 7, v{V_G}
        v_lshl_add_u32 v{t+6}, v{V_J16}, 3, v{t+6}
        v_add_u32 v{t+6}, {VEC0}, v{t+6}
        v_cmp_gt_u32 vcc, 32, v{V_LANE}
        s_nop 4
        v_cvt_pk_bf16_f32 v{t+4}, v{ACC}, v{ACC+1}
        v_cvt_pk_bf16_f32 v{t+5}, v{ACC+2}, v{ACC+3}
        s_and_saveexec_b64 s[70:71], vcc
        ds_write_b64 v{t+6}, v[{t+4}:{t+5}]
        s_mov_b64 exec, s[70:71]
        """)
        self.vec_to_x(VEC0, X)
        self.diag_mfma(X, PA, ACC, A0, A1)
        a(f"""s_lshl_b32 s67, s{S_H}, 1
        s_lshr_b32 s65, s{S_J}, 2
        s_add_u32 s67, s67, s65""")
        self.publish_h5(ACC, 0, "s67")
        self.stamp(13)
        self.dump_stamps()
        a("s_branch .Lend")

    def tail_w1(self):
        a = self.a
        t = T0
        X = QB; A0 = QB + 8; A1 = QB + 12
        a.label(".Lt1")
        self.hqB("s72", "s73")

        a(f"""s_lshr_b32 s73, s{S_J}, 2
        v_and_b32 v{t}, 3, v{V_J16}
        v_lshlrev_b32 v{t}, 6, v{t}
        v_lshl_add_u32 v{t}, v{V_G}, 4, v{t}
        s_lshl_b32 s64, s72, 8
        s_add_u32 s64, s64, {H3BS}
        s_add_u32 s68, s64, 8192
        v_lshlrev_b32 v{t+2}, 9, v{V_G}
        v_lshl_add_u32 v{t+2}, v{V_J16}, 4, v{t+2}
        s_lshl_b32 s66, s72, 13
        s_lshl_b32 s67, s73, 8
        s_add_u32 s66, s66, s67
        s_add_u32 s66, s66, {H3B}
        """)
        S = KREG
        a(f"""s_and_b32 s67, s2, 7
        s_lshl_b32 s67, s67, 2
        s_lshr_b32 s65, s{S_J}, 1
        s_add_u32 s67, s67, s65
        s_lshl_b32 s67, s67, 7
        s_add_u32 s67, s67, {FL_H3B}""")
        self.sgate("s67", 16, sleep=self.o.get("gsleep", 3))
        lp = a.newlabel("h3b")
        a.label(lp)
        a(f"""buffer_load_dwordx4 v[{S}:{S+3}], v{t}, {WS}, s64 offen sc1
        buffer_load_dwordx4 v[{S+4}:{S+7}], v{t}, {WS}, s68 offen sc1""")
        for b in range(2):
            for k in range(4):
                r = SA + 16*b + 4*k
                a(f"s_add_u32 s67, s66, {b*262144 + (k//2)*4096}")
                a(f"buffer_load_dwordx4 v[{r}:{r+3}], v{t+2}, {WS}, s67 offen offset:{(k%2)*2048} sc1")
        a("s_waitcnt vmcnt(8)")
        W = S + 8
        for b in range(2):
            m, l, w, L = S + 4*b, S + 2 + 4*b, W + b, W + 2 + b
            a(f"""v_mov_b32 v{W+4}, v{m}
            s_nop 1
            v_max_f32_dpp v{W+4}, v{W+4}, v{W+4} quad_perm:[1,0,3,2] row_mask:0xf bank_mask:0xf
            s_nop 1
            v_max_f32_dpp v{W+4}, v{W+4}, v{W+4} quad_perm:[2,3,0,1] row_mask:0xf bank_mask:0xf""")
            self.xrow_reduce("v_max_f32", W+4, W+5)
            a(f"""v_sub_f32 v{w}, v{m}, v{W+4}
            v_exp_f32 v{w}, v{w}
            s_nop 0
            v_mul_f32 v{L}, v{w}, v{l}
            s_nop 1
            v_add_f32_dpp v{L}, v{L}, v{L} quad_perm:[1,0,3,2] row_mask:0xf bank_mask:0xf
            s_nop 1
            v_add_f32_dpp v{L}, v{L}, v{L} quad_perm:[2,3,0,1] row_mask:0xf bank_mask:0xf""")
            self.xrow_reduce("v_add_f32", L, W+5)
            a(f"v_cvt_pk_bf16_f32 v{w}, v{w}, v{w}")
        a("s_waitcnt vmcnt(0)")
        words = [S+1, S+3, S+5, S+7]
        for q in range(8): words += [SA + 4*q + 1, SA + 4*q + 3]
        self.tagcheck(words, t+1, lp)
        self.stamp(9)
        for q in range(8): a(f"v_mov_b32 v{SA+4*q+1}, v{SA+4*q+2}")
        first = True
        for b in range(2):
            for k in range(4):
                r = SA + 16*b + 4*k
                A = A0 + 2*(k % 2)
                a(f"""v_mov_b32_dpp v{W+6}, v{W+b} quad_perm:[{k},{k},{k},{k}] row_mask:0xf bank_mask:0xf
                s_nop 0
                v_and_b32 v{A}, v{W+6}, v{MSK[b][0]}
                v_and_b32 v{A+1}, v{W+6}, v{MSK[b][1]}
                s_nop 1""")
                c = "0" if first else f"v[{ACC}:{ACC+3}]"
                first = False
                a(f"v_mfma_f32_16x16x16_bf16 v[{ACC}:{ACC+3}], v[{A}:{A+1}], v[{r}:{r+1}], {c}")
        a(f"""
        v_cmp_eq_u32 vcc, 1, v{V_G}
        s_nop 1
        v_cndmask_b32 v{W+2}, v{W+2}, v{W+3}, vcc
        v_rcp_f32 v{W+2}, v{W+2}
        s_nop 7
        """)
        for r in range(4): a(f"v_mul_f32 v{ACC+r}, v{W+2}, v{ACC+r}")
        a(f"""
        v_cvt_pk_bf16_f32 v{t+4}, v{ACC}, v{ACC+1}
        v_cvt_pk_bf16_f32 v{t+5}, v{ACC+2}, v{ACC+3}
        v_lshlrev_b32 v{t+6}, 7, v{V_G}
        v_lshl_add_u32 v{t+6}, v{V_J16}, 3, v{t+6}
        v_add_u32 v{t+6}, {VEC1}, v{t+6}
        v_cmp_gt_u32 vcc, 32, v{V_LANE}
        s_and_saveexec_b64 s[70:71], vcc
        ds_write_b64 v{t+6}, v[{t+4}:{t+5}]
        s_mov_b64 exec, s[70:71]
        """)
        self.wait_flag(F_LANDED, 14 if self.o.get("wobfirst", 1) else 15, sleep=1)
        self.read_w_lds(LW2, PA)
        self.vec_to_x(VEC1, X)
        self.diag_mfma(X, PA, ACC, A0, A1)
        a(f"""s_lshl_b32 s67, s72, 1
        s_add_u32 s67, s67, s73""")
        self.publish_h5(ACC, 1, "s67")
        self.stamp(10)
        self.dump_stamps()
        a("s_branch .Lend")

    def late_dma_issue(self, srdsgpr, srdbase, nbytes, rowstride_log2, s_off, ldsbase, vreg):
        a = self.a
        self.srd(srdsgpr, srdbase, nbytes)
        a(f"""v_lshlrev_b32 v{vreg}, {rowstride_log2 + 4}, v{V_G}
        v_lshl_add_u32 v{vreg}, v{V_J16}, 4, v{vreg}
        s_mov_b32 s67, {s_off}""")
        for k in range(16):
            a(f"s_mov_b32 m0, {ldsbase + k*1024}")
            a(f"s_nop 0")
            a(f"buffer_load_dwordx4 v{vreg}, s[{srdsgpr}:{srdsgpr+3}], s67 offen nt lds")
            if k < 15: a(f"s_add_u32 s67, s67, {1 << rowstride_log2}")

    def tail_w2(self):
        a = self.a
        t = T0
        a.label(".Lt2")
        st = self.ld_state
        st["ops"] += ["st0", "st1"]
        st["srd"] = None
        a(f"""
        v_lshlrev_b32 v{KREG+20}, 4, v{V_LANE}
        v_lshlrev_b32 v{KREG+21}, 17, v{V_G}
        v_lshl_add_u32 v{KREG+21}, v{V_J16}, 4, v{KREG+21}
        v_lshlrev_b32 v{KREG+22}, 14, v{V_G}
        v_lshl_add_u32 v{KREG+22}, v{V_J16}, 4, v{KREG+22}
        v_mov_b32 v{KREG+23}, {FLAGS}
        """)
        self.loader_emit(self.ld_next, 240, True, st)
        for idx in range(st["landed"] // 16 * 16 + 15, 240, 16):
            if idx >= st["landed"]: self.loader_wait(idx, st)
        self.stamp_w2(10)
        a(f"""s_cmp_ge_u32 s2, 128
        s_cbranch_scc1 .Lt2end
        s_lshl_b32 s64, s2, 12
        s_add_u32 s64, s64, {H5}
        v_lshlrev_b32 v{t}, 6, v{V_J16}
        v_lshl_add_u32 v{t}, v{V_G}, 4, v{t}
        """)
        a(f"""s_lshr_b32 s67, s2, 3
        s_lshl_b32 s67, s67, 7
        s_add_u32 s67, s67, {FL_H5}""")
        if self.o.get("h5gate", 0): self.sgate("s67", 16, sleep=self.o.get("gsleep", 3))
        lp = a.newlabel("h5")
        a.label(lp)
        for u in range(4):
            a(f"buffer_load_dwordx4 v[{SA+4*u}:{SA+4*u+3}], v{t}, {WS}, s64 offen offset:{1024*u} sc1")
        a("s_waitcnt vmcnt(0)")
        words = []
        for q in range(4): words += [SA + 4*q + 1, SA + 4*q + 3]
        self.tagcheck(words, t+1, lp, sleep=1)
        self.stamp_w2(11)
        for u in range(4):
            r = SA + 4*u
            a(f"""v_lshlrev_b32 v{t+4}, 16, v{r}
            v_and_b32 v{t+5}, 0xffff0000, v{r}
            v_lshlrev_b32 v{t+6}, 16, v{r+2}
            v_and_b32 v{t+7}, 0xffff0000, v{r+2}""")
            for k in range(4):
                if u == 0: a(f"v_mov_b32 v{ACC+k}, v{t+4+k}")
                else: a(f"v_add_f32 v{ACC+k}, v{ACC+k}, v{t+4+k}")
        for sh in (8, 4, 2, 1):
            a("s_nop 1")
            for k in range(4):
                a(f"v_add_f32_dpp v{ACC+k}, v{ACC+k}, v{ACC+k} row_ror:{sh} row_mask:0xf bank_mask:0xf")
        a(f"""
        v_cvt_pk_bf16_f32 v{t+4}, v{ACC}, v{ACC+1}
        v_cvt_pk_bf16_f32 v{t+5}, v{ACC+2}, v{ACC+3}
        s_and_b32 s65, s2, 15
        s_lshr_b32 s66, s65, 2
        s_lshr_b32 s67, s66, 1
        s_lshl_b32 s67, s67, 11
        s_lshr_b32 s68, s2, 6
        s_lshl_b32 s68, s68, 10
        s_add_u32 s67, s67, s68
        s_bfe_u32 s68, s2, 0x20004
        s_lshl_b32 s68, s68, 8
        s_add_u32 s67, s67, s68
        s_and_b32 s68, s66, 1
        s_lshl_b32 s68, s68, 3
        s_add_u32 s67, s67, s68
        s_and_b32 s68, s65, 3
        s_lshl_b32 s68, s68, 6
        s_add_u32 s67, s67, s68
        v_lshlrev_b32 v{t+1}, 4, v{V_G}
        """)
        self.srd(56, 38, 4096)
        a(f"""
        v_cmp_eq_u32 vcc, 0, v{V_J16}
        s_and_saveexec_b64 s[70:71], vcc
        buffer_store_dwordx2 v[{t+4}:{t+5}], v{t+1}, s[56:59], s67 offen
        s_mov_b64 exec, s[70:71]
        s_cmp_lg_u32 s2, 0
        s_cbranch_scc1 .Lt2end
        v_mov_b32 v{t+1}, 0
        v_mov_b32 v{t+2}, s{S_TAG}
        s_mov_b64 exec, 1
        buffer_store_dword v{t+2}, v{t+1}, {WS}, 0 offen
        s_mov_b64 exec, -1
        """)
        a.label(".Lt2end")
        self.stamp_w2(12)
        self.dump_stamps()
        a("s_branch .Lend")

    def h3_flag(self):
        a = self.a
        a(f"""s_lshl_b32 s64, s{S_AHALF}, 11
        s_lshl_b32 s65, s{S_AB}, 5
        s_add_u32 s64, s64, s65
        s_lshr_b32 s65, s{S_AS}, 3
        s_lshl_b32 s65, s65, 2
        s_add_u32 s64, s64, s65
        s_add_u32 s64, s64, {FL_H3}
        s_and_b32 s65, s{S_AS}, 7
        """)
        self.pub_flag("s64", cond="s_cmp_eq_u32 s65, 5", nrep=16)
    def tail_w3(self):
        a = self.a
        t = T0
        m = M0_
        a.label(".Lt3")
        a(f"""
        v_lshlrev_b32 v{t}, 5, v{V_J16}
        v_add_u32 v{t}, {LBUF}, v{t}
        ds_read_b128 v[{QB}:{QB+3}], v{t}
        ds_read_b128 v[{QB+4}:{QB+7}], v{t} offset:16
        s_waitcnt lgkmcnt(0)
        v_add_f32 v{QB}, v{QB}, v{QB+1}
        v_add_f32 v{QB+2}, v{QB+2}, v{QB+3}
        v_add_f32 v{QB+4}, v{QB+4}, v{QB+5}
        v_add_f32 v{QB+6}, v{QB+6}, v{QB+7}
        v_add_f32 v{QB}, v{QB}, v{QB+2}
        v_add_f32 v{QB+4}, v{QB+4}, v{QB+6}
        v_add_f32 v{t+6}, v{QB}, v{QB+4}
        v_mov_b32 v{t+4}, v{m}
        v_mov_b32 v{t+5}, s{S_TAG}
        v_mov_b32 v{t+7}, s{S_TAG}
        v_lshlrev_b32 v{t}, 11, v{V_J16}
        s_lshl_b32 s64, s{S_AHALF}, 15
        s_lshl_b32 s65, s{S_AB}, 10
        s_add_u32 s64, s64, s65
        s_lshl_b32 s65, s{S_AS}, 4
        s_add_u32 s64, s64, s65
        s_add_u32 s64, s64, {H3S}
        v_cmp_gt_u32 vcc, 16, v{V_LANE}
        s_and_saveexec_b64 s[70:71], vcc
        buffer_store_dwordx4 v[{t+4}:{t+7}], v{t}, {WS}, s64 offen sc1
        s_mov_b64 exec, s[70:71]
""")
        if not self.o.get("h3early", 0): self.h3_flag()
        self.stamp(9)
        self.dump_stamps()
        a("s_branch .Lend")

    def tail_w47(self):
        a = self.a
        t = T0
        a.label(".Lt47")
        a(f"s_sub_u32 s72, s{S_WAVE}, 4")
        VR = VREG
        a(f"""
        v_and_b32 v{t+2}, 1, v{V_J16}
        v_and_b32 v{t+3}, 2, v{V_J16}
        v_lshl_or_b32 v{t+2}, v{t+3}, 2, v{t+2}
        v_lshrrev_b32 v{t+3}, 1, v{V_J16}
        v_and_b32 v{t+3}, 6, v{t+3}
        v_or_b32 v{t+2}, v{t+2}, v{t+3}
        v_xor_b32 v{t+2}, v{t+2}, v{V_G}
        v_lshlrev_b32 v{t+2}, 4, v{t+2}
        v_lshl_add_u32 v{t+2}, v{V_J16}, 8, v{t+2}
        s_lshl_b32 s66, s72, 13
        v_add_u32 v{t+2}, s66, v{t+2}
        v_lshlrev_b32 v{t+8}, 11, v{V_G}
        v_lshl_add_u32 v{t+8}, v{V_J16}, 4, v{t+8}
        s_add_u32 s66, s66, {LV}
        v_add_u32 v{t+8}, s66, v{t+8}            ; V addr
        """)
        for s_ in range(4):
            a(f"v_xor_b32 v{t+4+s_}, {s_*64}, v{t+2}")
        self.wait_flag(F_LANDED, 10, sleep=1)
        for tau in range(2):
            for s_ in range(4):
                r = KREG + 16*tau + 4*s_
                a(f"ds_read_b128 v[{r}:{r+3}], v{t+4+s_} offset:{LK + tau*4096}")
        self.stamp(9)
        self.wait_flag(F_QB, 4)
        QF = SA + 32
        a(f"""v_and_b32 v{t+1}, 3, v{V_J16}
        v_lshlrev_b32 v{t+1}, 8, v{t+1}
        v_lshl_add_u32 v{t+1}, v{V_G}, 4, v{t+1}
        v_add_u32 v{t+1}, {QBL}, v{t+1}""")
        for s in range(4):
            a(f"ds_read_b128 v[{QF+4*s}:{QF+4*s+3}], v{t+1} offset:{64*s}")
        a("s_waitcnt lgkmcnt(0)")
        SB = SA + 48
        for s in range(4):
            for tau in range(2):
                c = "0" if s == 0 else f"v[{SB+4*tau}:{SB+4*tau+3}]"
                a(f"v_mfma_f32_16x16x32_bf16 v[{SB+4*tau}:{SB+4*tau+3}], v[{KREG+16*tau+4*s}:{KREG+16*tau+4*s+3}], v[{QF+4*s}:{QF+4*s+3}], {c}")
        m = M0_
        a(f"""s_nop 7
        s_nop 1
        v_max3_f32 v{m}, v{SB}, v{SB+1}, v{SB+2}
        v_max3_f32 v{m}, v{m}, v{SB+3}, v{SB+4}
        v_max3_f32 v{m}, v{m}, v{SB+5}, v{SB+6}
        v_max_f32 v{m}, v{m}, v{SB+7}""")
        self.xrow_reduce("v_max_f32", m, m+2)
        for r in range(8): a(f"v_sub_f32 v{SB+r}, v{SB+r}, v{m}")
        for r in range(8): a(f"v_exp_f32 v{SB+r}, v{SB+r}")
        a(f"""s_nop 0
        v_add_f32 v{m+1}, v{SB}, v{SB+1}
        v_add_f32 v{m+2}, v{SB+2}, v{SB+3}
        v_add_f32 v{m+3}, v{SB+4}, v{SB+5}
        v_add_f32 v{m+4}, v{SB+6}, v{SB+7}
        v_add_f32 v{m+1}, v{m+1}, v{m+2}
        v_add_f32 v{m+3}, v{m+3}, v{m+4}
        v_add_f32 v{m+1}, v{m+1}, v{m+3}
        v_cvt_pk_bf16_f32 v{m+4}, v{SB}, v{SB+1}
        v_cvt_pk_bf16_f32 v{m+5}, v{SB+2}, v{SB+3}
        v_cvt_pk_bf16_f32 v{m+6}, v{SB+4}, v{SB+5}
        v_cvt_pk_bf16_f32 v{m+7}, v{SB+6}, v{SB+7}
        s_lshl_b32 s65, s72, 8
        s_add_u32 s65, s65, {PBL}
        v_lshlrev_b32 v{t+1}, 6, v{V_J16}
        v_lshl_add_u32 v{t+1}, v{V_G}, 3, v{t+1}
        v_add_u32 v{t+1}, s65, v{t+1}
        v_cmp_gt_u32 vcc, 4, v{V_J16}
        s_and_saveexec_b64 s[70:71], vcc
        ds_write_b64 v{t+1}, v[{m+4}:{m+5}]
        ds_write_b64 v{t+1}, v[{m+6}:{m+7}] offset:32
        s_mov_b64 exec, s[70:71]
        """)
        self.xrow_reduce("v_add_f32", m+1, m+2)
        PX = QB
        a(f"""
        v_lshrrev_b32 v{t+1}, 3, v{V_J16}
        v_lshlrev_b32 v{t+1}, 6, v{t+1}
        v_lshl_add_u32 v{t+1}, v{V_G}, 4, v{t+1}
        v_add_u32 v{t+1}, s65, v{t+1}
        s_waitcnt lgkmcnt(0)
        ds_read_b128 v[{PX}:{PX+3}], v{t+1}
        ds_read_b128 v[{PX+4}:{PX+7}], v{t+1} offset:128
        s_waitcnt lgkmcnt(0)
        """)
        self.stamp(10)

        self.wait_flag(F_LANDED, 13 if self.o.get("wuvfirst", 0) else 12, sleep=1)
        for k in range(8):
            a(f"ds_read_b128 v[{VR+4*k}:{VR+4*k+3}], v{t+8} offset:{256*k}")
        sets = [QB+8, QB+12, QB+16, QB+20]
        OA = SA
        def perms(k, hp):
            A = sets[(2*k + hp) % 4]
            for kk in range(4):
                a(f"v_perm_b32 v{A+kk}, v{PX+4*hp+k//2}, v{PX+4*hp+k//2}, v{SEL[k%2][kk]}")
        perms(0, 0); perms(0, 1)
        for k in range(8):
            a(f"s_waitcnt lgkmcnt({7-k})")
            for hp in range(2):
                A = sets[(2*k + hp) % 4]
                c = "0" if k == 0 else f"v[{OA+4*hp}:{OA+4*hp+3}]"
                if k == 0 and hp == 0: a("s_nop 1")
                a(f"v_mfma_f32_16x16x32_bf16 v[{OA+4*hp}:{OA+4*hp+3}], v[{A}:{A+3}], v[{VR+4*k}:{VR+4*k+3}], {c}")
                if k + 1 < 8: perms(k + 1, hp)
                else: a("s_nop 1")
        a(f"""s_nop 7
        s_nop 1
        s_lshl_b32 s65, s72, 11
        s_add_u32 s65, s65, {OBL}
        v_lshlrev_b32 v{t+1}, 4, v{V_LANE}
        v_add_u32 v{t+1}, s65, v{t+1}
        ds_write_b128 v{t+1}, v[{OA}:{OA+3}]
        ds_write_b128 v{t+1}, v[{OA+4}:{OA+7}] offset:1024
        s_lshl_b32 s65, s72, 5
        s_add_u32 s65, s65, {OBS}
        v_lshlrev_b32 v{t+1}, 3, v{V_J16}
        v_add_u32 v{t+1}, s65, v{t+1}
        v_cmp_gt_u32 vcc, 4, v{V_LANE}
        s_and_saveexec_b64 s[70:71], vcc
        ds_write_b64 v{t+1}, v[{m}:{m+1}]
        s_mov_b64 exec, s[70:71]
        s_waitcnt lgkmcnt(0)
        v_mov_b32 v{t+1}, {FLAGS + 4*F_BARR}
        v_mov_b32 v{t+2}, 1
        s_mov_b64 exec, 1
        ds_add_rtn_u32 v{t+3}, v{t+1}, v{t+2}
        s_waitcnt lgkmcnt(0)
        s_mov_b64 exec, -1
        v_readfirstlane_b32 s65, v{t+3}
        s_nop 1
        s_cmp_lg_u32 s65, 3
        s_cbranch_scc1 .Lt47end
        """)
        a(f"""
        v_lshlrev_b32 v{t+1}, 4, v{V_LANE}
        v_add_u32 v{t+1}, {OBL}, v{t+1}
        v_lshrrev_b32 v{t+2}, 1, v{V_G}
        v_lshlrev_b32 v{t+2}, 3, v{t+2}
        v_add_u32 v{t+2}, {OBS}, v{t+2}
        """)
        OZ = SA
        ST = SA + 32
        for z in range(4):
            for hp in range(2):
                a(f"ds_read_b128 v[{OZ+8*z+4*hp}:{OZ+8*z+4*hp+3}], v{t+1} offset:{z*2048+hp*1024}")
        a("s_waitcnt lgkmcnt(4)")
        for z in range(4):
            for hp in range(2):
                a(f"ds_read_b64 v[{ST+4*z+2*hp}:{ST+4*z+2*hp+1}], v{t+2} offset:{z*32+hp*16}")
        a("s_waitcnt lgkmcnt(0)")
        F = SA + 48
        for hp in range(2):
            ms = [ST+4*z+2*hp for z in range(4)]
            a(f"v_max3_f32 v{F}, v{ms[0]}, v{ms[1]}, v{ms[2]}")
            a(f"v_max_f32 v{F}, v{F}, v{ms[3]}")
            for z in range(4): a(f"v_sub_f32 v{F+1+z}, v{ms[z]}, v{F}")
            for z in range(4): a(f"v_exp_f32 v{F+1+z}, v{F+1+z}")
            a("s_nop 0")
            a(f"v_mul_f32 v{F+5}, v{F+1}, v{ms[0]+1}")
            for z in range(1, 4): a(f"v_fmac_f32 v{F+5}, v{F+1+z}, v{ms[z]+1}")
            for r in range(4):
                a(f"v_mul_f32 v{F+6+r}, v{F+1}, v{OZ+4*hp+r}")
                for z in range(1, 4):
                    a(f"v_fmac_f32 v{F+6+r}, v{F+1+z}, v{OZ+8*z+4*hp+r}")
            q = QB + 8*hp
            a(f"""v_cvt_pk_bf16_f32 v{q}, v{F+6}, v{F+7}
            v_cvt_pk_bf16_f32 v{q+2}, v{F+8}, v{F+9}
            v_mov_b32 v{q+1}, s{S_TAG}
            v_mov_b32 v{q+3}, s{S_TAG}
            v_mov_b32 v{q+4}, v{F}
            v_mov_b32 v{q+5}, s{S_TAG}
            v_mov_b32 v{q+6}, v{F+5}
            v_mov_b32 v{q+7}, s{S_TAG}""")
        a(f"""
        s_lshr_b32 s64, s2, 7
        s_lshl_b32 s64, s64, 5
        s_and_b32 s65, s2, 7
        s_lshl_b32 s65, s65, 2
        s_add_u32 s64, s64, s65
        s_lshl_b32 s64, s64, 4
        s_bfe_u32 s65, s2, 0x40003
        s_add_u32 s64, s64, s65
        s_lshl_b32 s66, s64, 9
        s_add_u32 s66, s66, {H3B}
        s_add_u32 s67, s66, 16384
        s_lshl_b32 s68, s64, 4
        s_add_u32 s68, s68, {H3BS}
        v_lshrrev_b32 v{t+1}, 1, v{V_G}
        v_lshlrev_b32 v{t+2}, 13, v{t+1}
        v_lshl_add_u32 v{t+2}, v{V_J16}, 5, v{t+2}
        v_and_b32 v{t+3}, 1, v{V_G}
        v_lshl_add_u32 v{t+2}, v{t+3}, 4, v{t+2}
        buffer_store_dwordx4 v[{QB}:{QB+3}], v{t+2}, {WS}, s66 offen sc1
        buffer_store_dwordx4 v[{QB+8}:{QB+11}], v{t+2}, {WS}, s67 offen sc1
        v_lshlrev_b32 v{t+1}, 8, v{t+1}
        v_and_b32 v{t+3}, 31, v{V_LANE}
        v_cmp_eq_u32 vcc, 0, v{t+3}
        s_and_saveexec_b64 s[70:71], vcc
        buffer_store_dwordx4 v[{QB+4}:{QB+7}], v{t+1}, {WS}, s68 offen sc1
        buffer_store_dwordx4 v[{QB+12}:{QB+15}], v{t+1}, {WS}, s68 offen offset:512 sc1
        s_mov_b64 exec, s[70:71]
        s_and_b32 s64, s2, 7
        s_lshl_b32 s64, s64, 9
        s_lshr_b32 s65, s2, 7
        s_lshl_b32 s65, s65, 5
        s_add_u32 s64, s64, s65
        s_bfe_u32 s65, s2, 0x30004
        s_lshl_b32 s65, s65, 2
        s_add_u32 s64, s64, s65
        s_add_u32 s64, s64, {FL_H3B}
        """)
        self.pub_flag("s64", cond="s_bitcmp1_b32 s2, 3", nrep=4)
        a.label(".Lt47end")
        self.stamp(11)
        self.dump_stamps()
        a("s_branch .Lend")

    def build(self):
        a = self.a
        name = KNAME + "_kernel"
        a.raw(HEADER.rstrip())
        a.raw(f"; @launch grid=(256,1,1) block=(512,1,1) lds={LDS_TOTAL}")
        a.raw('.amdgcn_target "amdgcn-amd-amdhsa--gfx950"')
        kernel_begin(a, name)
        self.prologue()
        self.w0_front()
        self.w1_front()
        self.w2_front()
        self.w3_front()
        self.w47_front()
        self.attn()
        self.tail_w0()
        self.tail_w1()
        self.tail_w2()
        self.tail_w3()
        self.tail_w47()
        a.label(".Lend")
        a("s_endpgm")
        return a.text() + kernel_desc(name, 256, 102, 256)

if __name__ == "__main__":
    import argparse
    ap = argparse.ArgumentParser()
    ap.add_argument("-o", default="k2.s")
    ap.add_argument("--diag", action="store_true")
    ap.add_argument("--depth", type=int, default=24)
    ap.add_argument("--ldepth", type=int, default=4)
    ap.add_argument("--opt", action="append", default=[])
    args = ap.parse_args()
    opts = {k: int(v) for k, v in (x.split("=") for x in args.opt)}
    open(args.o, "w").write(G(diag=args.diag, depth=args.depth, ldepth=args.ldepth, opts=opts).build())
```

```python
import sys, struct
from asmlib import *

H1A  = 0x040000
H1B  = 0x080000
H2   = 0x0C0000
H4   = 0x100000
H3B  = 0x140000
H3BS = 0x1C0000
H3S  = 0x1C8000
H5   = 0x200000
H3   = 0x400000
FL    = 0x010000
FL_H1A = FL
FL_H4  = FL + 32*128
FL_H2  = FL + 64*128
FL_H3  = FL + 96*128
FL_H3B = FL + 128*128
FL_H5  = FL + 160*128
FL_H1B = FL + 192*128
LOC = 0x800000
STAMP = 0x1000000
CKV   = 0x00000
LK, LV = 0x0000, 0x8000
LW0, LW1, LW2 = 0x10000, 0x14000, 0x18000
QABS  = 0x20000
PBUF  = 0x24000
MAXB  = 0x25000
LBUF  = 0x25200
FLAGS = 0x25400
VEC0  = 0x25500
VEC1  = 0x25600
OBS   = 0x25700
QBL   = 0x25800
PBL   = 0x25C00
OBL   = 0x26000
LDS_TOTAL = 0x28000
F_LANDED, F_QABS, F_CLR, F_QB, F_BARR, F_WUV, F_WO, F_WOB, F_G3, F_QPUB, F_ISSUED, F_G4, F_G2, F_G1, F_G2I, F_REL0, F_REL1, F_REL2, F_G1D, F_WQI = range(20)

TAGC = 0x9E3779B9
CSF = (128 ** -0.5) * 1.4426950408889634
CS = struct.unpack("<I", struct.pack("<f", CSF))[0]

def Lsw(i):
    return (i & 1) | ((i & 2) << 2) | ((i & 4) >> 1) | ((i & 8) >> 1)

S_WAVE = 3
S_TAG, S_H, S_J, S_SPIN = 44, 45, 46, 47
WS = "s[48:51]"
S_V = 62
S_LAND = 63
S_AB, S_AS, S_AHALF = 74, 75, 76
S_KOFF = 79
V_LANE, V_J16, V_G = 1, 2, 3
SEL = [[4, 5, 6, 7], [8, 9, 10, 11]]
MSK = [[12, 13], [14, 15]]
AD_SA, AD_QB, AD_TRL, AD_TRH = 16, 20, 24, 28
T0 = 32
KREG = 48
SA = 80
PA = 144
VREG = 176
QB = 208
ACC = 240
M0_ = 244
V_ST = 255
WAVE2TILE = [7, 4, 0, 1, 2, 3, 5, 6]

class G:
    def __init__(self, diag=False, depth=24, spin_lim=2000000, ldepth=4, opts=None):
        self.a = Asm()
        self.diag = diag
        self.depth = depth
        self.ldepth = ldepth
        self.spin_lim = spin_lim
        self.o = dict(kdelay=128, wqdelay=16, clrdelay=0)
        if opts: self.o.update(opts)
    def stamp(self, k):
        if self.diag:
            assert k < 16
            self.a(f"""s_memrealtime s[100:101]
            s_waitcnt lgkmcnt(0)
            v_writelane_b32 v{V_ST}, s100, {k}""")
    def stamp_w2(self, k):
        if not self.o.get('ldstamps'): self.stamp(k)
    def dump_stamps(self, n=16):
        a = self.a
        if not self.diag: return
        a(f"""s_lshl_b32 s64, s2, 3
        s_add_u32 s64, s64, s{S_WAVE}
        s_lshl_b32 s64, s64, 6
        s_add_u32 s64, s64, {STAMP}
        v_lshlrev_b32 v33, 2, v{V_LANE}
        s_mov_b64 exec, 0xffff
        buffer_store_dword v{V_ST}, v33, {WS}, s64 offen
        s_mov_b64 exec, -1""")
    def srd(self, s, base, nbytes):
        srd(self.a, s, base, base + 1, nbytes)
    def spin_fail(self, retry):
        a = self.a
        a(f"""s_add_u32 s{S_SPIN}, s{S_SPIN}, 1
        s_cmp_lt_u32 s{S_SPIN}, {self.spin_lim}
        s_cbranch_scc1 {retry}
        s_branch .Lend""")
    def wait_flag(self, idx, target, vt=T0+14, va=T0+15, dst="s65", sleep=0):
        a = self.a
        lp = a.newlabel("wf"); ok = a.newlabel("wfok")
        a(f"v_mov_b32 v{va}, {FLAGS + 4*idx}")
        a.label(lp)
        a(f"""ds_read_b32 v{vt}, v{va}
        s_waitcnt lgkmcnt(0)
        v_readfirstlane_b32 {dst}, v{vt}
        s_nop 1
        s_cmp_ge_u32 {dst}, {target}
        s_cbranch_scc1 {ok}""")
        if sleep: a(f"s_sleep {sleep}")
        self.spin_fail(lp)
        a.label(ok)
    def wait_landed(self, target):
        a = self.a
        sk = a.newlabel("wl")
        a(f"""s_cmp_ge_u32 s{S_LAND}, {target}
        s_cbranch_scc1 {sk}""")
        self.wait_flag(F_LANDED, target, dst=f"s{S_LAND}")
        a.label(sk)
    def set_flag(self, idx, val=1, vt=T0+14, va=T0+15, add=False):
        a = self.a
        a(f"v_mov_b32 v{va}, {FLAGS + 4*idx}")
        a(f"v_mov_b32 v{vt}, {val}")
        if add:
            a("s_mov_b64 exec, 1")
            a(f"ds_add_u32 v{va}, v{vt}")
            a("s_mov_b64 exec, -1")
        else:
            a(f"ds_write_b32 v{va}, v{vt}")
    def load_tag(self):
        self.a(f"s_load_dword s{S_TAG}, s[42:43], 0")
    def get_tag(self):
        self.a(f"""s_waitcnt lgkmcnt(0)
        s_add_u32 s{S_TAG}, s{S_TAG}, {TAGC}""")
    def poll_light(self, voff, soff, nlanes, sleep=2, vd=T0+12):
        a = self.a
        lp = a.newlabel("pl"); ok = a.newlabel("plok")
        a(f"""v_cmp_gt_u32 vcc, {nlanes}, v{V_LANE}
        s_and_saveexec_b64 s[70:71], vcc""")
        a.label(lp)
        a(f"""buffer_load_dwordx2 v[{vd}:{vd+1}], v{voff}, {WS}, {soff} offen sc1
        s_waitcnt vmcnt(0)
        v_cmp_ne_u32 vcc, s{S_TAG}, v{vd+1}
        s_nop 1
        s_cbranch_vccz {ok}""")
        if sleep: a(f"s_sleep {sleep}")
        self.spin_fail(lp)
        a.label(ok)
        a("s_mov_b64 exec, s[70:71]")
    def sgate(self, s_off, n, lim=None, sleep=2):
        a = self.a
        lim = lim or self.o.get("sgate_lim", 4000)
        assert n in (8, 16)
        B = 80
        a(f"""s_add_u32 s60, s42, {s_off}
        s_addc_u32 s61, s43, 0
        s_mov_b32 s65, 0""")
        lp = a.newlabel("sg"); ok = a.newlabel("sgok"); rt = a.newlabel("sgrt")
        a.label(lp)
        a(f"s_load_dwordx{n} s[{B}:{B+n-1}], s[60:61], 0 glc")
        a("s_waitcnt lgkmcnt(0)")
        for i in range(n):
            a(f"s_cmp_lg_u32 s{B+i}, s{S_TAG}")
            a(f"s_cbranch_scc1 {rt}")
        a(f"s_branch {ok}")
        a.label(rt)
        a(f"""s_sleep {sleep}
        s_add_u32 s65, s65, 1
        s_cmp_lt_u32 s65, {lim}
        s_cbranch_scc1 {lp}""")
        a.label(ok)
    def pub_flag(self, s_off, cond=None, nrep=1, vt=T0+14, va=T0+15):
        a = self.a
        sk = a.newlabel("pf")
        if cond:
            a(cond)
            a(f"s_cbranch_scc0 {sk}")
        a(f"""v_lshlrev_b32 v{va}, 7, v{V_LANE}
        v_mov_b32 v{vt}, s{S_TAG}
        s_mov_b64 exec, {(1 << nrep) - 1}
        buffer_store_dword v{vt}, v{va}, {WS}, {s_off} offen sc1
        s_mov_b64 exec, -1""")
        a.label(sk)
    def tagcheck(self, words, acc, retry, sleep=2, onfail=None):
        a = self.a
        a(f"v_xor_b32 v{acc}, s{S_TAG}, v{words[0]}")
        for w in words[1:]:
            a(f"v_bitop3_b32 v{acc}, v{acc}, v{w}, s{S_TAG} bitop3:0xf6")
        ok = a.newlabel("tok")
        a(f"""v_cmp_ne_u32 vcc, 0, v{acc}
        s_nop 1
        s_cbranch_vccz {ok}""")
        if onfail: onfail()
        else:
            if sleep: a(f"s_sleep {sleep}")
            self.spin_fail(retry)
        a.label(ok)
    def xrow_reduce(self, op, x, tmp, steps=(16, 32)):
        a = self.a
        for st in steps:
            a(f"""v_mov_b32 v{tmp}, v{x}
            s_nop 1
            v_permlane{st}_swap_b32 v{x}, v{tmp}
            s_nop 1
            {op} v{x}, v{x}, v{tmp}""")
    def diag_mfma(self, X, W, acc, A0, A1, n=16, pre=None, pre_first=False):
        a = self.a
        def perms(t):
            A = A0 if t % 2 == 0 else A1
            for k in range(4):
                a(f"v_perm_b32 v{A+k}, v{X + t//2}, v{X + t//2}, v{SEL[t%2][k]}")
        perms(0)
        for t in range(n):
            A = A0 if t % 2 == 0 else A1
            if pre and pre_first: pre(t)
            if t + 1 < n: perms(t + 1)
            else: a("s_nop 1")
            if pre and not pre_first: pre(t)
            c = "0" if t == 0 else f"v[{acc}:{acc+3}]"
            a(f"v_mfma_f32_16x16x32_bf16 v[{acc}:{acc+3}], v[{A}:{A+3}], v[{W+4*t}:{W+4*t+3}], {c}")
    def publish_granule(self, acc, q, voff, soff, local=False):
        a = self.a
        a("s_nop 7")
        a("s_nop 1")
        a(f"""v_cvt_pk_bf16_f32 v{q}, v{acc}, v{acc+1}
        v_cvt_pk_bf16_f32 v{q+2}, v{acc+2}, v{acc+3}
        v_mov_b32 v{q+1}, s{S_TAG}
        v_mov_b32 v{q+3}, s{S_TAG}""")
        if local:
            a(f"""s_add_u32 s69, {soff}, {LOC}
            buffer_store_dwordx4 v[{q}:{q+3}], v{voff}, {WS}, s69 offen""")
        a(f"buffer_store_dwordx4 v[{q}:{q+3}], v{voff}, {WS}, {soff} offen sc1")
    def poll_switch(self, sregs, retry, cnt="s69", after=3, sleep=0):
        a = self.a
        sk = a.newlabel("psw")
        a(f"""s_add_u32 {cnt}, {cnt}, 1
        s_cmp_lg_u32 {cnt}, {after}
        s_cbranch_scc1 {sk}""")
        for r in sregs: a(f"s_sub_u32 {r}, {r}, {LOC}")
        a.label(sk)
        if sleep: a(f"s_sleep {sleep}")
        self.spin_fail(retry)
    def lsb_pat(self, dst, vidx, tmp):
        a = self.a
        a(f"""v_lshlrev_b32 v{tmp}, 3, v{vidx}
        v_lshrrev_b32 v{tmp}, v{tmp}, s{S_TAG}""") if False else None
        a(f"""v_lshlrev_b32 v{tmp}, 3, v{vidx}
        v_mov_b32 v{tmp+1}, s{S_TAG}
        v_lshrrev_b32 v{tmp}, v{tmp}, v{tmp+1}""")
        for i in range(4):
            a(f"""v_bfe_u32 v{dst+i}, v{tmp}, {2*i}, 1
            v_bfe_u32 v{tmp+1}, v{tmp}, {2*i+1}, 1
            v_lshl_or_b32 v{dst+i}, v{tmp+1}, 16, v{dst+i}""")
    def gran_voff(self, v, tmp):
        a = self.a
        a(f"""v_lshrrev_b32 v{v}, 1, v{V_G}
        v_lshlrev_b32 v{v}, 9, v{v}
        v_lshl_add_u32 v{v}, v{V_J16}, 5, v{v}
        v_and_b32 v{tmp}, 1, v{V_G}
        v_lshl_add_u32 v{v}, v{tmp}, 4, v{v}""")
    def hqB(self, dst, tmp):
        self.a(f"""s_and_b32 {dst}, s2, 7
        s_lshl_b32 {dst}, {dst}, 2
        s_bfe_u32 {tmp}, s2, 0x20003
        s_add_u32 {dst}, {dst}, {tmp}""")

    def prologue(self):
        a = self.a
        t = T0
        a(f"""
        s_cmp_ge_u32 s2, 256
        s_cbranch_scc1 .Lend
        s_load_dwordx16 s[16:31], s[0:1], 0
        s_load_dwordx8 s[32:39], s[0:1], 64
        s_load_dwordx4 s[40:43], s[0:1], 96""")
        if self.diag:
            a(f"s_memrealtime s[98:99]")
            a(f"v_mov_b32 v{V_ST}, 0")
        a(f"""
        v_and_b32 v{V_LANE}, 63, v0
        v_lshrrev_b32 v{t}, 6, v0
        v_and_b32 v{V_J16}, 15, v{V_LANE}
        v_readfirstlane_b32 s{S_WAVE}, v{t}
        v_lshrrev_b32 v{V_G}, 4, v{V_LANE}
        v_lshlrev_b32 v{t+1}, 2, v{V_LANE}
        v_add_u32 v{t+1}, {FLAGS}, v{t+1}
        v_mov_b32 v{t+2}, 0
        ds_write_b32 v{t+1}, v{t+2}
        s_and_b32 s{S_H}, s2, 31
        s_lshr_b32 s{S_J}, s2, 5
        s_mov_b32 s{S_SPIN}, 0
        s_mov_b32 s{S_LAND}, 0
        s_lshr_b32 s{S_AB}, s2, 7
        s_and_b32 s{S_AS}, s2, 15
        s_bfe_u32 s64, s2, 0x20005
        s_lshl_b32 s64, s64, 4
        s_or_b32 s{S_AS}, s{S_AS}, s64
        s_bfe_u32 s{S_AHALF}, s2, 0x10004
        """)
        packed = 0
        for w, tl in enumerate(WAVE2TILE): packed |= tl << (4*w)
        a(f"""s_lshl_b32 s64, s{S_WAVE}, 2
        s_lshr_b32 s{S_V}, {packed}, s64
        s_and_b32 s{S_V}, s{S_V}, 15""")
        a(f"""
        v_and_b32 v{t}, 1, v{V_J16}
        v_bfe_u32 v{t+1}, v{V_J16}, 1, 2
        v_cmp_eq_u32 vcc, 1, v{t}
        v_mov_b32 v{t+2}, 0x01000c0c
        v_mov_b32 v{t+3}, 0x03020c0c
        v_mov_b32 v{t+4}, 0x0c0c0100
        v_mov_b32 v{t+5}, 0x0c0c0302
        v_mov_b32 v{t+6}, 0x0c0c0c0c
        v_cndmask_b32 v{t+2}, v{t+4}, v{t+2}, vcc
        v_cndmask_b32 v{t+3}, v{t+5}, v{t+3}, vcc
        """)
        for k in range(4):
            a(f"""v_cmp_eq_u32 vcc, {k}, v{t+1}
            s_nop 1
            v_cndmask_b32 v{SEL[0][k]}, v{t+6}, v{t+2}, vcc
            v_cndmask_b32 v{SEL[1][k]}, v{t+6}, v{t+3}, vcc""")
        a(f"""
        v_cmp_eq_u32 vcc, 1, v{t}
        v_mov_b32 v{t+2}, 0xffff0000
        v_mov_b32 v{t+4}, 0x0000ffff
        v_cndmask_b32 v{t+2}, v{t+4}, v{t+2}, vcc
        v_lshrrev_b32 v{t+3}, 1, v{V_J16}
        """)
        for sg in range(2):
            for rg in range(2):
                a(f"""v_cmp_eq_u32 vcc, {sg*2+rg}, v{t+3}
                s_nop 1
                v_cndmask_b32 v{MSK[sg][rg]}, 0, v{t+2}, vcc""")
        a(f"""
        s_waitcnt lgkmcnt(0)
        s_barrier
        """)
        if self.diag: a(f"v_writelane_b32 v{V_ST}, s98, 0")
        self.stamp(15)
        self.srd(48, 42, 268435456)
        a(f"""
        s_cmp_eq_u32 s{S_WAVE}, 0
        s_cbranch_scc1 .Lw0
        s_cmp_eq_u32 s{S_WAVE}, 1
        s_cbranch_scc1 .Lw1
        s_cmp_eq_u32 s{S_WAVE}, 2
        s_cbranch_scc1 .Lw2
        s_cmp_eq_u32 s{S_WAVE}, 3
        s_cbranch_scc1 .Lw3
        s_branch .Lw47
        """)
    def attn_addr(self):
        a = self.a
        t = T0
        a(f"""
        v_and_b32 v{t}, 1, v{V_J16}
        v_and_b32 v{t+1}, 2, v{V_J16}
        v_lshl_or_b32 v{t}, v{t+1}, 2, v{t}
        v_lshrrev_b32 v{t+1}, 1, v{V_J16}
        v_and_b32 v{t+1}, 6, v{t+1}
        v_or_b32 v{t}, v{t}, v{t+1}              ; L(j16)
        v_xor_b32 v{t}, v{t}, v{V_G}             ; u
        v_lshlrev_b32 v{t}, 4, v{t}
        v_lshl_add_u32 v{t}, v{V_J16}, 10, v{t}
        s_lshl_b32 s64, s{S_V}, 14
        """)
        for q in range(4):
            a(f"v_xor_b32 v{AD_QB+q}, {q*64}, v{t}")
        for q in range(4):
            a(f"v_add_u32 v{AD_SA+q}, s64, v{AD_QB+q}")
            a(f"v_add_u32 v{AD_QB+q}, {QABS}, v{AD_QB+q}")
        a(f"""
        v_lshrrev_b32 v{t}, 2, v{V_LANE}          ; rho
        v_and_b32 v{t+1}, 1, v{t}
        v_and_b32 v{t+2}, 2, v{t}
        v_lshl_or_b32 v{t+1}, v{t+2}, 2, v{t+1}
        v_lshrrev_b32 v{t+2}, 1, v{t}
        v_and_b32 v{t+2}, 6, v{t+2}
        v_or_b32 v{t+1}, v{t+1}, v{t+2}          ; L(rho)
        v_and_b32 v{t+2}, 3, v{V_LANE}           ; cgrp
        v_lshlrev_b32 v{t+3}, 1, v{t+2}
        s_and_b32 s65, s{S_V}, 1
        s_lshl_b32 s65, s65, 3
        v_or_b32 v{t+3}, s65, v{t+3}
        v_xor_b32 v{t+3}, v{t+3}, v{t+1}
        v_lshlrev_b32 v{t+3}, 4, v{t+3}
        v_lshl_add_u32 v{t+3}, v{t}, 10, v{t+3}
        s_lshr_b32 s65, s{S_V}, 1
        s_lshl_b32 s65, s65, 8
        v_add_u32 v{t+3}, s65, v{t+3}
        v_and_b32 v{t+2}, 1, v{t+2}
        v_lshl_or_b32 v{t+3}, v{t+2}, 3, v{t+3}
        """)
        for tt in range(4):
            x = ((tt >> 1) << 4) | ((tt & 1) << 3)
            a(f"v_xor_b32 v{AD_TRL+tt}, {x}, v{t+3}")
            a(f"v_add_u32 v{AD_TRH+tt}, 0x10000, v{AD_TRL+tt}")
    def pa_reg(self, sg, t):
        return PA + 16*sg + 4*t
    def tr_reads(self, sg):
        a = self.a
        for t in range(4):
            for tau in range(2):
                row0 = 32*sg + 16*tau
                base = AD_TRL + t if row0 < 64 else AD_TRH + t
                off = (row0 % 64) * 1024
                r = self.pa_reg(sg, t) + 2*tau
                a(f"ds_read_b64_tr_b16 v[{r}:{r+1}], v{base} offset:{off}")
    def sa_reads(self):
        a = self.a
        for s in range(16):
            if s == 12: a("s_waitcnt lgkmcnt(4)")
            a(f"ds_read_b128 v[{SA+4*s}:{SA+4*s+3}], v{AD_SA+(s&3)} offset:{(s>>2)*256}")

    def p1_issue(self, xbase, wbase, s_col):
        a = self.a
        t = T0
        self.srd(56, xbase, 2048)
        self.srd(52, wbase, 4194304)
        a(f"""
        v_lshrrev_b32 v{t+8}, 3, v{V_J16}
        v_lshlrev_b32 v{t+8}, 10, v{t+8}
        v_lshl_add_u32 v{t+8}, v{V_G}, 5, v{t+8}
        s_lshl_b32 s64, s{S_J}, 7
        v_lshlrev_b32 v{t+9}, 17, v{V_G}
        v_lshl_add_u32 v{t+9}, v{V_J16}, 4, v{t+9}
        s_lshl_b32 s66, s{S_J}, 19
        s_add_u32 s66, s66, {s_col}
        s_mov_b32 s67, s66
        buffer_load_dwordx4 v[{M0_}:{M0_+3}], v{t+8}, s[56:59], s64 offen
        buffer_load_dwordx4 v[{M0_+4}:{M0_+7}], v{t+8}, s[56:59], s64 offen offset:16
        """)
        for k in range(16):
            a(f"buffer_load_dwordx4 v[{SA+4*k}:{SA+4*k+3}], v{t+9}, s[52:55], s67 offen nt")
            if k < 15: a("s_add_u32 s67, s67, 8192")
    def p1_compute(self, extra, hbase, s_head):
        a = self.a
        t = T0
        a(f"s_waitcnt vmcnt({16 + extra})")
        def pre(k):
            a(f"s_waitcnt vmcnt({15 - k + extra})")
        self.diag_mfma(M0_, SA, ACC, t, t+4, pre=pre)
        self.get_tag()
        self.gran_voff(t+8, t+9)
        a(f"""
        s_lshl_b32 s64, {s_head}, 3
        s_add_u32 s64, s64, s{S_J}
        s_lshl_b32 s64, s64, 10
        s_add_u32 s64, s64, {hbase}
        """)
        self.publish_granule(ACC, t+12, t+8, "s64", local=(hbase == H1A))

    def w0_front(self):
        a = self.a
        t = T0
        a.label(".Lw0")
        if self.o.get("prio", 1): a("s_setprio 3")
        self.load_tag()
        a(f"s_lshl_b32 s68, s{S_H}, 8")
        self.p1_issue(16, 20, "s68")
        if self.o.get("wqi", 0): self.set_flag(F_WQI)
        self.srd(56, 22, 4194304)
        a(f"""
        v_lshlrev_b32 v{t+7}, 15, v{V_J16}
        v_lshl_add_u32 v{t+7}, v{V_G}, 4, v{t+7}
        s_mov_b32 s67, s66
        """)
        for tt in range(4):
            for sp in range(4):
                r = PA + 16*tt + 4*sp
                a(f"buffer_load_dwordx4 v[{r}:{r+3}], v{t+7}, s[56:59], s67 offen offset:{64*sp} nt")
            if tt < 3: a("s_add_u32 s67, s67, 8192")
        self.attn_addr()
        self.p1_compute(16, H1A, f"s{S_H}")
        self.stamp(2)
        a(f"""
        v_lshrrev_b32 v{t}, 1, v{V_J16}
        v_lshlrev_b32 v{t}, 10, v{t}
        v_and_b32 v{t+1}, 1, v{V_J16}
        v_lshl_add_u32 v{t}, v{t+1}, 9, v{t}
        v_lshl_add_u32 v{t}, v{V_G}, 5, v{t}
        s_lshl_b32 s64, s{S_H}, 13
        s_add_u32 s64, s64, {H1A}
        """)
        a(f"""s_add_u32 s64, s64, {LOC}
        s_mov_b32 s69, 0""")
        if self.o.get("h1wait", 0): a(f"s_sleep {self.o['h1wait']}")
        lp = a.newlabel("h1")
        a.label(lp)
        for sp in range(4):
            for hf in range(2):
                r = QB + 8*sp + 4*hf
                a(f"buffer_load_dwordx4 v[{r}:{r+3}], v{t}, {WS}, s64 offen offset:{128*sp + 16*hf} sc1")
        a("s_waitcnt vmcnt(0)")
        words = []
        for q in range(8): words += [QB + 4*q + 1, QB + 4*q + 3]
        self.tagcheck(words, t+1, lp, onfail=lambda: self.poll_switch(["s64"], lp, after=4))
        self.set_flag(F_G1D)
        self.stamp(3)
        for sp in range(4):
            r = QB + 8*sp
            a(f"""v_mov_b32 v{r+1}, v{r+2}
            v_mov_b32 v{r+2}, v{r+4}
            v_mov_b32 v{r+3}, v{r+6}""")
        a("s_nop 1")
        D0 = KREG
        for sp in range(4):
            for tt in range(4):
                c = "0" if sp == 0 else f"v[{D0+4*tt}:{D0+4*tt+3}]"
                a(f"v_mfma_f32_16x16x32_bf16 v[{D0+4*tt}:{D0+4*tt+3}], v[{QB+8*sp}:{QB+8*sp+3}], v[{PA+16*tt+4*sp}:{PA+16*tt+4*sp+3}], {c}")
        a("s_nop 7"); a("s_nop 1")
        for tt in range(4):
            d = D0 + 4*tt
            a(f"v_add_f32 v{d}, v{d}, v{d+2}")
            a(f"v_add_f32 v{d+1}, v{d+1}, v{d+3}")
        a("s_nop 1")
        for tt in range(4):
            d = D0 + 4*tt
            a(f"v_permlane32_swap_b32 v{d}, v{d+1}")
        a("s_nop 1")
        for tt in range(4):
            d = D0 + 4*tt
            a(f"v_add_f32 v{d}, v{d}, v{d+1}")
        for tt in range(4):
            d = D0 + 4*tt
            a(f"v_mov_b32 v{d+1}, v{d}")
        a("s_nop 1")
        for tt in range(4):
            d = D0 + 4*tt
            a(f"v_permlane16_swap_b32 v{d}, v{d+1}")
        a("s_nop 1")
        for tt in range(4):
            d = D0 + 4*tt
            a(f"v_add_f32 v{d}, v{d}, v{d+1}")
            a(f"v_mul_f32 v{d}, {CS}, v{d}")
        a(f"""
        v_cvt_pk_bf16_f32 v{t+4}, v{D0}, v{D0+4}
        v_cvt_pk_bf16_f32 v{t+6}, v{D0+8}, v{D0+12}
        v_mov_b32 v{t+5}, s{S_TAG}
        v_mov_b32 v{t+7}, s{S_TAG}
        v_lshrrev_b32 v{t}, 1, v{V_G}
        v_lshlrev_b32 v{t}, 16, v{t}
        v_lshl_add_u32 v{t}, v{V_J16}, 4, v{t}
        s_lshl_b32 s64, s{S_H}, 3
        s_add_u32 s64, s64, s{S_J}
        s_lshl_b32 s64, s64, 8
        s_add_u32 s64, s64, {H2}
        """)
        a(f"""
        v_and_b32 v{t+1}, 1, v{V_G}
        v_cmp_eq_u32 vcc, 0, v{t+1}
        s_and_saveexec_b64 s[70:71], vcc
        buffer_store_dwordx4 v[{t+4}:{t+7}], v{t}, {WS}, s64 offen sc1
        s_mov_b64 exec, s[70:71]
        s_lshr_b32 s64, s{S_H}, 4
        s_lshl_b32 s64, s64, 11
        s_and_b32 s65, s{S_H}, 15
        s_lshl_b32 s65, s65, 2
        s_add_u32 s64, s64, s65
        s_add_u32 s64, s64, {FL_H2}
        s_and_b32 s65, s{S_H}, 7
        """)
        self.pub_flag("s64", cond=f"s_cmp_eq_u32 s65, s{S_J}", nrep=16)
        self.stamp(4)
        self.pre_sigma(0)
        self.pre_sigma(1)
        a(f"""s_and_b32 s69, s2, 31
        s_lshl_b32 s69, s69, 7
        s_add_u32 s69, s69, {FL_H2}""")
        self.sgate("s69", 16, sleep=self.o.get("g2sleep", 2))
        self.set_flag(F_G2)
        self.stamp(1)
        self.qabs_gather(0, mid=lambda: self.pre_sigma(2))
        self.own_late()
        a("s_branch .Lattn_s")

    def qabs_gather(self, z, mid=None):
        a = self.a
        t = T0
        def reg(hh, jh):
            return (QB + 8*hh + 4*jh) if hh < 4 else (KREG + 8*(hh-4) + 4*jh)
        a(f"""
        s_lshl_b32 s64, s{S_AB}, 5
        s_lshl_b32 s65, s{S_AHALF}, 4
        s_add_u32 s64, s64, s65
        s_add_u32 s64, s64, {8*z}
        s_lshl_b32 s64, s64, 11
        s_add_u32 s64, s64, {H2}
        v_lshlrev_b32 v{t}, 4, v{V_LANE}
        """)
        def gather():
            for hh in range(8):
                if hh % 2 == 0: a(f"s_add_u32 s66, s64, {hh*2048}")
                for jh in range(2):
                    r = reg(hh, jh)
                    off = (hh % 2) * 2048 + jh * 1024
                    a(f"buffer_load_dwordx4 v[{r}:{r+3}], v{t}, {WS}, s66 offen offset:{off} sc1")
        gather()
        self.set_flag(F_G2I, add=True)
        if mid: mid()
        a(f"""
        v_lshrrev_b32 v{t+2}, 5, v{V_LANE}
        v_lshlrev_b32 v{t+2}, 8, v{t+2}
        v_and_b32 v{t+3}, 1, v{V_G}
        v_lshl_add_u32 v{t+2}, v{t+3}, 7, v{t+2}
        v_lshrrev_b32 v{t+3}, 1, v{V_J16}
        v_lshl_add_u32 v{t+2}, v{t+3}, 4, v{t+2}
        v_and_b32 v{t+3}, 1, v{V_LANE}
        v_lshl_add_u32 v{t+2}, v{t+3}, 3, v{t+2}
        s_waitcnt vmcnt(0)
        """)
        chk = a.newlabel("h2chk")
        a(f"s_branch {chk}")
        lp = a.newlabel("h2")
        a.label(lp)
        gather()
        a("s_waitcnt vmcnt(0)")
        a.label(chk)
        words = []
        for hh in range(8):
            for jh in range(2): words += [reg(hh, jh) + 1, reg(hh, jh) + 3]
        self.tagcheck(words, t+1, lp)
        for hh in range(8):
            head = 8*z + hh
            a(f"v_xor_b32 v{t+4+(hh%2)}, {Lsw(head) << 4}, v{t+2}")
            a(f"v_add_u32 v{t+4+(hh%2)}, {QABS + head*1024}, v{t+4+(hh%2)}")
            for jh in range(2):
                r = reg(hh, jh)
                a(f"ds_write2_b32 v{t+4+(hh%2)}, v{r}, v{r+2} offset0:{jh*128} offset1:{jh*128+1}")
            if hh % 4 == 3: a("s_waitcnt lgkmcnt(4)")
        a("s_waitcnt lgkmcnt(0)")
        self.set_flag(F_QABS, add=True)
        self.stamp(3) if z == 1 else self.stamp(14)

    def w1_front(self):
        a = self.a
        t = T0
        a.label(".Lw1")
        self.load_tag()
        self.hqB("s72", "s73")
        a("s_lshl_b32 s68, s72, 8")
        if self.o.get("wqdelay", 0): self.wait_flag(F_ISSUED, self.o["wqdelay"], sleep=1)
        self.p1_issue(28, 34, "s68")
        self.attn_addr()
        self.p1_compute(0, H1B, "s72")
        a(f"""s_lshl_b32 s64, s72, 9
        s_lshl_b32 s65, s{S_J}, 2
        s_add_u32 s64, s64, s65
        s_add_u32 s64, s64, {FL_H1B}""")
        self.pub_flag("s64", nrep=4)
        self.stamp(2)
        for sg in range(3): self.pre_sigma(sg)
        a("s_branch .Lattn_s")
    def wq_reg(self, k):
        return (KREG + 4*k) if k < 8 else (VREG + 4*(k-8))
    def pre_sigma(self, sg):
        a = self.a
        self.wait_landed(2*sg + 2)
        self.tr_reads(sg)
        sk = a.newlabel("ps")
        a(f"""s_lshr_b32 s65, s{S_V}, 1
        s_cmp_lg_u32 s65, {sg}
        s_cbranch_scc1 {sk}
        s_waitcnt lgkmcnt(0)""")
        self.sa_reads()
        a.label(sk)
        a("s_waitcnt lgkmcnt(0)")
        self.set_flag(F_REL0 + sg, add=True)
    def own_late(self):
        a = self.a
        sk = a.newlabel("ol")
        a(f"""s_cmp_lt_u32 s{S_V}, 6
        s_cbranch_scc1 {sk}
        s_add_u32 s64, s{S_V}, 1""")
        sk2 = a.newlabel("ol2")
        a(f"""s_cmp_ge_u32 s{S_LAND}, s64
        s_cbranch_scc1 {sk2}""")
        self.wait_flag(F_LANDED, "s64", dst=f"s{S_LAND}")
        a.label(sk2)
        self.sa_reads()
        a.label(sk)

    def loader_plan(self):
        L = []
        for tl in range(8):
            for rho in range(16):
                L.append((CKV + (16*tl + rho)*1024, "ckv", "s72" if tl % 2 == 0 else "s73", (tl >> 1)*16384 + rho*1024, KREG + rho))
        for k in range(32): L.append((LK + k*1024, "k", "s77", k*1024, KREG + 16 + (k & 3)))
        V_ = [(LV + k*1024, "v", "s77", k*1024, KREG + 20) for k in range(32)]
        U_ = [(LW0 + k*1024, "wuv", "s78", k*8192, KREG + 21) for k in range(16)]
        L += (U_ + V_) if self.o.get("wuvfirst", 0) else (V_ + U_)
        A_ = [(LW1 + k*1024, "wo", "s79", k*1024, KREG + 22) for k in range(16)]
        B_ = [(LW2 + k*1024, "wob", "s68", k*1024, KREG + 22) for k in range(16)]
        L += (B_ + A_) if self.o.get("wobfirst", 1) else (A_ + B_)
        return L
    def loader_emit(self, lo, hi, paced, st):
        a = self.a
        L = self.loader_plan()
        D = self.depth if lo < 128 else self.o.get("depth2", self.depth)
        srds = dict(ckv=(18, 16777216), k=(30, 33554432), v=(32, 33554432), wuv=(24, 4194304), wo=(26, 4194304), wob=(36, 4194304))
        for i in range(lo, hi):
            lds, key, base, off, vo = L[i]
            if i == self.o.get("n1", -1): self.wait_flag(F_G1D, 1)
            if lo < 128: D = self.o.get("depth1", self.depth) if i < self.o.get("n1", -1) else self.depth
            if i == 128: self.wait_flag(F_REL0, 8)
            if self.o.get("wuvfirst", 0):
                if i == 160: self.wait_flag(F_REL2, 8)
                if i == 176: self.wait_flag(F_REL1, 8)
            else:
                if i == 160: self.wait_flag(F_REL1, 8)
                if i == 192: self.wait_flag(F_REL2, 8)
            if i == self.o.get("pause_at", 208):
                if st["ops"] and isinstance(st["ops"][-1], int): self.loader_wait(st["ops"][-1], st)
                self.wait_flag(F_G3 if self.o.get("pauseg3", 1) else F_WUV, 1, sleep=1)
            if paced and i - D >= st["landed"]:
                self.loader_wait(i - D, st)
            if st["srd"] != key:
                self.srd(52, *srds[key]); st["srd"] = key
            if key == "wob" and off == 0:
                self.hqB("s68", "s69")
                a(f"""s_lshl_b32 s68, s68, 17
                s_lshr_b32 s69, s{S_J}, 2
                s_lshl_b32 s69, s69, 16
                s_add_u32 s68, s68, s69
                s_and_b32 s69, s{S_J}, 3
                s_lshl_b32 s69, s69, 8
                s_add_u32 s68, s68, s69""")
            a(f"s_mov_b32 m0, {lds}")
            a(f"s_add_u32 s67, {base}, {off}")
            a(f"buffer_load_dwordx4 v{vo}, s[52:55], s67 offen nt lds")
            st["ops"].append(i)
            if (i + 1) % 16 == 0 and i < 128:
                a(f"v_mov_b32 v{M0_+2}, {i+1}")
                a(f"ds_write_b32 v{KREG+23}, v{M0_+2} offset:{4*F_ISSUED}")
            if i + 1 == min(D, 128) and not st.get("addr"):
                self.attn_addr(); st["addr"] = True
    def loader_wait(self, idx, st):
        a = self.a
        ops = st["ops"]
        pos = ops.index(idx)
        after = len(ops) - pos - 1
        a(f"s_waitcnt vmcnt({min(after, 63)})")
        del ops[:pos+1]
        old = st["landed"]
        st["landed"] = idx + 1
        for k in range(old // 16 + 1, st["landed"] // 16 + 1):
            self._landed(k)
    def _landed(self, k):
        a = self.a
        if self.o.get("ldstamps") and k <= 8: self.stamp([1,2,3,4,9,10,11,12][k-1])
        a(f"v_mov_b32 v{M0_+2}, {k}")
        a(f"ds_write_b32 v{KREG+23}, v{M0_+2} offset:{4*F_LANDED}")
        tile = WAVE2TILE[2]
        if k in (2, 4, 6):
            sg = k // 2 - 1
            self.tr_reads(sg)
            if tile >> 1 == sg:
                a("s_waitcnt lgkmcnt(0)")
                self.sa_reads()
            a("s_waitcnt lgkmcnt(0)")
            self.set_flag(F_REL0 + sg, add=True)
    def w2_front(self):
        a = self.a
        t = T0
        a.label(".Lw2")
        self.load_tag()
        a(f"""
        s_lshl_b32 s72, s{S_AB}, 23
        s_lshl_b32 s73, s{S_AS}, 17
        s_add_u32 s72, s72, s73
        s_lshl_b32 s68, s{S_AHALF}, 16
        s_xor_b32 s69, s68, 0x10000
        s_add_u32 s73, s72, s69
        s_add_u32 s72, s72, s68
        v_lshlrev_b32 v{M0_}, 4, v{V_LANE}
        """)
        for rho in range(16):
            a(f"v_xor_b32 v{KREG+rho}, {Lsw(rho) << 4}, v{M0_}")
        a(f"v_mov_b32 v{KREG+23}, {FLAGS}")
        st = dict(ops=[], landed=0, srd=None)
        self.ld_state = st
        if self.o.get("wqi", 0): self.wait_flag(F_WQI, 1)
        D = self.o.get("depth1", self.depth) if self.o.get("n1", -1) > 0 else self.depth
        self.loader_emit(0, D, True, st)
        a(f"""
        s_lshr_b32 s68, s2, 7
        s_lshl_b32 s68, s68, 3
        s_and_b32 s65, s2, 7
        s_add_u32 s68, s68, s65
        s_lshl_b32 s68, s68, 13
        s_bfe_u32 s65, s2, 0x40003
        s_lshl_b32 s65, s65, 7
        s_add_u32 s68, s68, s65
        s_add_u32 s68, s68, 6144
        s_lshl_b32 s77, s68, 8
        s_lshl_b32 s78, s{S_J}, 19
        s_lshl_b32 s65, s{S_H}, 8
        s_add_u32 s78, s78, s65                  ; w_uv
        s_lshl_b32 s79, s{S_H}, 17
        s_lshr_b32 s65, s{S_J}, 2
        s_lshl_b32 s65, s65, 16
        s_add_u32 s79, s79, s65
        s_and_b32 s65, s{S_J}, 3
        s_lshl_b32 s65, s65, 8
        s_add_u32 s79, s79, s65                  ; w_o
        v_and_b32 v{t}, 1, v{V_G}
        v_and_b32 v{t+1}, 2, v{V_G}
        v_lshl_or_b32 v{t}, v{t+1}, 2, v{t}      ; L(g)
        v_xor_b32 v{t}, v{t}, v{V_J16}
        v_lshlrev_b32 v{t}, 4, v{t}
        v_lshl_add_u32 v{t}, v{V_G}, 8, v{t}
        """)
        for q in range(4):
            a(f"v_xor_b32 v{KREG+16+q}, {(q << 1) << 4}, v{t}")
        a(f"""
        v_lshlrev_b32 v{KREG+20}, 4, v{V_LANE}                  ; V: linear
        v_lshlrev_b32 v{KREG+21}, 17, v{V_G}
        v_lshl_add_u32 v{KREG+21}, v{V_J16}, 4, v{KREG+21}      ; w_uv: g<<17 | j16<<4
        v_lshlrev_b32 v{KREG+22}, 14, v{V_G}
        v_lshl_add_u32 v{KREG+22}, v{V_J16}, 4, v{KREG+22}      ; w_o/wo: g<<14 | j16<<4
        """)
        kpre = self.o.get("kpre", 0)
        self.loader_emit(D, 128 + kpre, True, st)
        if st["landed"] < 128: self.loader_wait(127, st)
        self.get_tag()
        a(f"s_mov_b32 s{S_LAND}, 8")
        if not self.o.get("ldstamps"): self.stamp(1)
        be = 128 + kpre + self.o.get("burst", 24)
        if be > 128 + kpre:
            if self.o.get("burstgate", 0): self.wait_flag(F_QABS, 2)
            else: self.wait_flag(F_G2I, 2)
            self.loader_emit(128 + kpre, be, False, st)
        self.ld_next = be
        a("s_branch .Lattn_s")

    def w3_front(self):
        a = self.a
        t = T0
        a.label(".Lw3")
        self.load_tag()
        self.attn_addr()
        self.get_tag()
        self.stamp(1)
        self.pre_sigma(0)
        self.pre_sigma(1)
        self.wait_flag(F_G2, 1, sleep=1)
        self.qabs_gather(1, mid=lambda: self.pre_sigma(2))
        a("s_branch .Lattn_s")

    def w47_front(self):
        a = self.a
        a.label(".Lw47")
        self.load_tag()
        self.attn_addr()
        a(f"s_sub_u32 s72, s{S_WAVE}, 4")
        self.get_tag()
        self.pre_sigma(0)
        self.pre_sigma(1)
        self.qb_gather(nv=0)
        self.stamp(1)
        self.pre_sigma(2)
        self.own_late()
        self.stamp(2)
        a("s_branch .Lattn_s")

    def qb_gather(self, mid=None, nv=8):
        a = self.a
        t = T0
        a(f"""s_and_b32 s73, s2, 7
        s_lshl_b32 s73, s73, 2
        s_add_u32 s73, s73, s72
        s_lshr_b32 s69, s2, 7
        s_lshl_b32 s64, s73, 13
        s_lshl_b32 s65, s69, 9
        s_add_u32 s64, s64, s65
        s_add_u32 s64, s64, {H1B}
        s_add_u32 s66, s64, 4096
        v_lshlrev_b32 v{t}, 10, v{V_G}
        v_lshl_add_u32 v{t}, v{V_J16}, 4, v{t}
        """)
        def gather():
            for ph in range(2):
                for dh in range(2):
                    r = QB + 8*ph + 4*dh
                    a(f"buffer_load_dwordx4 v[{r}:{r+3}], v{t}, {WS}, {'s64' if ph == 0 else 's66'} offen offset:{256*dh} sc1")
        a(f"""s_lshl_b32 s67, s73, 2
        s_bfe_u32 s65, s2, 0x20005
        s_add_u32 s67, s67, s65
        s_lshl_b32 s67, s67, 7
        s_add_u32 s67, s67, {FL_H1B}""")
        self.sgate("s67", 8, sleep=10)
        gather()
        if mid: mid()
        a(f"s_waitcnt vmcnt({nv})")
        chk = a.newlabel("h1bchk")
        a(f"s_branch {chk}")
        lp = a.newlabel("h1b")
        a.label(lp)
        gather()
        a("s_waitcnt vmcnt(0)")
        a.label(chk)
        words = []
        for q in range(4): words += [QB + 4*q + 1, QB + 4*q + 3]
        self.tagcheck(words, t+1, lp)
        for q in range(4): a(f"v_mov_b32 v{QB+4*q+1}, v{QB+4*q+2}")
        SE = KREG
        for sg in range(2):
            for rg in range(2):
                a(f"v_and_b32 v{SE+2*sg+rg}, 0x3f803f80, v{MSK[sg][rg]}")
        a("s_nop 1")
        first = True
        for ph in range(2):
            for dh in range(2):
                r = QB + 8*ph + 4*dh
                c = "0" if first else f"v[{ACC}:{ACC+3}]"
                first = False
                a(f"v_mfma_f32_16x16x16_bf16 v[{ACC}:{ACC+3}], v[{SE+2*dh}:{SE+2*dh+1}], v[{r}:{r+1}], {c}")
        a("s_nop 7"); a("s_nop 1")
        for r in range(4): a(f"v_mul_f32 v{ACC+r}, {CS}, v{ACC+r}")
        a(f"""
        v_cvt_pk_bf16_f32 v{t+4}, v{ACC}, v{ACC+1}
        v_cvt_pk_bf16_f32 v{t+5}, v{ACC+2}, v{ACC+3}
        v_lshlrev_b32 v{t+1}, 3, v{V_LANE}
        s_lshl_b32 s65, s72, 8
        s_add_u32 s65, s65, {QBL}
        v_add_u32 v{t+1}, s65, v{t+1}
        v_cmp_gt_u32 vcc, 32, v{V_LANE}
        s_and_saveexec_b64 s[70:71], vcc
        ds_write_b64 v{t+1}, v[{t+4}:{t+5}]
        s_mov_b64 exec, s[70:71]
        s_waitcnt lgkmcnt(0)
        """)
        self.set_flag(F_QB, add=True)

    def v_loads(self):
        a = self.a
        t = T0
        self.srd(56, 32, 33554432)
        a(f"""v_lshlrev_b32 v{t+11}, 11, v{V_G}
        v_lshl_add_u32 v{t+11}, v{V_J16}, 4, v{t+11}""")
        for k in range(8):
            a(f"buffer_load_dwordx4 v[{VREG+4*k}:{VREG+4*k+3}], v{t+11}, s[56:59], s{S_KOFF} offen offset:{256*k} nt")

    def attn(self):
        a = self.a
        t = T0
        a.label(".Lattn")
        for sg in range(2):
            self.wait_landed(2*sg + 2)
            self.tr_reads(sg)
        a.label(".Lattn_own")
        a(f"s_add_u32 s64, s{S_V}, 1")
        sk = a.newlabel("own")
        a(f"""s_cmp_ge_u32 s{S_LAND}, s64
        s_cbranch_scc1 {sk}""")
        self.wait_flag(F_LANDED, "s64", dst=f"s{S_LAND}")
        a.label(sk)
        a("s_waitcnt lgkmcnt(0)")
        self.sa_reads()
        a.label(".Lattn_s")
        self.stamp(5)
        self.wait_flag(F_QABS, 2)
        self.stamp(6)
        NB = 8
        def bread(s):
            r = QB + 4*(s % NB)
            a(f"ds_read_b128 v[{r}:{r+3}], v{AD_QB+(s&3)} offset:{(s>>2)*256}")
        for s in range(NB): bread(s)
        for s in range(16):
            rem = min(NB - 1, 15 - s)
            a(f"s_waitcnt lgkmcnt({rem})")
            r = QB + 4*(s % NB)
            c = "0" if s == 0 else f"v[{ACC}:{ACC+3}]"
            a(f"v_mfma_f32_16x16x32_bf16 v[{ACC}:{ACC+3}], v[{SA+4*s}:{SA+4*s+3}], v[{r}:{r+3}], {c}")
            if s + NB < 16: bread(s + NB)
        m = M0_
        a(f"""
        v_lshlrev_b32 v{t}, 5, v{V_J16}
        s_lshl_b32 s65, s{S_V}, 2
        v_add_u32 v{t}, s65, v{t}                ; head*32 + v*4
        v_add_u32 v{t+1}, {MAXB}, v{t}
        v_lshlrev_b32 v{t+2}, 5, v{V_J16}
        v_add_u32 v{t+2}, {MAXB}, v{t+2}
        s_nop 4
        v_max_f32 v{m}, v{ACC}, v{ACC+1}
        v_max3_f32 v{m}, v{m}, v{ACC+2}, v{ACC+3}""")
        self.xrow_reduce("v_max_f32", m, m+1)
        a(f"""
        v_cmp_gt_u32 vcc, 16, v{V_LANE}
        s_and_saveexec_b64 s[70:71], vcc
        ds_write_b32 v{t+1}, v{m}
        s_mov_b64 exec, s[70:71]
        s_waitcnt lgkmcnt(0)
        s_barrier
        ds_read_b128 v[{QB}:{QB+3}], v{t+2}
        ds_read_b128 v[{QB+4}:{QB+7}], v{t+2} offset:16
        """)
        self.tr_reads(3)
        a(f"""
        s_waitcnt lgkmcnt(8)
        v_max3_f32 v{m}, v{QB}, v{QB+1}, v{QB+2}
        v_max3_f32 v{m}, v{m}, v{QB+3}, v{QB+4}
        v_max3_f32 v{m}, v{m}, v{QB+5}, v{QB+6}
        v_max_f32 v{m}, v{m}, v{QB+7}
        """)
        for r in range(4): a(f"v_sub_f32 v{ACC+r}, v{ACC+r}, v{m}")
        for r in range(4): a(f"v_exp_f32 v{ACC+r}, v{ACC+r}")
        a(f"""s_nop 0
        v_add_f32 v{m+1}, v{ACC}, v{ACC+1}
        v_add_f32 v{m+2}, v{ACC+2}, v{ACC+3}
        v_cvt_pk_bf16_f32 v{m+4}, v{ACC}, v{ACC+1}
        v_cvt_pk_bf16_f32 v{m+5}, v{ACC+2}, v{ACC+3}
        v_add_f32 v{m+1}, v{m+1}, v{m+2}
        s_lshr_b32 s65, s{S_V}, 1
        s_lshl_b32 s65, s65, 10
        s_and_b32 s66, s{S_V}, 1
        s_lshl_b32 s66, s66, 3
        s_add_u32 s65, s65, s66
        s_add_u32 s65, s65, {PBUF}
        v_lshlrev_b32 v{t+2}, 4, v{V_LANE}
        v_add_u32 v{t+3}, s65, v{t+2}
        ds_write_b64 v{t+3}, v[{m+4}:{m+5}]
        """)
        self.xrow_reduce("v_add_f32", m+1, m+2)
        a(f"""
        v_add_u32 v{t+1}, {LBUF}, v{t}
        v_cmp_gt_u32 vcc, 16, v{V_LANE}
        s_and_saveexec_b64 s[70:71], vcc
        ds_write_b32 v{t+1}, v{m+1}
        s_mov_b64 exec, s[70:71]
        v_add_u32 v{t+2}, {PBUF}, v{t+2}
        s_waitcnt lgkmcnt(0)
        s_barrier
        """)
        self.stamp(7)
        for sg in range(4):
            a(f"ds_read_b128 v[{QB+4*sg}:{QB+4*sg+3}], v{t+2} offset:{sg*1024}")
        if self.o.get("h3early", 0):
            sk3 = a.newlabel("h3e")
            a(f"""s_cmp_lg_u32 s{S_WAVE}, 3
            s_cbranch_scc1 {sk3}""")
            self.h3_flag()
            a.label(sk3)
        PV = SA + 32
        for sg in range(4):
            a(f"s_waitcnt lgkmcnt({3-sg})")
            for tt in range(4):
                r = self.pa_reg(sg, tt)
                c = "0" if sg == 0 else f"v[{PV+4*tt}:{PV+4*tt+3}]"
                a(f"v_mfma_f32_16x16x32_bf16 v[{PV+4*tt}:{PV+4*tt+3}], v[{r}:{r+3}], v[{QB+4*sg}:{QB+4*sg+3}], {c}")
        a(f"""
        v_lshlrev_b32 v{t+2}, 17, v{V_J16}
        v_lshl_add_u32 v{t+2}, v{V_G}, 4, v{t+2}
        s_lshl_b32 s64, s{S_AHALF}, 21
        s_lshl_b32 s65, s{S_V}, 14
        s_add_u32 s64, s64, s65
        s_lshl_b32 s65, s{S_AB}, 13
        s_add_u32 s64, s64, s65
        s_lshl_b32 s65, s{S_AS}, 7
        s_add_u32 s64, s64, s65
        s_add_u32 s64, s64, {H3}
        s_mov_b32 s67, 0xfffefffe
        """)
        self.lsb_pat(M0_+6, V_G, t+4)
        O = SA + 48
        for tt in range(4):
            d = PV + 4*tt
            a(f"v_cvt_pk_bf16_f32 v{O+2*tt}, v{d}, v{d+1}")
            a(f"v_cvt_pk_bf16_f32 v{O+2*tt+1}, v{d+2}, v{d+3}")
        for r in range(8): a(f"v_and_or_b32 v{O+r}, v{O+r}, s67, v{M0_+6+(r%4)}")
        TT = O + 8
        for r in range(4): a(f"v_mov_b32 v{TT+r}, v{O+4+r}")
        a("s_nop 0")
        for r in range(4): a(f"v_mov_b32_dpp v{O+4+r}, v{O+r} row_ror:8 row_mask:0xf bank_mask:0x3")
        for r in range(4): a(f"v_mov_b32_dpp v{O+r}, v{TT+r} row_ror:8 row_mask:0xf bank_mask:0xc")
        a(f"""v_and_b32 v{t+2}, 7, v{V_J16}
        v_lshlrev_b32 v{t+2}, 17, v{t+2}
        v_lshrrev_b32 v{t+3}, 3, v{V_J16}
        v_lshl_add_u32 v{t+2}, v{t+3}, 6, v{t+2}
        v_lshl_add_u32 v{t+2}, v{V_G}, 4, v{t+2}
        s_add_u32 s65, s64, 0x100000
        buffer_store_dwordx4 v[{O}:{O+3}], v{t+2}, {WS}, s64 offen sc1
        buffer_store_dwordx4 v[{O+4}:{O+7}], v{t+2}, {WS}, s65 offen sc1
        """)
        self.stamp(8)
        a(f"""
        s_cmp_eq_u32 s{S_WAVE}, 0
        s_cbranch_scc1 .Lt0
        s_cmp_eq_u32 s{S_WAVE}, 1
        s_cbranch_scc1 .Lt1
        s_cmp_eq_u32 s{S_WAVE}, 2
        s_cbranch_scc1 .Lt2
        s_cmp_eq_u32 s{S_WAVE}, 3
        s_cbranch_scc1 .Lt3
        s_branch .Lt47
        """)

    def read_w_lds(self, base, dst):
        a = self.a
        t = T0
        a(f"v_lshlrev_b32 v{t+13}, 4, v{V_LANE}")
        a(f"v_add_u32 v{t+13}, {base}, v{t+13}")
        for k in range(16):
            if k == 12: a("s_waitcnt lgkmcnt(4)")
            a(f"ds_read_b128 v[{dst+4*k}:{dst+4*k+3}], v{t+13} offset:{k*1024}")
    def vec_to_x(self, vec, X):
        a = self.a
        t = T0
        a(f"""v_lshrrev_b32 v{t+13}, 3, v{V_J16}
        v_lshlrev_b32 v{t+13}, 7, v{t+13}
        v_lshl_add_u32 v{t+13}, v{V_G}, 5, v{t+13}
        v_add_u32 v{t+13}, {vec}, v{t+13}
        s_waitcnt lgkmcnt(0)
        ds_read_b128 v[{X}:{X+3}], v{t+13}
        ds_read_b128 v[{X+4}:{X+7}], v{t+13} offset:16
        s_waitcnt lgkmcnt(0)""")
    def publish_h5(self, acc, src, s_pp):
        a = self.a
        t = T0
        a(f"""v_lshrrev_b32 v{t+8}, 2, v{V_LANE}
        v_lshlrev_b32 v{t+8}, 12, v{t+8}
        v_and_b32 v{t+9}, 3, v{V_LANE}
        v_lshl_add_u32 v{t+8}, v{t+9}, 4, v{t+8}
        s_and_b32 s64, s{S_J}, 3
        s_add_u32 s64, s64, {src*4}
        s_lshl_b32 s64, s64, 16
        s_lshl_b32 s65, {s_pp}, 6
        s_add_u32 s64, s64, s65
        s_add_u32 s64, s64, {H5}""")
        self.publish_granule(acc, t+4, t+8, "s64")
        a(f"""s_and_b32 s64, s{S_J}, 3
        s_add_u32 s64, s64, {src*4}
        s_lshl_b32 s64, s64, 8
        s_lshr_b32 s65, {s_pp}, 2
        s_lshl_b32 s65, s65, 2
        s_add_u32 s64, s64, s65
        s_add_u32 s64, s64, {FL_H5}
        s_and_b32 s65, {s_pp}, 3
        """)
        self.pub_flag("s64", cond="s_cmp_eq_u32 s65, 1", nrep=2)

    def tail_w0(self):
        a = self.a
        t = T0
        X = QB; A0 = QB + 8; A1 = QB + 12
        a.label(".Lt0")
        a(f"""
        v_lshrrev_b32 v{t}, 3, v{V_J16}
        v_lshlrev_b32 v{t}, 10, v{t}
        v_lshl_add_u32 v{t}, v{V_G}, 8, v{t}
        v_and_b32 v{t+1}, 7, v{V_J16}
        v_lshl_add_u32 v{t}, v{t+1}, 5, v{t}
        s_lshl_b32 s64, s{S_H}, 11
        s_add_u32 s64, s64, {H3S}
        v_lshrrev_b32 v{t+2}, 3, v{V_J16}
        v_lshlrev_b32 v{t+2}, 13, v{t+2}
        v_lshl_add_u32 v{t+2}, v{V_G}, 11, v{t+2}
        v_lshl_add_u32 v{t+2}, v{t+1}, 4, v{t+2}
        s_lshl_b32 s66, s{S_H}, 3
        s_add_u32 s66, s66, s{S_J}
        s_lshl_b32 s66, s66, 14
        s_add_u32 s66, s66, {H3}
        """)
        S = KREG
        PT = KREG + 16
        a(f"v_and_b32 v{PT+4}, 3, v{V_J16}")
        self.lsb_pat(PT, PT+4, PT+5)
        a(f"""s_lshl_b32 s67, s{S_H}, 7
        s_add_u32 s67, s67, {FL_H3}""")
        if self.diag: self.stamp(15)
        self.sgate("s67", 16, sleep=self.o.get("gsleep", 3))
        if self.diag and self.o.get("cnt"): a(f"v_writelane_b32 v{V_ST}, s65, 1")
        self.stamp(9)
        lp2 = a.newlabel("h3p")
        a.label(lp2)
        a(f"""buffer_load_dwordx4 v[{S}:{S+3}], v{t}, {WS}, s64 offen sc1
        buffer_load_dwordx4 v[{S+4}:{S+7}], v{t}, {WS}, s64 offen offset:16 sc1""")
        for k in range(16):
            a(f"buffer_load_dwordx4 v[{SA+4*k}:{SA+4*k+3}], v{t+2}, {WS}, s66 offen offset:{128*k} sc1")
        self.set_flag(F_G3)
        if self.o.get("wuvovl", 1):
            self.wait_flag(F_LANDED, 11 if self.o.get("wuvfirst", 0) else 13)
            self.read_w_lds(LW0, PA)
        a("s_waitcnt vmcnt(16)")
        lpx = a.newlabel("h3x")
        okx = a.newlabel("h3sok")
        a(f"v_xor_b32 v{t+1}, s{S_TAG}, v{S+1}")
        for w_ in (S+3, S+5, S+7):
            a(f"v_bitop3_b32 v{t+1}, v{t+1}, v{w_}, s{S_TAG} bitop3:0xf6")
        a(f"""v_cmp_ne_u32 vcc, 0, v{t+1}
        s_nop 1
        s_cbranch_vccz {okx}
        s_waitcnt vmcnt(0)
        s_sleep 1""")
        self.spin_fail(lp2)
        a.label(okx)
        W = S + 8
        a(f"""
        v_max_f32 v{W}, v{S}, v{S+4}
        s_nop 1
        v_max_f32_dpp v{W}, v{W}, v{W} quad_perm:[1,0,3,2] row_mask:0xf bank_mask:0xf
        s_nop 1
        v_max_f32_dpp v{W}, v{W}, v{W} quad_perm:[2,3,0,1] row_mask:0xf bank_mask:0xf
        s_nop 1
        v_max_f32_dpp v{W}, v{W}, v{W} row_half_mirror row_mask:0xf bank_mask:0xf
        """)
        self.xrow_reduce("v_max_f32", W, W+1)
        a(f"""
        v_sub_f32 v{W+2}, v{S}, v{W}
        v_sub_f32 v{W+3}, v{S+4}, v{W}
        v_exp_f32 v{W+2}, v{W+2}
        v_exp_f32 v{W+3}, v{W+3}
        s_nop 0
        v_cvt_pk_bf16_f32 v{W+4}, v{W+2}, v{W+3}
        v_mul_f32 v{W+5}, v{W+2}, v{S+2}
        v_fmac_f32 v{W+5}, v{W+3}, v{S+6}
        v_lshrrev_b32 v{W+6}, 3, v{V_J16}
        v_lshlrev_b32 v{W+6}, 7, v{W+6}
        v_lshl_add_u32 v{W+6}, v{V_G}, 5, v{W+6}
        v_and_b32 v{W+7}, 7, v{V_J16}
        v_lshl_add_u32 v{W+6}, v{W+7}, 2, v{W+6}
        v_add_u32 v{W+6}, {VEC0}, v{W+6}
        ds_write_b32 v{W+6}, v{W+4}
        """)
        self.vec_to_x(VEC0, X)
        a(f"""
        v_add_f32_dpp v{W+5}, v{W+5}, v{W+5} quad_perm:[1,0,3,2] row_mask:0xf bank_mask:0xf
        s_nop 1
        v_add_f32_dpp v{W+5}, v{W+5}, v{W+5} quad_perm:[2,3,0,1] row_mask:0xf bank_mask:0xf
        s_nop 1
        v_add_f32_dpp v{W+5}, v{W+5}, v{W+5} row_half_mirror row_mask:0xf bank_mask:0xf
        """)
        self.xrow_reduce("v_add_f32", W+5, W+1)
        a(f"v_rcp_f32 v{W+5}, v{W+5}")
        a(f"v_mov_b32 v{W+7}, 0")
        def pre(k):
            a(f"s_waitcnt vmcnt({15-k})")
            r = SA + 4*k
            for i in range(4):
                a(f"v_bitop3_b32 v{W+7}, v{W+7}, v{r+i}, v{PT+i} bitop3:0xf6")
            for i in range(4):
                a(f"v_and_b32 v{r+i}, s68, v{r+i}")
        a("s_mov_b32 s68, 0xfffefffe")
        self.diag_mfma(X, SA, ACC, A0, A1, pre=pre, pre_first=True)
        ok = a.newlabel("h3ok")
        a(f"""v_and_b32 v{W+7}, 0x00010001, v{W+7}
        v_cmp_ne_u32 vcc, 0, v{W+7}
        s_nop 1
        s_cbranch_vccz {ok}""")
        self.spin_fail(lp2)
        a.label(ok)
        self.set_flag(F_WUV)
        self.stamp(10)
        if not self.o.get("wuvovl", 1):
            self.wait_flag(F_LANDED, 11 if self.o.get("wuvfirst", 0) else 13)
            self.read_w_lds(LW0, PA)
        for r in range(4): a(f"v_mul_f32 v{ACC+r}, v{W+5}, v{ACC+r}")
        a(f"""
        v_cvt_pk_bf16_f32 v{t+4}, v{ACC}, v{ACC+1}
        v_cvt_pk_bf16_f32 v{t+5}, v{ACC+2}, v{ACC+3}
        v_and_b32 v{W+6}, 3, v{V_J16}
        v_and_b32 v{W+1}, 1, v{V_G}
        v_xor_b32 v{W+7}, v{W+6}, v{W+1}
        v_and_b32 v{W+7}, 1, v{W+7}
        v_lshlrev_b32 v{W+7}, 3, v{W+7}
        v_lshl_add_u32 v{W+7}, v{W+6}, 5, v{W+7}
        v_bfe_u32 v{W+6}, v{V_J16}, 2, 1
        v_lshl_add_u32 v{W+7}, v{W+6}, 4, v{W+7}
        v_lshrrev_b32 v{W+6}, 3, v{V_J16}
        v_lshl_add_u32 v{W+7}, v{W+6}, 7, v{W+7}
        v_add_u32 v{W+7}, {VEC0}, v{W+7}
        v_lshrrev_b32 v{W+1}, 1, v{V_G}
        v_cmp_eq_u32 vcc, v{W+1}, v{W+6}
        s_and_saveexec_b64 s[70:71], vcc
        ds_write_b64 v{W+7}, v[{t+4}:{t+5}]
        s_mov_b64 exec, s[70:71]
        """)
        self.vec_to_x(VEC0, X)
        self.diag_mfma(X, PA, ACC, A0, A1)
        self.gran_voff(t+8, t+9)
        a(f"""s_lshl_b32 s64, s{S_H}, 3
        s_add_u32 s64, s64, s{S_J}
        s_lshl_b32 s64, s64, 10
        s_add_u32 s64, s64, {H4}""")
        self.publish_granule(ACC, t+4, t+8, "s64", local=True)
        self.stamp(11)
        a(f"""
        v_lshlrev_b32 v{t}, 10, v{V_G}
        v_lshl_add_u32 v{t}, v{V_J16}, 4, v{t}
        s_lshl_b32 s64, s{S_H}, 13
        s_lshr_b32 s65, s{S_J}, 2
        s_lshl_b32 s66, s65, 8
        s_add_u32 s64, s64, s66
        s_add_u32 s64, s64, {H4}
        s_add_u32 s66, s64, 4096
        """)
        SE = KREG
        for sg in range(2):
            for rg in range(2):
                a(f"v_and_b32 v{SE+2*sg+rg}, 0x3f803f80, v{MSK[sg][rg]}")
        self.wait_flag(F_LANDED, 15 if self.o.get("wobfirst", 1) else 14)
        self.read_w_lds(LW1, PA)
        a(f"""s_add_u32 s64, s64, {LOC}
        s_add_u32 s66, s66, {LOC}
        s_mov_b32 s69, 0""")
        lp = a.newlabel("h4")
        a.label(lp)
        for b in range(2):
            for ph in range(2):
                r = SA + 8*b + 4*ph
                a(f"buffer_load_dwordx4 v[{r}:{r+3}], v{t}, {WS}, {'s64' if ph == 0 else 's66'} offen offset:{512*b} sc1")
        a("s_waitcnt vmcnt(0)")
        words = []
        for q in range(4): words += [SA + 4*q + 1, SA + 4*q + 3]
        self.tagcheck(words, t+1, lp, onfail=lambda: self.poll_switch(["s64", "s66"], lp, after=6))
        self.stamp(12)
        for q in range(4): a(f"v_mov_b32 v{SA+4*q+1}, v{SA+4*q+2}")
        a("s_nop 1")
        first = True
        for b in range(2):
            for ph in range(2):
                r = SA + 8*b + 4*ph
                c = "0" if first else f"v[{ACC}:{ACC+3}]"
                first = False
                a(f"v_mfma_f32_16x16x16_bf16 v[{ACC}:{ACC+3}], v[{SE+2*b}:{SE+2*b+1}], v[{r}:{r+1}], {c}")
        a(f"""
        v_lshlrev_b32 v{t+6}, 7, v{V_G}
        v_lshl_add_u32 v{t+6}, v{V_J16}, 3, v{t+6}
        v_add_u32 v{t+6}, {VEC0}, v{t+6}
        v_cmp_gt_u32 vcc, 32, v{V_LANE}
        s_nop 4
        v_cvt_pk_bf16_f32 v{t+4}, v{ACC}, v{ACC+1}
        v_cvt_pk_bf16_f32 v{t+5}, v{ACC+2}, v{ACC+3}
        s_and_saveexec_b64 s[70:71], vcc
        ds_write_b64 v{t+6}, v[{t+4}:{t+5}]
        s_mov_b64 exec, s[70:71]
        """)
        self.vec_to_x(VEC0, X)
        self.diag_mfma(X, PA, ACC, A0, A1)
        a(f"""s_lshl_b32 s67, s{S_H}, 1
        s_lshr_b32 s65, s{S_J}, 2
        s_add_u32 s67, s67, s65""")
        self.publish_h5(ACC, 0, "s67")
        self.stamp(13)
        self.dump_stamps()
        a("s_branch .Lend")

    def tail_w1(self):
        a = self.a
        t = T0
        X = QB; A0 = QB + 8; A1 = QB + 12
        a.label(".Lt1")
        self.hqB("s72", "s73")

        a(f"""s_lshr_b32 s73, s{S_J}, 2
        v_and_b32 v{t}, 3, v{V_J16}
        v_lshlrev_b32 v{t}, 6, v{t}
        v_lshl_add_u32 v{t}, v{V_G}, 4, v{t}
        s_lshl_b32 s64, s72, 8
        s_add_u32 s64, s64, {H3BS}
        s_add_u32 s68, s64, 8192
        v_lshlrev_b32 v{t+2}, 9, v{V_G}
        v_lshl_add_u32 v{t+2}, v{V_J16}, 4, v{t+2}
        s_lshl_b32 s66, s72, 13
        s_lshl_b32 s67, s73, 8
        s_add_u32 s66, s66, s67
        s_add_u32 s66, s66, {H3B}
        """)
        S = KREG
        a(f"""s_and_b32 s67, s2, 7
        s_lshl_b32 s67, s67, 2
        s_lshr_b32 s65, s{S_J}, 1
        s_add_u32 s67, s67, s65
        s_lshl_b32 s67, s67, 7
        s_add_u32 s67, s67, {FL_H3B}""")
        self.sgate("s67", 16, sleep=self.o.get("gsleep", 3))
        lp = a.newlabel("h3b")
        a.label(lp)
        a(f"""buffer_load_dwordx4 v[{S}:{S+3}], v{t}, {WS}, s64 offen sc1
        buffer_load_dwordx4 v[{S+4}:{S+7}], v{t}, {WS}, s68 offen sc1""")
        for b in range(2):
            for k in range(4):
                r = SA + 16*b + 4*k
                a(f"s_add_u32 s67, s66, {b*262144 + (k//2)*4096}")
                a(f"buffer_load_dwordx4 v[{r}:{r+3}], v{t+2}, {WS}, s67 offen offset:{(k%2)*2048} sc1")
        a("s_waitcnt vmcnt(8)")
        W = S + 8
        for b in range(2):
            m, l, w, L = S + 4*b, S + 2 + 4*b, W + b, W + 2 + b
            a(f"""v_mov_b32 v{W+4}, v{m}
            s_nop 1
            v_max_f32_dpp v{W+4}, v{W+4}, v{W+4} quad_perm:[1,0,3,2] row_mask:0xf bank_mask:0xf
            s_nop 1
            v_max_f32_dpp v{W+4}, v{W+4}, v{W+4} quad_perm:[2,3,0,1] row_mask:0xf bank_mask:0xf""")
            self.xrow_reduce("v_max_f32", W+4, W+5)
            a(f"""v_sub_f32 v{w}, v{m}, v{W+4}
            v_exp_f32 v{w}, v{w}
            s_nop 0
            v_mul_f32 v{L}, v{w}, v{l}
            s_nop 1
            v_add_f32_dpp v{L}, v{L}, v{L} quad_perm:[1,0,3,2] row_mask:0xf bank_mask:0xf
            s_nop 1
            v_add_f32_dpp v{L}, v{L}, v{L} quad_perm:[2,3,0,1] row_mask:0xf bank_mask:0xf""")
            self.xrow_reduce("v_add_f32", L, W+5)
            a(f"v_cvt_pk_bf16_f32 v{w}, v{w}, v{w}")
        a("s_waitcnt vmcnt(0)")
        words = [S+1, S+3, S+5, S+7]
        for q in range(8): words += [SA + 4*q + 1, SA + 4*q + 3]
        self.tagcheck(words, t+1, lp)
        self.stamp(9)
        for q in range(8): a(f"v_mov_b32 v{SA+4*q+1}, v{SA+4*q+2}")
        first = True
        for b in range(2):
            for k in range(4):
                r = SA + 16*b + 4*k
                A = A0 + 2*(k % 2)
                a(f"""v_mov_b32_dpp v{W+6}, v{W+b} quad_perm:[{k},{k},{k},{k}] row_mask:0xf bank_mask:0xf
                s_nop 0
                v_and_b32 v{A}, v{W+6}, v{MSK[b][0]}
                v_and_b32 v{A+1}, v{W+6}, v{MSK[b][1]}
                s_nop 1""")
                c = "0" if first else f"v[{ACC}:{ACC+3}]"
                first = False
                a(f"v_mfma_f32_16x16x16_bf16 v[{ACC}:{ACC+3}], v[{A}:{A+1}], v[{r}:{r+1}], {c}")
        a(f"""
        v_cmp_eq_u32 vcc, 1, v{V_G}
        s_nop 1
        v_cndmask_b32 v{W+2}, v{W+2}, v{W+3}, vcc
        v_rcp_f32 v{W+2}, v{W+2}
        s_nop 7
        """)
        for r in range(4): a(f"v_mul_f32 v{ACC+r}, v{W+2}, v{ACC+r}")
        a(f"""
        v_cvt_pk_bf16_f32 v{t+4}, v{ACC}, v{ACC+1}
        v_cvt_pk_bf16_f32 v{t+5}, v{ACC+2}, v{ACC+3}
        v_lshlrev_b32 v{t+6}, 7, v{V_G}
        v_lshl_add_u32 v{t+6}, v{V_J16}, 3, v{t+6}
        v_add_u32 v{t+6}, {VEC1}, v{t+6}
        v_cmp_gt_u32 vcc, 32, v{V_LANE}
        s_and_saveexec_b64 s[70:71], vcc
        ds_write_b64 v{t+6}, v[{t+4}:{t+5}]
        s_mov_b64 exec, s[70:71]
        """)
        self.wait_flag(F_LANDED, 14 if self.o.get("wobfirst", 1) else 15, sleep=1)
        self.read_w_lds(LW2, PA)
        self.vec_to_x(VEC1, X)
        self.diag_mfma(X, PA, ACC, A0, A1)
        a(f"""s_lshl_b32 s67, s72, 1
        s_add_u32 s67, s67, s73""")
        self.publish_h5(ACC, 1, "s67")
        self.stamp(10)
        self.dump_stamps()
        a("s_branch .Lend")

    def late_dma_issue(self, srdsgpr, srdbase, nbytes, rowstride_log2, s_off, ldsbase, vreg):
        a = self.a
        self.srd(srdsgpr, srdbase, nbytes)
        a(f"""v_lshlrev_b32 v{vreg}, {rowstride_log2 + 4}, v{V_G}
        v_lshl_add_u32 v{vreg}, v{V_J16}, 4, v{vreg}
        s_mov_b32 s67, {s_off}""")
        for k in range(16):
            a(f"s_mov_b32 m0, {ldsbase + k*1024}")
            a(f"s_nop 0")
            a(f"buffer_load_dwordx4 v{vreg}, s[{srdsgpr}:{srdsgpr+3}], s67 offen nt lds")
            if k < 15: a(f"s_add_u32 s67, s67, {1 << rowstride_log2}")

    def tail_w2(self):
        a = self.a
        t = T0
        a.label(".Lt2")
        st = self.ld_state
        st["ops"] += ["st0", "st1"]
        st["srd"] = None
        a(f"""
        v_lshlrev_b32 v{KREG+20}, 4, v{V_LANE}
        v_lshlrev_b32 v{KREG+21}, 17, v{V_G}
        v_lshl_add_u32 v{KREG+21}, v{V_J16}, 4, v{KREG+21}
        v_lshlrev_b32 v{KREG+22}, 14, v{V_G}
        v_lshl_add_u32 v{KREG+22}, v{V_J16}, 4, v{KREG+22}
        v_mov_b32 v{KREG+23}, {FLAGS}
        """)
        self.loader_emit(self.ld_next, 240, True, st)
        for idx in range(st["landed"] // 16 * 16 + 15, 240, 16):
            if idx >= st["landed"]: self.loader_wait(idx, st)
        self.stamp_w2(10)
        a(f"""s_cmp_ge_u32 s2, 128
        s_cbranch_scc1 .Lt2end
        s_lshl_b32 s64, s2, 12
        s_add_u32 s64, s64, {H5}
        v_lshlrev_b32 v{t}, 6, v{V_J16}
        v_lshl_add_u32 v{t}, v{V_G}, 4, v{t}
        """)
        a(f"""s_lshr_b32 s67, s2, 3
        s_lshl_b32 s67, s67, 7
        s_add_u32 s67, s67, {FL_H5}""")
        if self.o.get("h5gate", 0): self.sgate("s67", 16, sleep=self.o.get("gsleep", 3))
        lp = a.newlabel("h5")
        a.label(lp)
        for u in range(4):
            a(f"buffer_load_dwordx4 v[{SA+4*u}:{SA+4*u+3}], v{t}, {WS}, s64 offen offset:{1024*u} sc1")
        a("s_waitcnt vmcnt(0)")
        words = []
        for q in range(4): words += [SA + 4*q + 1, SA + 4*q + 3]
        self.tagcheck(words, t+1, lp, sleep=1)
        self.stamp_w2(11)
        for u in range(4):
            r = SA + 4*u
            a(f"""v_lshlrev_b32 v{t+4}, 16, v{r}
            v_and_b32 v{t+5}, 0xffff0000, v{r}
            v_lshlrev_b32 v{t+6}, 16, v{r+2}
            v_and_b32 v{t+7}, 0xffff0000, v{r+2}""")
            for k in range(4):
                if u == 0: a(f"v_mov_b32 v{ACC+k}, v{t+4+k}")
                else: a(f"v_add_f32 v{ACC+k}, v{ACC+k}, v{t+4+k}")
        for sh in (8, 4, 2, 1):
            a("s_nop 1")
            for k in range(4):
                a(f"v_add_f32_dpp v{ACC+k}, v{ACC+k}, v{ACC+k} row_ror:{sh} row_mask:0xf bank_mask:0xf")
        a(f"""
        v_cvt_pk_bf16_f32 v{t+4}, v{ACC}, v{ACC+1}
        v_cvt_pk_bf16_f32 v{t+5}, v{ACC+2}, v{ACC+3}
        s_and_b32 s65, s2, 15
        s_lshr_b32 s66, s65, 2
        s_lshr_b32 s67, s66, 1
        s_lshl_b32 s67, s67, 11
        s_lshr_b32 s68, s2, 6
        s_lshl_b32 s68, s68, 10
        s_add_u32 s67, s67, s68
        s_bfe_u32 s68, s2, 0x20004
        s_lshl_b32 s68, s68, 8
        s_add_u32 s67, s67, s68
        s_and_b32 s68, s66, 1
        s_lshl_b32 s68, s68, 3
        s_add_u32 s67, s67, s68
        s_and_b32 s68, s65, 3
        s_lshl_b32 s68, s68, 6
        s_add_u32 s67, s67, s68
        v_lshlrev_b32 v{t+1}, 4, v{V_G}
        """)
        self.srd(56, 38, 4096)
        a(f"""
        v_cmp_eq_u32 vcc, 0, v{V_J16}
        s_and_saveexec_b64 s[70:71], vcc
        buffer_store_dwordx2 v[{t+4}:{t+5}], v{t+1}, s[56:59], s67 offen
        s_mov_b64 exec, s[70:71]
        s_cmp_lg_u32 s2, 0
        s_cbranch_scc1 .Lt2end
        v_mov_b32 v{t+1}, 0
        v_mov_b32 v{t+2}, s{S_TAG}
        s_mov_b64 exec, 1
        buffer_store_dword v{t+2}, v{t+1}, {WS}, 0 offen
        s_mov_b64 exec, -1
        """)
        a.label(".Lt2end")
        self.stamp_w2(12)
        self.dump_stamps()
        a("s_branch .Lend")

    def h3_flag(self):
        a = self.a
        a(f"""s_lshl_b32 s64, s{S_AHALF}, 11
        s_lshl_b32 s65, s{S_AB}, 5
        s_add_u32 s64, s64, s65
        s_lshr_b32 s65, s{S_AS}, 3
        s_lshl_b32 s65, s65, 2
        s_add_u32 s64, s64, s65
        s_add_u32 s64, s64, {FL_H3}
        s_and_b32 s65, s{S_AS}, 7
        """)
        self.pub_flag("s64", cond="s_cmp_eq_u32 s65, 5", nrep=16)
    def tail_w3(self):
        a = self.a
        t = T0
        m = M0_
        a.label(".Lt3")
        a(f"""
        v_lshlrev_b32 v{t}, 5, v{V_J16}
        v_add_u32 v{t}, {LBUF}, v{t}
        ds_read_b128 v[{QB}:{QB+3}], v{t}
        ds_read_b128 v[{QB+4}:{QB+7}], v{t} offset:16
        s_waitcnt lgkmcnt(0)
        v_add_f32 v{QB}, v{QB}, v{QB+1}
        v_add_f32 v{QB+2}, v{QB+2}, v{QB+3}
        v_add_f32 v{QB+4}, v{QB+4}, v{QB+5}
        v_add_f32 v{QB+6}, v{QB+6}, v{QB+7}
        v_add_f32 v{QB}, v{QB}, v{QB+2}
        v_add_f32 v{QB+4}, v{QB+4}, v{QB+6}
        v_add_f32 v{t+6}, v{QB}, v{QB+4}
        v_mov_b32 v{t+4}, v{m}
        v_mov_b32 v{t+5}, s{S_TAG}
        v_mov_b32 v{t+7}, s{S_TAG}
        v_lshlrev_b32 v{t}, 11, v{V_J16}
        s_lshl_b32 s64, s{S_AHALF}, 15
        s_lshl_b32 s65, s{S_AB}, 10
        s_add_u32 s64, s64, s65
        s_lshl_b32 s65, s{S_AS}, 4
        s_add_u32 s64, s64, s65
        s_add_u32 s64, s64, {H3S}
        v_cmp_gt_u32 vcc, 16, v{V_LANE}
        s_and_saveexec_b64 s[70:71], vcc
        buffer_store_dwordx4 v[{t+4}:{t+7}], v{t}, {WS}, s64 offen sc1
        s_mov_b64 exec, s[70:71]
""")
        if not self.o.get("h3early", 0): self.h3_flag()
        self.stamp(9)
        self.dump_stamps()
        a("s_branch .Lend")

    def tail_w47(self):
        a = self.a
        t = T0
        a.label(".Lt47")
        a(f"s_sub_u32 s72, s{S_WAVE}, 4")
        VR = VREG
        a(f"""
        v_and_b32 v{t+2}, 1, v{V_J16}
        v_and_b32 v{t+3}, 2, v{V_J16}
        v_lshl_or_b32 v{t+2}, v{t+3}, 2, v{t+2}
        v_lshrrev_b32 v{t+3}, 1, v{V_J16}
        v_and_b32 v{t+3}, 6, v{t+3}
        v_or_b32 v{t+2}, v{t+2}, v{t+3}
        v_xor_b32 v{t+2}, v{t+2}, v{V_G}
        v_lshlrev_b32 v{t+2}, 4, v{t+2}
        v_lshl_add_u32 v{t+2}, v{V_J16}, 8, v{t+2}
        s_lshl_b32 s66, s72, 13
        v_add_u32 v{t+2}, s66, v{t+2}
        v_lshlrev_b32 v{t+8}, 11, v{V_G}
        v_lshl_add_u32 v{t+8}, v{V_J16}, 4, v{t+8}
        s_add_u32 s66, s66, {LV}
        v_add_u32 v{t+8}, s66, v{t+8}            ; V addr
        """)
        for s_ in range(4):
            a(f"v_xor_b32 v{t+4+s_}, {s_*64}, v{t+2}")
        self.wait_flag(F_LANDED, 10, sleep=1)
        for tau in range(2):
            for s_ in range(4):
                r = KREG + 16*tau + 4*s_
                a(f"ds_read_b128 v[{r}:{r+3}], v{t+4+s_} offset:{LK + tau*4096}")
        self.stamp(9)
        self.wait_flag(F_QB, 4)
        QF = SA + 32
        a(f"""v_and_b32 v{t+1}, 3, v{V_J16}
        v_lshlrev_b32 v{t+1}, 8, v{t+1}
        v_lshl_add_u32 v{t+1}, v{V_G}, 4, v{t+1}
        v_add_u32 v{t+1}, {QBL}, v{t+1}""")
        for s in range(4):
            a(f"ds_read_b128 v[{QF+4*s}:{QF+4*s+3}], v{t+1} offset:{64*s}")
        a("s_waitcnt lgkmcnt(0)")
        SB = SA + 48
        for s in range(4):
            for tau in range(2):
                c = "0" if s == 0 else f"v[{SB+4*tau}:{SB+4*tau+3}]"
                a(f"v_mfma_f32_16x16x32_bf16 v[{SB+4*tau}:{SB+4*tau+3}], v[{KREG+16*tau+4*s}:{KREG+16*tau+4*s+3}], v[{QF+4*s}:{QF+4*s+3}], {c}")
        m = M0_
        a(f"""s_nop 7
        s_nop 1
        v_max3_f32 v{m}, v{SB}, v{SB+1}, v{SB+2}
        v_max3_f32 v{m}, v{m}, v{SB+3}, v{SB+4}
        v_max3_f32 v{m}, v{m}, v{SB+5}, v{SB+6}
        v_max_f32 v{m}, v{m}, v{SB+7}""")
        self.xrow_reduce("v_max_f32", m, m+2)
        for r in range(8): a(f"v_sub_f32 v{SB+r}, v{SB+r}, v{m}")
        for r in range(8): a(f"v_exp_f32 v{SB+r}, v{SB+r}")
        a(f"""s_nop 0
        v_add_f32 v{m+1}, v{SB}, v{SB+1}
        v_add_f32 v{m+2}, v{SB+2}, v{SB+3}
        v_add_f32 v{m+3}, v{SB+4}, v{SB+5}
        v_add_f32 v{m+4}, v{SB+6}, v{SB+7}
        v_add_f32 v{m+1}, v{m+1}, v{m+2}
        v_add_f32 v{m+3}, v{m+3}, v{m+4}
        v_add_f32 v{m+1}, v{m+1}, v{m+3}
        v_cvt_pk_bf16_f32 v{m+4}, v{SB}, v{SB+1}
        v_cvt_pk_bf16_f32 v{m+5}, v{SB+2}, v{SB+3}
        v_cvt_pk_bf16_f32 v{m+6}, v{SB+4}, v{SB+5}
        v_cvt_pk_bf16_f32 v{m+7}, v{SB+6}, v{SB+7}
        s_lshl_b32 s65, s72, 8
        s_add_u32 s65, s65, {PBL}
        v_lshlrev_b32 v{t+1}, 6, v{V_J16}
        v_lshl_add_u32 v{t+1}, v{V_G}, 3, v{t+1}
        v_add_u32 v{t+1}, s65, v{t+1}
        v_cmp_gt_u32 vcc, 4, v{V_J16}
        s_and_saveexec_b64 s[70:71], vcc
        ds_write_b64 v{t+1}, v[{m+4}:{m+5}]
        ds_write_b64 v{t+1}, v[{m+6}:{m+7}] offset:32
        s_mov_b64 exec, s[70:71]
        """)
        self.xrow_reduce("v_add_f32", m+1, m+2)
        PX = QB
        a(f"""
        v_lshrrev_b32 v{t+1}, 3, v{V_J16}
        v_lshlrev_b32 v{t+1}, 6, v{t+1}
        v_lshl_add_u32 v{t+1}, v{V_G}, 4, v{t+1}
        v_add_u32 v{t+1}, s65, v{t+1}
        s_waitcnt lgkmcnt(0)
        ds_read_b128 v[{PX}:{PX+3}], v{t+1}
        ds_read_b128 v[{PX+4}:{PX+7}], v{t+1} offset:128
        s_waitcnt lgkmcnt(0)
        """)
        self.stamp(10)

        self.wait_flag(F_LANDED, 13 if self.o.get("wuvfirst", 0) else 12, sleep=1)
        for k in range(8):
            a(f"ds_read_b128 v[{VR+4*k}:{VR+4*k+3}], v{t+8} offset:{256*k}")
        sets = [QB+8, QB+12, QB+16, QB+20]
        OA = SA
        def perms(k, hp):
            A = sets[(2*k + hp) % 4]
            for kk in range(4):
                a(f"v_perm_b32 v{A+kk}, v{PX+4*hp+k//2}, v{PX+4*hp+k//2}, v{SEL[k%2][kk]}")
        perms(0, 0); perms(0, 1)
        for k in range(8):
            a(f"s_waitcnt lgkmcnt({7-k})")
            for hp in range(2):
                A = sets[(2*k + hp) % 4]
                c = "0" if k == 0 else f"v[{OA+4*hp}:{OA+4*hp+3}]"
                if k == 0 and hp == 0: a("s_nop 1")
                a(f"v_mfma_f32_16x16x32_bf16 v[{OA+4*hp}:{OA+4*hp+3}], v[{A}:{A+3}], v[{VR+4*k}:{VR+4*k+3}], {c}")
                if k + 1 < 8: perms(k + 1, hp)
                else: a("s_nop 1")
        a(f"""s_nop 7
        s_nop 1
        s_lshl_b32 s65, s72, 11
        s_add_u32 s65, s65, {OBL}
        v_lshlrev_b32 v{t+1}, 4, v{V_LANE}
        v_add_u32 v{t+1}, s65, v{t+1}
        ds_write_b128 v{t+1}, v[{OA}:{OA+3}]
        ds_write_b128 v{t+1}, v[{OA+4}:{OA+7}] offset:1024
        s_lshl_b32 s65, s72, 5
        s_add_u32 s65, s65, {OBS}
        v_lshlrev_b32 v{t+1}, 3, v{V_J16}
        v_add_u32 v{t+1}, s65, v{t+1}
        v_cmp_gt_u32 vcc, 4, v{V_LANE}
        s_and_saveexec_b64 s[70:71], vcc
        ds_write_b64 v{t+1}, v[{m}:{m+1}]
        s_mov_b64 exec, s[70:71]
        s_waitcnt lgkmcnt(0)
        v_mov_b32 v{t+1}, {FLAGS + 4*F_BARR}
        v_mov_b32 v{t+2}, 1
        s_mov_b64 exec, 1
        ds_add_rtn_u32 v{t+3}, v{t+1}, v{t+2}
        s_waitcnt lgkmcnt(0)
        s_mov_b64 exec, -1
        v_readfirstlane_b32 s65, v{t+3}
        s_nop 1
        s_cmp_lg_u32 s65, 3
        s_cbranch_scc1 .Lt47end
        """)
        a(f"""
        v_lshlrev_b32 v{t+1}, 4, v{V_LANE}
        v_add_u32 v{t+1}, {OBL}, v{t+1}
        v_lshrrev_b32 v{t+2}, 1, v{V_G}
        v_lshlrev_b32 v{t+2}, 3, v{t+2}
        v_add_u32 v{t+2}, {OBS}, v{t+2}
        """)
        OZ = SA
        ST = SA + 32
        for z in range(4):
            for hp in range(2):
                a(f"ds_read_b128 v[{OZ+8*z+4*hp}:{OZ+8*z+4*hp+3}], v{t+1} offset:{z*2048+hp*1024}")
        a("s_waitcnt lgkmcnt(4)")
        for z in range(4):
            for hp in range(2):
                a(f"ds_read_b64 v[{ST+4*z+2*hp}:{ST+4*z+2*hp+1}], v{t+2} offset:{z*32+hp*16}")
        a("s_waitcnt lgkmcnt(0)")
        F = SA + 48
        for hp in range(2):
            ms = [ST+4*z+2*hp for z in range(4)]
            a(f"v_max3_f32 v{F}, v{ms[0]}, v{ms[1]}, v{ms[2]}")
            a(f"v_max_f32 v{F}, v{F}, v{ms[3]}")
            for z in range(4): a(f"v_sub_f32 v{F+1+z}, v{ms[z]}, v{F}")
            for z in range(4): a(f"v_exp_f32 v{F+1+z}, v{F+1+z}")
            a("s_nop 0")
            a(f"v_mul_f32 v{F+5}, v{F+1}, v{ms[0]+1}")
            for z in range(1, 4): a(f"v_fmac_f32 v{F+5}, v{F+1+z}, v{ms[z]+1}")
            for r in range(4):
                a(f"v_mul_f32 v{F+6+r}, v{F+1}, v{OZ+4*hp+r}")
                for z in range(1, 4):
                    a(f"v_fmac_f32 v{F+6+r}, v{F+1+z}, v{OZ+8*z+4*hp+r}")
            q = QB + 8*hp
            a(f"""v_cvt_pk_bf16_f32 v{q}, v{F+6}, v{F+7}
            v_cvt_pk_bf16_f32 v{q+2}, v{F+8}, v{F+9}
            v_mov_b32 v{q+1}, s{S_TAG}
            v_mov_b32 v{q+3}, s{S_TAG}
            v_mov_b32 v{q+4}, v{F}
            v_mov_b32 v{q+5}, s{S_TAG}
            v_mov_b32 v{q+6}, v{F+5}
            v_mov_b32 v{q+7}, s{S_TAG}""")
        a(f"""
        s_lshr_b32 s64, s2, 7
        s_lshl_b32 s64, s64, 5
        s_and_b32 s65, s2, 7
        s_lshl_b32 s65, s65, 2
        s_add_u32 s64, s64, s65
        s_lshl_b32 s64, s64, 4
        s_bfe_u32 s65, s2, 0x40003
        s_add_u32 s64, s64, s65
        s_lshl_b32 s66, s64, 9
        s_add_u32 s66, s66, {H3B}
        s_add_u32 s67, s66, 16384
        s_lshl_b32 s68, s64, 4
        s_add_u32 s68, s68, {H3BS}
        v_lshrrev_b32 v{t+1}, 1, v{V_G}
        v_lshlrev_b32 v{t+2}, 13, v{t+1}
        v_lshl_add_u32 v{t+2}, v{V_J16}, 5, v{t+2}
        v_and_b32 v{t+3}, 1, v{V_G}
        v_lshl_add_u32 v{t+2}, v{t+3}, 4, v{t+2}
        buffer_store_dwordx4 v[{QB}:{QB+3}], v{t+2}, {WS}, s66 offen sc1
        buffer_store_dwordx4 v[{QB+8}:{QB+11}], v{t+2}, {WS}, s67 offen sc1
        v_lshlrev_b32 v{t+1}, 8, v{t+1}
        v_and_b32 v{t+3}, 31, v{V_LANE}
        v_cmp_eq_u32 vcc, 0, v{t+3}
        s_and_saveexec_b64 s[70:71], vcc
        buffer_store_dwordx4 v[{QB+4}:{QB+7}], v{t+1}, {WS}, s68 offen sc1
        buffer_store_dwordx4 v[{QB+12}:{QB+15}], v{t+1}, {WS}, s68 offen offset:512 sc1
        s_mov_b64 exec, s[70:71]
        s_and_b32 s64, s2, 7
        s_lshl_b32 s64, s64, 9
        s_lshr_b32 s65, s2, 7
        s_lshl_b32 s65, s65, 5
        s_add_u32 s64, s64, s65
        s_bfe_u32 s65, s2, 0x30004
        s_lshl_b32 s65, s65, 2
        s_add_u32 s64, s64, s65
        s_add_u32 s64, s64, {FL_H3B}
        """)
        self.pub_flag("s64", cond="s_bitcmp1_b32 s2, 3", nrep=4)
        a.label(".Lt47end")
        self.stamp(11)
        self.dump_stamps()
        a("s_branch .Lend")

    def build(self):
        a = self.a
        name = KNAME + "_kernel"
        a.raw(HEADER.rstrip())
        a.raw(f"; @launch grid=(256,1,1) block=(512,1,1) lds={LDS_TOTAL}")
        a.raw('.amdgcn_target "amdgcn-amd-amdhsa--gfx950"')
        kernel_begin(a, name)
        self.prologue()
        self.w0_front()
        self.w1_front()
        self.w2_front()
        self.w3_front()
        self.w47_front()
        self.attn()
        self.tail_w0()
        self.tail_w1()
        self.tail_w2()
        self.tail_w3()
        self.tail_w47()
        a.label(".Lend")
        a("s_endpgm")
        return a.text() + kernel_desc(name, 256, 102, 256)

if __name__ == "__main__":
    import argparse
    ap = argparse.ArgumentParser()
    ap.add_argument("-o", default="k2.s")
    ap.add_argument("--diag", action="store_true")
    ap.add_argument("--depth", type=int, default=24)
    ap.add_argument("--ldepth", type=int, default=4)
    ap.add_argument("--opt", action="append", default=[])
    args = ap.parse_args()
    opts = {k: int(v) for k, v in (x.split("=") for x in args.opt)}
    open(args.o, "w").write(G(diag=args.diag, depth=args.depth, ldepth=args.ldepth, opts=opts).build())
```

```python
import sys, struct
from asmlib import *

H1A  = 0x040000
H1B  = 0x080000
H2   = 0x0C0000
H4   = 0x100000
H3B  = 0x140000
H3BS = 0x1C0000
H3S  = 0x1C8000
H5   = 0x200000
H3   = 0x400000
FL    = 0x010000
FL_H1A = FL
FL_H4  = FL + 32*128
FL_H2  = FL + 64*128
FL_H3  = FL + 96*128
FL_H3B = FL + 128*128
FL_H5  = FL + 160*128
FL_H1B = FL + 192*128
LOC = 0x800000
STAMP = 0x1000000
CKV   = 0x00000
LK, LV = 0x0000, 0x8000
LW0, LW1, LW2 = 0x10000, 0x14000, 0x18000
QABS  = 0x20000
PBUF  = 0x24000
MAXB  = 0x25000
LBUF  = 0x25200
FLAGS = 0x25400
VEC0  = 0x25500
VEC1  = 0x25600
OBS   = 0x25700
QBL   = 0x25800
PBL   = 0x25C00
OBL   = 0x26000
LDS_TOTAL = 0x28000
F_LANDED, F_QABS, F_CLR, F_QB, F_BARR, F_WUV, F_WO, F_WOB, F_G3, F_QPUB, F_ISSUED, F_G4, F_G2, F_G1, F_G2I, F_REL0, F_REL1, F_REL2, F_G1D, F_WQI = range(20)

DOC = '''; Design (hand-written via my own generator script): one persistent launch, 256 workgroups (1 per CU, 160 KiB LDS), 8 waves each.
;  {data,tag,data,tag}; tag = epoch word found in d_ws at entry + constant (only used to tell this launch's hand-offs from older ones;
'''
TAGC = 0x9E3779B9
CSF = (128 ** -0.5) * 1.4426950408889634
CS = struct.unpack("<I", struct.pack("<f", CSF))[0]

def Lsw(i):
    return (i & 1) | ((i & 2) << 2) | ((i & 4) >> 1) | ((i & 8) >> 1)

S_WAVE = 3
S_TAG, S_H, S_J, S_SPIN = 44, 45, 46, 47
WS = "s[48:51]"
S_V = 62
S_LAND = 63
S_AB, S_AS, S_AHALF = 74, 75, 76
S_KOFF = 79
V_LANE, V_J16, V_G = 1, 2, 3
SEL = [[4, 5, 6, 7], [8, 9, 10, 11]]
MSK = [[12, 13], [14, 15]]
AD_SA, AD_QB, AD_TRL, AD_TRH = 16, 20, 24, 28
T0 = 32
KREG = 48
SA = 80
PA = 144
VREG = 176
QB = 208
ACC = 240
M0_ = 244
V_ST = 255
WAVE2TILE = [7, 4, 0, 1, 2, 3, 5, 6]

class G:
    def __init__(self, diag=False, depth=24, spin_lim=2000000, ldepth=4, opts=None):
        self.a = Asm()
        self.diag = diag
        self.depth = depth
        self.ldepth = ldepth
        self.spin_lim = spin_lim
        self.o = dict(kdelay=128, wqdelay=16, clrdelay=0)
        if opts: self.o.update(opts)
    def stamp(self, k):
        if self.diag:
            assert k < 16
            self.a(f"""s_memrealtime s[100:101]
            s_waitcnt lgkmcnt(0)
            v_writelane_b32 v{V_ST}, s100, {k}""")
    def stamp_w2(self, k):
        if not self.o.get('ldstamps'): self.stamp(k)
    def dump_stamps(self, n=16):
        a = self.a
        if not self.diag: return
        a(f"""s_lshl_b32 s64, s2, 3
        s_add_u32 s64, s64, s{S_WAVE}
        s_lshl_b32 s64, s64, 6
        s_add_u32 s64, s64, {STAMP}
        v_lshlrev_b32 v33, 2, v{V_LANE}
        s_mov_b64 exec, 0xffff
        buffer_store_dword v{V_ST}, v33, {WS}, s64 offen
        s_mov_b64 exec, -1""")
    def srd(self, s, base, nbytes):
        srd(self.a, s, base, base + 1, nbytes)
    def spin_fail(self, retry):
        a = self.a
        a(f"""s_add_u32 s{S_SPIN}, s{S_SPIN}, 1
        s_cmp_lt_u32 s{S_SPIN}, {self.spin_lim}
        s_cbranch_scc1 {retry}
        s_branch .Lend""")
    def wait_flag(self, idx, target, vt=T0+14, va=T0+15, dst="s65", sleep=0):
        a = self.a
        lp = a.newlabel("wf"); ok = a.newlabel("wfok")
        a(f"v_mov_b32 v{va}, {FLAGS + 4*idx}")
        a.label(lp)
        a(f"""ds_read_b32 v{vt}, v{va}
        s_waitcnt lgkmcnt(0)
        v_readfirstlane_b32 {dst}, v{vt}
        s_nop 1
        s_cmp_ge_u32 {dst}, {target}
        s_cbranch_scc1 {ok}""")
        if sleep: a(f"s_sleep {sleep}")
        self.spin_fail(lp)
        a.label(ok)
    def wait_landed(self, target):
        a = self.a
        sk = a.newlabel("wl")
        a(f"""s_cmp_ge_u32 s{S_LAND}, {target}
        s_cbranch_scc1 {sk}""")
        self.wait_flag(F_LANDED, target, dst=f"s{S_LAND}")
        a.label(sk)
    def set_flag(self, idx, val=1, vt=T0+14, va=T0+15, add=False):
        a = self.a
        a(f"v_mov_b32 v{va}, {FLAGS + 4*idx}")
        a(f"v_mov_b32 v{vt}, {val}")
        if add:
            a("s_mov_b64 exec, 1")
            a(f"ds_add_u32 v{va}, v{vt}")
            a("s_mov_b64 exec, -1")
        else:
            a(f"ds_write_b32 v{va}, v{vt}")
    def load_tag(self):
        self.a(f"s_load_dword s{S_TAG}, s[42:43], 0")
    def get_tag(self):
        self.a(f"""s_waitcnt lgkmcnt(0)
        s_add_u32 s{S_TAG}, s{S_TAG}, {TAGC}""")
    def poll_light(self, voff, soff, nlanes, sleep=2, vd=T0+12):
        a = self.a
        lp = a.newlabel("pl"); ok = a.newlabel("plok")
        a(f"""v_cmp_gt_u32 vcc, {nlanes}, v{V_LANE}
        s_and_saveexec_b64 s[70:71], vcc""")
        a.label(lp)
        a(f"""buffer_load_dwordx2 v[{vd}:{vd+1}], v{voff}, {WS}, {soff} offen sc1
        s_waitcnt vmcnt(0)
        v_cmp_ne_u32 vcc, s{S_TAG}, v{vd+1}
        s_nop 1
        s_cbranch_vccz {ok}""")
        if sleep: a(f"s_sleep {sleep}")
        self.spin_fail(lp)
        a.label(ok)
        a("s_mov_b64 exec, s[70:71]")
    def sgate(self, s_off, n, lim=None, sleep=2):
        a = self.a
        lim = lim or self.o.get("sgate_lim", 4000)
        assert n in (8, 16)
        B = 80
        a(f"""s_add_u32 s60, s42, {s_off}
        s_addc_u32 s61, s43, 0
        s_mov_b32 s65, 0""")
        lp = a.newlabel("sg"); ok = a.newlabel("sgok"); rt = a.newlabel("sgrt")
        a.label(lp)
        a(f"s_load_dwordx{n} s[{B}:{B+n-1}], s[60:61], 0 glc")
        a("s_waitcnt lgkmcnt(0)")
        for i in range(n):
            a(f"s_cmp_lg_u32 s{B+i}, s{S_TAG}")
            a(f"s_cbranch_scc1 {rt}")
        a(f"s_branch {ok}")
        a.label(rt)
        a(f"""s_sleep {sleep}
        s_add_u32 s65, s65, 1
        s_cmp_lt_u32 s65, {lim}
        s_cbranch_scc1 {lp}""")
        a.label(ok)
    def pub_flag(self, s_off, cond=None, nrep=1, vt=T0+14, va=T0+15):
        a = self.a
        sk = a.newlabel("pf")
        if cond:
            a(cond)
            a(f"s_cbranch_scc0 {sk}")
        a(f"""v_lshlrev_b32 v{va}, 7, v{V_LANE}
        v_mov_b32 v{vt}, s{S_TAG}
        s_mov_b64 exec, {(1 << nrep) - 1}
        buffer_store_dword v{vt}, v{va}, {WS}, {s_off} offen sc1
        s_mov_b64 exec, -1""")
        a.label(sk)
    def tagcheck(self, words, acc, retry, sleep=2, onfail=None):
        a = self.a
        a(f"v_xor_b32 v{acc}, s{S_TAG}, v{words[0]}")
        for w in words[1:]:
            a(f"v_bitop3_b32 v{acc}, v{acc}, v{w}, s{S_TAG} bitop3:0xf6")
        ok = a.newlabel("tok")
        a(f"""v_cmp_ne_u32 vcc, 0, v{acc}
        s_nop 1
        s_cbranch_vccz {ok}""")
        if onfail: onfail()
        else:
            if sleep: a(f"s_sleep {sleep}")
            self.spin_fail(retry)
        a.label(ok)
    def xrow_reduce(self, op, x, tmp, steps=(16, 32)):
        a = self.a
        for st in steps:
            a(f"""v_mov_b32 v{tmp}, v{x}
            s_nop 1
            v_permlane{st}_swap_b32 v{x}, v{tmp}
            s_nop 1
            {op} v{x}, v{x}, v{tmp}""")
    def diag_mfma(self, X, W, acc, A0, A1, n=16, pre=None, pre_first=False):
        a = self.a
        def perms(t):
            A = A0 if t % 2 == 0 else A1
            for k in range(4):
                a(f"v_perm_b32 v{A+k}, v{X + t//2}, v{X + t//2}, v{SEL[t%2][k]}")
        perms(0)
        for t in range(n):
            A = A0 if t % 2 == 0 else A1
            if pre and pre_first: pre(t)
            if t + 1 < n: perms(t + 1)
            else: a("s_nop 1")
            if pre and not pre_first: pre(t)
            c = "0" if t == 0 else f"v[{acc}:{acc+3}]"
            a(f"v_mfma_f32_16x16x32_bf16 v[{acc}:{acc+3}], v[{A}:{A+3}], v[{W+4*t}:{W+4*t+3}], {c}")
    def publish_granule(self, acc, q, voff, soff, local=False):
        a = self.a
        a("s_nop 7")
        a("s_nop 1")
        a(f"""v_cvt_pk_bf16_f32 v{q}, v{acc}, v{acc+1}
        v_cvt_pk_bf16_f32 v{q+2}, v{acc+2}, v{acc+3}
        v_mov_b32 v{q+1}, s{S_TAG}
        v_mov_b32 v{q+3}, s{S_TAG}""")
        if local:
            a(f"""s_add_u32 s69, {soff}, {LOC}
            buffer_store_dwordx4 v[{q}:{q+3}], v{voff}, {WS}, s69 offen""")
        a(f"buffer_store_dwordx4 v[{q}:{q+3}], v{voff}, {WS}, {soff} offen sc1")
    def poll_switch(self, sregs, retry, cnt="s69", after=3, sleep=0):
        a = self.a
        sk = a.newlabel("psw")
        a(f"""s_add_u32 {cnt}, {cnt}, 1
        s_cmp_lg_u32 {cnt}, {after}
        s_cbranch_scc1 {sk}""")
        for r in sregs: a(f"s_sub_u32 {r}, {r}, {LOC}")
        a.label(sk)
        if sleep: a(f"s_sleep {sleep}")
        self.spin_fail(retry)
    def lsb_pat(self, dst, vidx, tmp):
        a = self.a
        a(f"""v_lshlrev_b32 v{tmp}, 3, v{vidx}
        v_lshrrev_b32 v{tmp}, v{tmp}, s{S_TAG}""") if False else None
        a(f"""v_lshlrev_b32 v{tmp}, 3, v{vidx}
        v_mov_b32 v{tmp+1}, s{S_TAG}
        v_lshrrev_b32 v{tmp}, v{tmp}, v{tmp+1}""")
        for i in range(4):
            a(f"""v_bfe_u32 v{dst+i}, v{tmp}, {2*i}, 1
            v_bfe_u32 v{tmp+1}, v{tmp}, {2*i+1}, 1
            v_lshl_or_b32 v{dst+i}, v{tmp+1}, 16, v{dst+i}""")
    def gran_voff(self, v, tmp):
        a = self.a
        a(f"""v_lshrrev_b32 v{v}, 1, v{V_G}
        v_lshlrev_b32 v{v}, 9, v{v}
        v_lshl_add_u32 v{v}, v{V_J16}, 5, v{v}
        v_and_b32 v{tmp}, 1, v{V_G}
        v_lshl_add_u32 v{v}, v{tmp}, 4, v{v}""")
    def hqB(self, dst, tmp):
        self.a(f"""s_and_b32 {dst}, s2, 7
        s_lshl_b32 {dst}, {dst}, 2
        s_bfe_u32 {tmp}, s2, 0x20003
        s_add_u32 {dst}, {dst}, {tmp}""")

    def prologue(self):
        a = self.a
        t = T0
        a(f"""
        s_cmp_ge_u32 s2, 256
        s_cbranch_scc1 .Lend
        s_load_dwordx16 s[16:31], s[0:1], 0
        s_load_dwordx8 s[32:39], s[0:1], 64
        s_load_dwordx4 s[40:43], s[0:1], 96""")
        if self.diag:
            a(f"s_memrealtime s[98:99]")
            a(f"v_mov_b32 v{V_ST}, 0")
        a(f"""
        v_and_b32 v{V_LANE}, 63, v0
        v_lshrrev_b32 v{t}, 6, v0
        v_and_b32 v{V_J16}, 15, v{V_LANE}
        v_readfirstlane_b32 s{S_WAVE}, v{t}
        v_lshrrev_b32 v{V_G}, 4, v{V_LANE}
        v_lshlrev_b32 v{t+1}, 2, v{V_LANE}
        v_add_u32 v{t+1}, {FLAGS}, v{t+1}
        v_mov_b32 v{t+2}, 0
        ds_write_b32 v{t+1}, v{t+2}
        s_and_b32 s{S_H}, s2, 31
        s_lshr_b32 s{S_J}, s2, 5
        s_mov_b32 s{S_SPIN}, 0
        s_mov_b32 s{S_LAND}, 0
        s_lshr_b32 s{S_AB}, s2, 7
        s_and_b32 s{S_AS}, s2, 15
        s_bfe_u32 s64, s2, 0x20005
        s_lshl_b32 s64, s64, 4
        s_or_b32 s{S_AS}, s{S_AS}, s64
        s_bfe_u32 s{S_AHALF}, s2, 0x10004
        """)
        packed = 0
        for w, tl in enumerate(WAVE2TILE): packed |= tl << (4*w)
        a(f"""s_lshl_b32 s64, s{S_WAVE}, 2
        s_lshr_b32 s{S_V}, {packed}, s64
        s_and_b32 s{S_V}, s{S_V}, 15""")
        a(f"""
        v_and_b32 v{t}, 1, v{V_J16}
        v_bfe_u32 v{t+1}, v{V_J16}, 1, 2
        v_cmp_eq_u32 vcc, 1, v{t}
        v_mov_b32 v{t+2}, 0x01000c0c
        v_mov_b32 v{t+3}, 0x03020c0c
        v_mov_b32 v{t+4}, 0x0c0c0100
        v_mov_b32 v{t+5}, 0x0c0c0302
        v_mov_b32 v{t+6}, 0x0c0c0c0c
        v_cndmask_b32 v{t+2}, v{t+4}, v{t+2}, vcc
        v_cndmask_b32 v{t+3}, v{t+5}, v{t+3}, vcc
        """)
        for k in range(4):
            a(f"""v_cmp_eq_u32 vcc, {k}, v{t+1}
            s_nop 1
            v_cndmask_b32 v{SEL[0][k]}, v{t+6}, v{t+2}, vcc
            v_cndmask_b32 v{SEL[1][k]}, v{t+6}, v{t+3}, vcc""")
        a(f"""
        v_cmp_eq_u32 vcc, 1, v{t}
        v_mov_b32 v{t+2}, 0xffff0000
        v_mov_b32 v{t+4}, 0x0000ffff
        v_cndmask_b32 v{t+2}, v{t+4}, v{t+2}, vcc
        v_lshrrev_b32 v{t+3}, 1, v{V_J16}
        """)
        for sg in range(2):
            for rg in range(2):
                a(f"""v_cmp_eq_u32 vcc, {sg*2+rg}, v{t+3}
                s_nop 1
                v_cndmask_b32 v{MSK[sg][rg]}, 0, v{t+2}, vcc""")
        a(f"""
        s_waitcnt lgkmcnt(0)
        s_barrier
        """)
        if self.diag: a(f"v_writelane_b32 v{V_ST}, s98, 0")
        self.stamp(15)
        self.srd(48, 42, 268435456)
        a(f"""
        s_cmp_eq_u32 s{S_WAVE}, 0
        s_cbranch_scc1 .Lw0
        s_cmp_eq_u32 s{S_WAVE}, 1
        s_cbranch_scc1 .Lw1
        s_cmp_eq_u32 s{S_WAVE}, 2
        s_cbranch_scc1 .Lw2
        s_cmp_eq_u32 s{S_WAVE}, 3
        s_cbranch_scc1 .Lw3
        s_branch .Lw47
        """)
    def attn_addr(self):
        a = self.a
        t = T0
        a(f"""
        v_and_b32 v{t}, 1, v{V_J16}
        v_and_b32 v{t+1}, 2, v{V_J16}
        v_lshl_or_b32 v{t}, v{t+1}, 2, v{t}
        v_lshrrev_b32 v{t+1}, 1, v{V_J16}
        v_and_b32 v{t+1}, 6, v{t+1}
        v_or_b32 v{t}, v{t}, v{t+1}              ; L(j16)
        v_xor_b32 v{t}, v{t}, v{V_G}             ; u
        v_lshlrev_b32 v{t}, 4, v{t}
        v_lshl_add_u32 v{t}, v{V_J16}, 10, v{t}
        s_lshl_b32 s64, s{S_V}, 14
        """)
        for q in range(4):
            a(f"v_xor_b32 v{AD_QB+q}, {q*64}, v{t}")
        for q in range(4):
            a(f"v_add_u32 v{AD_SA+q}, s64, v{AD_QB+q}")
            a(f"v_add_u32 v{AD_QB+q}, {QABS}, v{AD_QB+q}")
        a(f"""
        v_lshrrev_b32 v{t}, 2, v{V_LANE}          ; rho
        v_and_b32 v{t+1}, 1, v{t}
        v_and_b32 v{t+2}, 2, v{t}
        v_lshl_or_b32 v{t+1}, v{t+2}, 2, v{t+1}
        v_lshrrev_b32 v{t+2}, 1, v{t}
        v_and_b32 v{t+2}, 6, v{t+2}
        v_or_b32 v{t+1}, v{t+1}, v{t+2}          ; L(rho)
        v_and_b32 v{t+2}, 3, v{V_LANE}           ; cgrp
        v_lshlrev_b32 v{t+3}, 1, v{t+2}
        s_and_b32 s65, s{S_V}, 1
        s_lshl_b32 s65, s65, 3
        v_or_b32 v{t+3}, s65, v{t+3}
        v_xor_b32 v{t+3}, v{t+3}, v{t+1}
        v_lshlrev_b32 v{t+3}, 4, v{t+3}
        v_lshl_add_u32 v{t+3}, v{t}, 10, v{t+3}
        s_lshr_b32 s65, s{S_V}, 1
        s_lshl_b32 s65, s65, 8
        v_add_u32 v{t+3}, s65, v{t+3}
        v_and_b32 v{t+2}, 1, v{t+2}
        v_lshl_or_b32 v{t+3}, v{t+2}, 3, v{t+3}
        """)
        for tt in range(4):
            x = ((tt >> 1) << 4) | ((tt & 1) << 3)
            a(f"v_xor_b32 v{AD_TRL+tt}, {x}, v{t+3}")
            a(f"v_add_u32 v{AD_TRH+tt}, 0x10000, v{AD_TRL+tt}")
    def pa_reg(self, sg, t):
        return PA + 16*sg + 4*t
    def tr_reads(self, sg):
        a = self.a
        for t in range(4):
            for tau in range(2):
                row0 = 32*sg + 16*tau
                base = AD_TRL + t if row0 < 64 else AD_TRH + t
                off = (row0 % 64) * 1024
                r = self.pa_reg(sg, t) + 2*tau
                a(f"ds_read_b64_tr_b16 v[{r}:{r+1}], v{base} offset:{off}")
    def sa_reads(self):
        a = self.a
        for s in range(16):
            if s == 12: a("s_waitcnt lgkmcnt(4)")
            a(f"ds_read_b128 v[{SA+4*s}:{SA+4*s+3}], v{AD_SA+(s&3)} offset:{(s>>2)*256}")

    def p1_issue(self, xbase, wbase, s_col):
        a = self.a
        t = T0
        self.srd(56, xbase, 2048)
        self.srd(52, wbase, 4194304)
        a(f"""
        v_lshrrev_b32 v{t+8}, 3, v{V_J16}
        v_lshlrev_b32 v{t+8}, 10, v{t+8}
        v_lshl_add_u32 v{t+8}, v{V_G}, 5, v{t+8}
        s_lshl_b32 s64, s{S_J}, 7
        v_lshlrev_b32 v{t+9}, 17, v{V_G}
        v_lshl_add_u32 v{t+9}, v{V_J16}, 4, v{t+9}
        s_lshl_b32 s66, s{S_J}, 19
        s_add_u32 s66, s66, {s_col}
        s_mov_b32 s67, s66
        buffer_load_dwordx4 v[{M0_}:{M0_+3}], v{t+8}, s[56:59], s64 offen
        buffer_load_dwordx4 v[{M0_+4}:{M0_+7}], v{t+8}, s[56:59], s64 offen offset:16
        """)
        for k in range(16):
            a(f"buffer_load_dwordx4 v[{SA+4*k}:{SA+4*k+3}], v{t+9}, s[52:55], s67 offen nt")
            if k < 15: a("s_add_u32 s67, s67, 8192")
    def p1_compute(self, extra, hbase, s_head):
        a = self.a
        t = T0
        a(f"s_waitcnt vmcnt({16 + extra})")
        def pre(k):
            a(f"s_waitcnt vmcnt({15 - k + extra})")
        self.diag_mfma(M0_, SA, ACC, t, t+4, pre=pre)
        self.get_tag()
        self.gran_voff(t+8, t+9)
        a(f"""
        s_lshl_b32 s64, {s_head}, 3
        s_add_u32 s64, s64, s{S_J}
        s_lshl_b32 s64, s64, 10
        s_add_u32 s64, s64, {hbase}
        """)
        self.publish_granule(ACC, t+12, t+8, "s64", local=(hbase == H1A))

    def w0_front(self):
        a = self.a
        t = T0
        a.label(".Lw0")
        if self.o.get("prio", 1): a("s_setprio 3")
        self.load_tag()
        a(f"s_lshl_b32 s68, s{S_H}, 8")
        self.p1_issue(16, 20, "s68")
        if self.o.get("wqi", 0): self.set_flag(F_WQI)
        self.srd(56, 22, 4194304)
        a(f"""
        v_lshlrev_b32 v{t+7}, 15, v{V_J16}
        v_lshl_add_u32 v{t+7}, v{V_G}, 4, v{t+7}
        s_mov_b32 s67, s66
        """)
        for tt in range(4):
            for sp in range(4):
                r = PA + 16*tt + 4*sp
                a(f"buffer_load_dwordx4 v[{r}:{r+3}], v{t+7}, s[56:59], s67 offen offset:{64*sp} nt")
            if tt < 3: a("s_add_u32 s67, s67, 8192")
        self.attn_addr()
        self.p1_compute(16, H1A, f"s{S_H}")
        self.stamp(2)
        a(f"""
        v_lshrrev_b32 v{t}, 1, v{V_J16}
        v_lshlrev_b32 v{t}, 10, v{t}
        v_and_b32 v{t+1}, 1, v{V_J16}
        v_lshl_add_u32 v{t}, v{t+1}, 9, v{t}
        v_lshl_add_u32 v{t}, v{V_G}, 5, v{t}
        s_lshl_b32 s64, s{S_H}, 13
        s_add_u32 s64, s64, {H1A}
        """)
        a(f"""s_add_u32 s64, s64, {LOC}
        s_mov_b32 s69, 0""")
        if self.o.get("h1wait", 0): a(f"s_sleep {self.o['h1wait']}")
        lp = a.newlabel("h1")
        a.label(lp)
        for sp in range(4):
            for hf in range(2):
                r = QB + 8*sp + 4*hf
                a(f"buffer_load_dwordx4 v[{r}:{r+3}], v{t}, {WS}, s64 offen offset:{128*sp + 16*hf} sc1")
        a("s_waitcnt vmcnt(0)")
        words = []
        for q in range(8): words += [QB + 4*q + 1, QB + 4*q + 3]
        self.tagcheck(words, t+1, lp, onfail=lambda: self.poll_switch(["s64"], lp, after=4))
        self.set_flag(F_G1D)
        self.stamp(3)
        for sp in range(4):
            r = QB + 8*sp
            a(f"""v_mov_b32 v{r+1}, v{r+2}
            v_mov_b32 v{r+2}, v{r+4}
            v_mov_b32 v{r+3}, v{r+6}""")
        a("s_nop 1")
        D0 = KREG
        for sp in range(4):
            for tt in range(4):
                c = "0" if sp == 0 else f"v[{D0+4*tt}:{D0+4*tt+3}]"
                a(f"v_mfma_f32_16x16x32_bf16 v[{D0+4*tt}:{D0+4*tt+3}], v[{QB+8*sp}:{QB+8*sp+3}], v[{PA+16*tt+4*sp}:{PA+16*tt+4*sp+3}], {c}")
        a("s_nop 7"); a("s_nop 1")
        for tt in range(4):
            d = D0 + 4*tt
            a(f"v_add_f32 v{d}, v{d}, v{d+2}")
            a(f"v_add_f32 v{d+1}, v{d+1}, v{d+3}")
        a("s_nop 1")
        for tt in range(4):
            d = D0 + 4*tt
            a(f"v_permlane32_swap_b32 v{d}, v{d+1}")
        a("s_nop 1")
        for tt in range(4):
            d = D0 + 4*tt
            a(f"v_add_f32 v{d}, v{d}, v{d+1}")
        for tt in range(4):
            d = D0 + 4*tt
            a(f"v_mov_b32 v{d+1}, v{d}")
        a("s_nop 1")
        for tt in range(4):
            d = D0 + 4*tt
            a(f"v_permlane16_swap_b32 v{d}, v{d+1}")
        a("s_nop 1")
        for tt in range(4):
            d = D0 + 4*tt
            a(f"v_add_f32 v{d}, v{d}, v{d+1}")
            a(f"v_mul_f32 v{d}, {CS}, v{d}")
        a(f"""
        v_cvt_pk_bf16_f32 v{t+4}, v{D0}, v{D0+4}
        v_cvt_pk_bf16_f32 v{t+6}, v{D0+8}, v{D0+12}
        v_mov_b32 v{t+5}, s{S_TAG}
        v_mov_b32 v{t+7}, s{S_TAG}
        v_lshrrev_b32 v{t}, 1, v{V_G}
        v_lshlrev_b32 v{t}, 16, v{t}
        v_lshl_add_u32 v{t}, v{V_J16}, 4, v{t}
        s_lshl_b32 s64, s{S_H}, 3
        s_add_u32 s64, s64, s{S_J}
        s_lshl_b32 s64, s64, 8
        s_add_u32 s64, s64, {H2}
        """)
        a(f"""
        v_and_b32 v{t+1}, 1, v{V_G}
        v_cmp_eq_u32 vcc, 0, v{t+1}
        s_and_saveexec_b64 s[70:71], vcc
        buffer_store_dwordx4 v[{t+4}:{t+7}], v{t}, {WS}, s64 offen sc1
        s_mov_b64 exec, s[70:71]
        s_lshr_b32 s64, s{S_H}, 4
        s_lshl_b32 s64, s64, 11
        s_and_b32 s65, s{S_H}, 15
        s_lshl_b32 s65, s65, 2
        s_add_u32 s64, s64, s65
        s_add_u32 s64, s64, {FL_H2}
        s_and_b32 s65, s{S_H}, 7
        """)
        self.pub_flag("s64", cond=f"s_cmp_eq_u32 s65, s{S_J}", nrep=16)
        self.stamp(4)
        self.pre_sigma(0)
        self.pre_sigma(1)
        a(f"""s_and_b32 s69, s2, 31
        s_lshl_b32 s69, s69, 7
        s_add_u32 s69, s69, {FL_H2}""")
        self.sgate("s69", 16, sleep=self.o.get("g2sleep", 2))
        self.set_flag(F_G2)
        self.stamp(1)
        self.qabs_gather(0, mid=lambda: self.pre_sigma(2))
        self.own_late()
        a("s_branch .Lattn_s")

    def qabs_gather(self, z, mid=None):
        a = self.a
        t = T0
        def reg(hh, jh):
            return (QB + 8*hh + 4*jh) if hh < 4 else (KREG + 8*(hh-4) + 4*jh)
        a(f"""
        s_lshl_b32 s64, s{S_AB}, 5
        s_lshl_b32 s65, s{S_AHALF}, 4
        s_add_u32 s64, s64, s65
        s_add_u32 s64, s64, {8*z}
        s_lshl_b32 s64, s64, 11
        s_add_u32 s64, s64, {H2}
        v_lshlrev_b32 v{t}, 4, v{V_LANE}
        """)
        def gather():
            for hh in range(8):
                if hh % 2 == 0: a(f"s_add_u32 s66, s64, {hh*2048}")
                for jh in range(2):
                    r = reg(hh, jh)
                    off = (hh % 2) * 2048 + jh * 1024
                    a(f"buffer_load_dwordx4 v[{r}:{r+3}], v{t}, {WS}, s66 offen offset:{off} sc1")
        gather()
        self.set_flag(F_G2I, add=True)
        if mid: mid()
        a(f"""
        v_lshrrev_b32 v{t+2}, 5, v{V_LANE}
        v_lshlrev_b32 v{t+2}, 8, v{t+2}
        v_and_b32 v{t+3}, 1, v{V_G}
        v_lshl_add_u32 v{t+2}, v{t+3}, 7, v{t+2}
        v_lshrrev_b32 v{t+3}, 1, v{V_J16}
        v_lshl_add_u32 v{t+2}, v{t+3}, 4, v{t+2}
        v_and_b32 v{t+3}, 1, v{V_LANE}
        v_lshl_add_u32 v{t+2}, v{t+3}, 3, v{t+2}
        s_waitcnt vmcnt(0)
        """)
        chk = a.newlabel("h2chk")
        a(f"s_branch {chk}")
        lp = a.newlabel("h2")
        a.label(lp)
        gather()
        a("s_waitcnt vmcnt(0)")
        a.label(chk)
        words = []
        for hh in range(8):
            for jh in range(2): words += [reg(hh, jh) + 1, reg(hh, jh) + 3]
        self.tagcheck(words, t+1, lp)
        for hh in range(8):
            head = 8*z + hh
            a(f"v_xor_b32 v{t+4+(hh%2)}, {Lsw(head) << 4}, v{t+2}")
            a(f"v_add_u32 v{t+4+(hh%2)}, {QABS + head*1024}, v{t+4+(hh%2)}")
            for jh in range(2):
                r = reg(hh, jh)
                a(f"ds_write2_b32 v{t+4+(hh%2)}, v{r}, v{r+2} offset0:{jh*128} offset1:{jh*128+1}")
            if hh % 4 == 3: a("s_waitcnt lgkmcnt(4)")
        a("s_waitcnt lgkmcnt(0)")
        self.set_flag(F_QABS, add=True)
        self.stamp(3) if z == 1 else self.stamp(14)

    def w1_front(self):
        a = self.a
        t = T0
        a.label(".Lw1")
        self.load_tag()
        self.hqB("s72", "s73")
        a("s_lshl_b32 s68, s72, 8")
        if self.o.get("wqdelay", 0): self.wait_flag(F_ISSUED, self.o["wqdelay"], sleep=1)
        self.p1_issue(28, 34, "s68")
        self.attn_addr()
        self.p1_compute(0, H1B, "s72")
        a(f"""s_lshl_b32 s64, s72, 9
        s_lshl_b32 s65, s{S_J}, 2
        s_add_u32 s64, s64, s65
        s_add_u32 s64, s64, {FL_H1B}""")
        self.pub_flag("s64", nrep=4)
        self.stamp(2)
        for sg in range(3): self.pre_sigma(sg)
        a("s_branch .Lattn_s")
    def wq_reg(self, k):
        return (KREG + 4*k) if k < 8 else (VREG + 4*(k-8))
    def pre_sigma(self, sg):
        a = self.a
        self.wait_landed(2*sg + 2)
        self.tr_reads(sg)
        sk = a.newlabel("ps")
        a(f"""s_lshr_b32 s65, s{S_V}, 1
        s_cmp_lg_u32 s65, {sg}
        s_cbranch_scc1 {sk}
        s_waitcnt lgkmcnt(0)""")
        self.sa_reads()
        a.label(sk)
        a("s_waitcnt lgkmcnt(0)")
        self.set_flag(F_REL0 + sg, add=True)
    def own_late(self):
        a = self.a
        sk = a.newlabel("ol")
        a(f"""s_cmp_lt_u32 s{S_V}, 6
        s_cbranch_scc1 {sk}
        s_add_u32 s64, s{S_V}, 1""")
        sk2 = a.newlabel("ol2")
        a(f"""s_cmp_ge_u32 s{S_LAND}, s64
        s_cbranch_scc1 {sk2}""")
        self.wait_flag(F_LANDED, "s64", dst=f"s{S_LAND}")
        a.label(sk2)
        self.sa_reads()
        a.label(sk)

    def loader_plan(self):
        L = []
        for tl in range(8):
            for rho in range(16):
                L.append((CKV + (16*tl + rho)*1024, "ckv", "s72" if tl % 2 == 0 else "s73", (tl >> 1)*16384 + rho*1024, KREG + rho))
        for k in range(32): L.append((LK + k*1024, "k", "s77", k*1024, KREG + 16 + (k & 3)))
        V_ = [(LV + k*1024, "v", "s77", k*1024, KREG + 20) for k in range(32)]
        U_ = [(LW0 + k*1024, "wuv", "s78", k*8192, KREG + 21) for k in range(16)]
        L += (U_ + V_) if self.o.get("wuvfirst", 0) else (V_ + U_)
        A_ = [(LW1 + k*1024, "wo", "s79", k*1024, KREG + 22) for k in range(16)]
        B_ = [(LW2 + k*1024, "wob", "s68", k*1024, KREG + 22) for k in range(16)]
        L += (B_ + A_) if self.o.get("wobfirst", 1) else (A_ + B_)
        return L
    def loader_emit(self, lo, hi, paced, st):
        a = self.a
        L = self.loader_plan()
        D = self.depth if lo < 128 else self.o.get("depth2", self.depth)
        srds = dict(ckv=(18, 16777216), k=(30, 33554432), v=(32, 33554432), wuv=(24, 4194304), wo=(26, 4194304), wob=(36, 4194304))
        for i in range(lo, hi):
            lds, key, base, off, vo = L[i]
            if i == self.o.get("n1", -1): self.wait_flag(F_G1D, 1)
            if lo < 128: D = self.o.get("depth1", self.depth) if i < self.o.get("n1", -1) else self.depth
            if i == 128: self.wait_flag(F_REL0, 8)
            if self.o.get("wuvfirst", 0):
                if i == 160: self.wait_flag(F_REL2, 8)
                if i == 176: self.wait_flag(F_REL1, 8)
            else:
                if i == 160: self.wait_flag(F_REL1, 8)
                if i == 192: self.wait_flag(F_REL2, 8)
            if i == self.o.get("pause_at", 208):
                if st["ops"] and isinstance(st["ops"][-1], int): self.loader_wait(st["ops"][-1], st)
                self.wait_flag(F_G3 if self.o.get("pauseg3", 1) else F_WUV, 1, sleep=1)
            if paced and i - D >= st["landed"]:
                self.loader_wait(i - D, st)
            if st["srd"] != key:
                self.srd(52, *srds[key]); st["srd"] = key
            if key == "wob" and off == 0:
                self.hqB("s68", "s69")
                a(f"""s_lshl_b32 s68, s68, 17
                s_lshr_b32 s69, s{S_J}, 2
                s_lshl_b32 s69, s69, 16
                s_add_u32 s68, s68, s69
                s_and_b32 s69, s{S_J}, 3
                s_lshl_b32 s69, s69, 8
                s_add_u32 s68, s68, s69""")
            a(f"s_mov_b32 m0, {lds}")
            a(f"s_add_u32 s67, {base}, {off}")
            a(f"buffer_load_dwordx4 v{vo}, s[52:55], s67 offen nt lds")
            st["ops"].append(i)
            if (i + 1) % 16 == 0 and i < 128:
                a(f"v_mov_b32 v{M0_+2}, {i+1}")
                a(f"ds_write_b32 v{KREG+23}, v{M0_+2} offset:{4*F_ISSUED}")
            if i + 1 == min(D, 128) and not st.get("addr"):
                self.attn_addr(); st["addr"] = True
    def loader_wait(self, idx, st):
        a = self.a
        ops = st["ops"]
        pos = ops.index(idx)
        after = len(ops) - pos - 1
        a(f"s_waitcnt vmcnt({min(after, 63)})")
        del ops[:pos+1]
        old = st["landed"]
        st["landed"] = idx + 1
        for k in range(old // 16 + 1, st["landed"] // 16 + 1):
            self._landed(k)
    def _landed(self, k):
        a = self.a
        if self.o.get("ldstamps") and k <= 8: self.stamp([1,2,3,4,9,10,11,12][k-1])
        a(f"v_mov_b32 v{M0_+2}, {k}")
        a(f"ds_write_b32 v{KREG+23}, v{M0_+2} offset:{4*F_LANDED}")
        tile = WAVE2TILE[2]
        if k in (2, 4, 6):
            sg = k // 2 - 1
            self.tr_reads(sg)
            if tile >> 1 == sg:
                a("s_waitcnt lgkmcnt(0)")
                self.sa_reads()
            a("s_waitcnt lgkmcnt(0)")
            self.set_flag(F_REL0 + sg, add=True)
    def w2_front(self):
        a = self.a
        t = T0
        a.label(".Lw2")
        self.load_tag()
        a(f"""
        s_lshl_b32 s72, s{S_AB}, 23
        s_lshl_b32 s73, s{S_AS}, 17
        s_add_u32 s72, s72, s73
        s_lshl_b32 s68, s{S_AHALF}, 16
        s_xor_b32 s69, s68, 0x10000
        s_add_u32 s73, s72, s69
        s_add_u32 s72, s72, s68
        v_lshlrev_b32 v{M0_}, 4, v{V_LANE}
        """)
        for rho in range(16):
            a(f"v_xor_b32 v{KREG+rho}, {Lsw(rho) << 4}, v{M0_}")
        a(f"v_mov_b32 v{KREG+23}, {FLAGS}")
        st = dict(ops=[], landed=0, srd=None)
        self.ld_state = st
        if self.o.get("wqi", 0): self.wait_flag(F_WQI, 1)
        D = self.o.get("depth1", self.depth) if self.o.get("n1", -1) > 0 else self.depth
        self.loader_emit(0, D, True, st)
        a(f"""
        s_lshr_b32 s68, s2, 7
        s_lshl_b32 s68, s68, 3
        s_and_b32 s65, s2, 7
        s_add_u32 s68, s68, s65
        s_lshl_b32 s68, s68, 13
        s_bfe_u32 s65, s2, 0x40003
        s_lshl_b32 s65, s65, 7
        s_add_u32 s68, s68, s65
        s_add_u32 s68, s68, 6144
        s_lshl_b32 s77, s68, 8
        s_lshl_b32 s78, s{S_J}, 19
        s_lshl_b32 s65, s{S_H}, 8
        s_add_u32 s78, s78, s65                  ; w_uv
        s_lshl_b32 s79, s{S_H}, 17
        s_lshr_b32 s65, s{S_J}, 2
        s_lshl_b32 s65, s65, 16
        s_add_u32 s79, s79, s65
        s_and_b32 s65, s{S_J}, 3
        s_lshl_b32 s65, s65, 8
        s_add_u32 s79, s79, s65                  ; w_o
        v_and_b32 v{t}, 1, v{V_G}
        v_and_b32 v{t+1}, 2, v{V_G}
        v_lshl_or_b32 v{t}, v{t+1}, 2, v{t}      ; L(g)
        v_xor_b32 v{t}, v{t}, v{V_J16}
        v_lshlrev_b32 v{t}, 4, v{t}
        v_lshl_add_u32 v{t}, v{V_G}, 8, v{t}
        """)
        for q in range(4):
            a(f"v_xor_b32 v{KREG+16+q}, {(q << 1) << 4}, v{t}")
        a(f"""
        v_lshlrev_b32 v{KREG+20}, 4, v{V_LANE}                  ; V: linear
        v_lshlrev_b32 v{KREG+21}, 17, v{V_G}
        v_lshl_add_u32 v{KREG+21}, v{V_J16}, 4, v{KREG+21}      ; w_uv: g<<17 | j16<<4
        v_lshlrev_b32 v{KREG+22}, 14, v{V_G}
        v_lshl_add_u32 v{KREG+22}, v{V_J16}, 4, v{KREG+22}      ; w_o/wo: g<<14 | j16<<4
        """)
        kpre = self.o.get("kpre", 0)
        self.loader_emit(D, 128 + kpre, True, st)
        if st["landed"] < 128: self.loader_wait(127, st)
        self.get_tag()
        a(f"s_mov_b32 s{S_LAND}, 8")
        if not self.o.get("ldstamps"): self.stamp(1)
        be = 128 + kpre + self.o.get("burst", 24)
        if be > 128 + kpre:
            if self.o.get("burstgate", 0): self.wait_flag(F_QABS, 2)
            else: self.wait_flag(F_G2I, 2)
            self.loader_emit(128 + kpre, be, False, st)
        self.ld_next = be
        a("s_branch .Lattn_s")

    def w3_front(self):
        a = self.a
        t = T0
        a.label(".Lw3")
        self.load_tag()
        self.attn_addr()
        self.get_tag()
        self.stamp(1)
        self.pre_sigma(0)
        self.pre_sigma(1)
        self.wait_flag(F_G2, 1, sleep=1)
        self.qabs_gather(1, mid=lambda: self.pre_sigma(2))
        a("s_branch .Lattn_s")

    def w47_front(self):
        a = self.a
        a.label(".Lw47")
        self.load_tag()
        self.attn_addr()
        a(f"s_sub_u32 s72, s{S_WAVE}, 4")
        self.get_tag()
        self.pre_sigma(0)
        self.pre_sigma(1)
        self.qb_gather(nv=0)
        self.stamp(1)
        self.pre_sigma(2)
        self.own_late()
        self.stamp(2)
        a("s_branch .Lattn_s")

    def qb_gather(self, mid=None, nv=8):
        a = self.a
        t = T0
        a(f"""s_and_b32 s73, s2, 7
        s_lshl_b32 s73, s73, 2
        s_add_u32 s73, s73, s72
        s_lshr_b32 s69, s2, 7
        s_lshl_b32 s64, s73, 13
        s_lshl_b32 s65, s69, 9
        s_add_u32 s64, s64, s65
        s_add_u32 s64, s64, {H1B}
        s_add_u32 s66, s64, 4096
        v_lshlrev_b32 v{t}, 10, v{V_G}
        v_lshl_add_u32 v{t}, v{V_J16}, 4, v{t}
        """)
        def gather():
            for ph in range(2):
                for dh in range(2):
                    r = QB + 8*ph + 4*dh
                    a(f"buffer_load_dwordx4 v[{r}:{r+3}], v{t}, {WS}, {'s64' if ph == 0 else 's66'} offen offset:{256*dh} sc1")
        a(f"""s_lshl_b32 s67, s73, 2
        s_bfe_u32 s65, s2, 0x20005
        s_add_u32 s67, s67, s65
        s_lshl_b32 s67, s67, 7
        s_add_u32 s67, s67, {FL_H1B}""")
        self.sgate("s67", 8, sleep=10)
        gather()
        if mid: mid()
        a(f"s_waitcnt vmcnt({nv})")
        chk = a.newlabel("h1bchk")
        a(f"s_branch {chk}")
        lp = a.newlabel("h1b")
        a.label(lp)
        gather()
        a("s_waitcnt vmcnt(0)")
        a.label(chk)
        words = []
        for q in range(4): words += [QB + 4*q + 1, QB + 4*q + 3]
        self.tagcheck(words, t+1, lp)
        for q in range(4): a(f"v_mov_b32 v{QB+4*q+1}, v{QB+4*q+2}")
        SE = KREG
        for sg in range(2):
            for rg in range(2):
                a(f"v_and_b32 v{SE+2*sg+rg}, 0x3f803f80, v{MSK[sg][rg]}")
        a("s_nop 1")
        first = True
        for ph in range(2):
            for dh in range(2):
                r = QB + 8*ph + 4*dh
                c = "0" if first else f"v[{ACC}:{ACC+3}]"
                first = False
                a(f"v_mfma_f32_16x16x16_bf16 v[{ACC}:{ACC+3}], v[{SE+2*dh}:{SE+2*dh+1}], v[{r}:{r+1}], {c}")
        a("s_nop 7"); a("s_nop 1")
        for r in range(4): a(f"v_mul_f32 v{ACC+r}, {CS}, v{ACC+r}")
        a(f"""
        v_cvt_pk_bf16_f32 v{t+4}, v{ACC}, v{ACC+1}
        v_cvt_pk_bf16_f32 v{t+5}, v{ACC+2}, v{ACC+3}
        v_lshlrev_b32 v{t+1}, 3, v{V_LANE}
        s_lshl_b32 s65, s72, 8
        s_add_u32 s65, s65, {QBL}
        v_add_u32 v{t+1}, s65, v{t+1}
        v_cmp_gt_u32 vcc, 32, v{V_LANE}
        s_and_saveexec_b64 s[70:71], vcc
        ds_write_b64 v{t+1}, v[{t+4}:{t+5}]
        s_mov_b64 exec, s[70:71]
        s_waitcnt lgkmcnt(0)
        """)
        self.set_flag(F_QB, add=True)

    def v_loads(self):
        a = self.a
        t = T0
        self.srd(56, 32, 33554432)
        a(f"""v_lshlrev_b32 v{t+11}, 11, v{V_G}
        v_lshl_add_u32 v{t+11}, v{V_J16}, 4, v{t+11}""")
        for k in range(8):
            a(f"buffer_load_dwordx4 v[{VREG+4*k}:{VREG+4*k+3}], v{t+11}, s[56:59], s{S_KOFF} offen offset:{256*k} nt")

    def attn(self):
        a = self.a
        t = T0
        a.label(".Lattn")
        for sg in range(2):
            self.wait_landed(2*sg + 2)
            self.tr_reads(sg)
        a.label(".Lattn_own")
        a(f"s_add_u32 s64, s{S_V}, 1")
        sk = a.newlabel("own")
        a(f"""s_cmp_ge_u32 s{S_LAND}, s64
        s_cbranch_scc1 {sk}""")
        self.wait_flag(F_LANDED, "s64", dst=f"s{S_LAND}")
        a.label(sk)
        a("s_waitcnt lgkmcnt(0)")
        self.sa_reads()
        a.label(".Lattn_s")
        self.stamp(5)
        self.wait_flag(F_QABS, 2)
        self.stamp(6)
        NB = 8
        def bread(s):
            r = QB + 4*(s % NB)
            a(f"ds_read_b128 v[{r}:{r+3}], v{AD_QB+(s&3)} offset:{(s>>2)*256}")
        for s in range(NB): bread(s)
        for s in range(16):
            rem = min(NB - 1, 15 - s)
            a(f"s_waitcnt lgkmcnt({rem})")
            r = QB + 4*(s % NB)
            c = "0" if s == 0 else f"v[{ACC}:{ACC+3}]"
            a(f"v_mfma_f32_16x16x32_bf16 v[{ACC}:{ACC+3}], v[{SA+4*s}:{SA+4*s+3}], v[{r}:{r+3}], {c}")
            if s + NB < 16: bread(s + NB)
        m = M0_
        a(f"""
        v_lshlrev_b32 v{t}, 5, v{V_J16}
        s_lshl_b32 s65, s{S_V}, 2
        v_add_u32 v{t}, s65, v{t}                ; head*32 + v*4
        v_add_u32 v{t+1}, {MAXB}, v{t}
        v_lshlrev_b32 v{t+2}, 5, v{V_J16}
        v_add_u32 v{t+2}, {MAXB}, v{t+2}
        s_nop 4
        v_max_f32 v{m}, v{ACC}, v{ACC+1}
        v_max3_f32 v{m}, v{m}, v{ACC+2}, v{ACC+3}""")
        self.xrow_reduce("v_max_f32", m, m+1)
        a(f"""
        v_cmp_gt_u32 vcc, 16, v{V_LANE}
        s_and_saveexec_b64 s[70:71], vcc
        ds_write_b32 v{t+1}, v{m}
        s_mov_b64 exec, s[70:71]
        s_waitcnt lgkmcnt(0)
        s_barrier
        ds_read_b128 v[{QB}:{QB+3}], v{t+2}
        ds_read_b128 v[{QB+4}:{QB+7}], v{t+2} offset:16
        """)
        self.tr_reads(3)
        a(f"""
        s_waitcnt lgkmcnt(8)
        v_max3_f32 v{m}, v{QB}, v{QB+1}, v{QB+2}
        v_max3_f32 v{m}, v{m}, v{QB+3}, v{QB+4}
        v_max3_f32 v{m}, v{m}, v{QB+5}, v{QB+6}
        v_max_f32 v{m}, v{m}, v{QB+7}
        """)
        for r in range(4): a(f"v_sub_f32 v{ACC+r}, v{ACC+r}, v{m}")
        for r in range(4): a(f"v_exp_f32 v{ACC+r}, v{ACC+r}")
        a(f"""s_nop 0
        v_add_f32 v{m+1}, v{ACC}, v{ACC+1}
        v_add_f32 v{m+2}, v{ACC+2}, v{ACC+3}
        v_cvt_pk_bf16_f32 v{m+4}, v{ACC}, v{ACC+1}
        v_cvt_pk_bf16_f32 v{m+5}, v{ACC+2}, v{ACC+3}
        v_add_f32 v{m+1}, v{m+1}, v{m+2}
        s_lshr_b32 s65, s{S_V}, 1
        s_lshl_b32 s65, s65, 10
        s_and_b32 s66, s{S_V}, 1
        s_lshl_b32 s66, s66, 3
        s_add_u32 s65, s65, s66
        s_add_u32 s65, s65, {PBUF}
        v_lshlrev_b32 v{t+2}, 4, v{V_LANE}
        v_add_u32 v{t+3}, s65, v{t+2}
        ds_write_b64 v{t+3}, v[{m+4}:{m+5}]
        """)
        self.xrow_reduce("v_add_f32", m+1, m+2)
        a(f"""
        v_add_u32 v{t+1}, {LBUF}, v{t}
        v_cmp_gt_u32 vcc, 16, v{V_LANE}
        s_and_saveexec_b64 s[70:71], vcc
        ds_write_b32 v{t+1}, v{m+1}
        s_mov_b64 exec, s[70:71]
        v_add_u32 v{t+2}, {PBUF}, v{t+2}
        s_waitcnt lgkmcnt(0)
        s_barrier
        """)
        self.stamp(7)
        for sg in range(4):
            a(f"ds_read_b128 v[{QB+4*sg}:{QB+4*sg+3}], v{t+2} offset:{sg*1024}")
        if self.o.get("h3early", 0):
            sk3 = a.newlabel("h3e")
            a(f"""s_cmp_lg_u32 s{S_WAVE}, 3
            s_cbranch_scc1 {sk3}""")
            self.h3_flag()
            a.label(sk3)
        PV = SA + 32
        for sg in range(4):
            a(f"s_waitcnt lgkmcnt({3-sg})")
            for tt in range(4):
                r = self.pa_reg(sg, tt)
                c = "0" if sg == 0 else f"v[{PV+4*tt}:{PV+4*tt+3}]"
                a(f"v_mfma_f32_16x16x32_bf16 v[{PV+4*tt}:{PV+4*tt+3}], v[{r}:{r+3}], v[{QB+4*sg}:{QB+4*sg+3}], {c}")
        a(f"""
        v_lshlrev_b32 v{t+2}, 17, v{V_J16}
        v_lshl_add_u32 v{t+2}, v{V_G}, 4, v{t+2}
        s_lshl_b32 s64, s{S_AHALF}, 21
        s_lshl_b32 s65, s{S_V}, 14
        s_add_u32 s64, s64, s65
        s_lshl_b32 s65, s{S_AB}, 13
        s_add_u32 s64, s64, s65
        s_lshl_b32 s65, s{S_AS}, 7
        s_add_u32 s64, s64, s65
        s_add_u32 s64, s64, {H3}
        s_mov_b32 s67, 0xfffefffe
        """)
        self.lsb_pat(M0_+6, V_G, t+4)
        O = SA + 48
        for tt in range(4):
            d = PV + 4*tt
            a(f"v_cvt_pk_bf16_f32 v{O+2*tt}, v{d}, v{d+1}")
            a(f"v_cvt_pk_bf16_f32 v{O+2*tt+1}, v{d+2}, v{d+3}")
        for r in range(8): a(f"v_and_or_b32 v{O+r}, v{O+r}, s67, v{M0_+6+(r%4)}")
        TT = O + 8
        for r in range(4): a(f"v_mov_b32 v{TT+r}, v{O+4+r}")
        a("s_nop 0")
        for r in range(4): a(f"v_mov_b32_dpp v{O+4+r}, v{O+r} row_ror:8 row_mask:0xf bank_mask:0x3")
        for r in range(4): a(f"v_mov_b32_dpp v{O+r}, v{TT+r} row_ror:8 row_mask:0xf bank_mask:0xc")
        a(f"""v_and_b32 v{t+2}, 7, v{V_J16}
        v_lshlrev_b32 v{t+2}, 17, v{t+2}
        v_lshrrev_b32 v{t+3}, 3, v{V_J16}
        v_lshl_add_u32 v{t+2}, v{t+3}, 6, v{t+2}
        v_lshl_add_u32 v{t+2}, v{V_G}, 4, v{t+2}
        s_add_u32 s65, s64, 0x100000
        buffer_store_dwordx4 v[{O}:{O+3}], v{t+2}, {WS}, s64 offen sc1
        buffer_store_dwordx4 v[{O+4}:{O+7}], v{t+2}, {WS}, s65 offen sc1
        """)
        self.stamp(8)
        a(f"""
        s_cmp_eq_u32 s{S_WAVE}, 0
        s_cbranch_scc1 .Lt0
        s_cmp_eq_u32 s{S_WAVE}, 1
        s_cbranch_scc1 .Lt1
        s_cmp_eq_u32 s{S_WAVE}, 2
        s_cbranch_scc1 .Lt2
        s_cmp_eq_u32 s{S_WAVE}, 3
        s_cbranch_scc1 .Lt3
        s_branch .Lt47
        """)

    def read_w_lds(self, base, dst):
        a = self.a
        t = T0
        a(f"v_lshlrev_b32 v{t+13}, 4, v{V_LANE}")
        a(f"v_add_u32 v{t+13}, {base}, v{t+13}")
        for k in range(16):
            if k == 12: a("s_waitcnt lgkmcnt(4)")
            a(f"ds_read_b128 v[{dst+4*k}:{dst+4*k+3}], v{t+13} offset:{k*1024}")
    def vec_to_x(self, vec, X):
        a = self.a
        t = T0
        a(f"""v_lshrrev_b32 v{t+13}, 3, v{V_J16}
        v_lshlrev_b32 v{t+13}, 7, v{t+13}
        v_lshl_add_u32 v{t+13}, v{V_G}, 5, v{t+13}
        v_add_u32 v{t+13}, {vec}, v{t+13}
        s_waitcnt lgkmcnt(0)
        ds_read_b128 v[{X}:{X+3}], v{t+13}
        ds_read_b128 v[{X+4}:{X+7}], v{t+13} offset:16
        s_waitcnt lgkmcnt(0)""")
    def publish_h5(self, acc, src, s_pp):
        a = self.a
        t = T0
        a(f"""v_lshrrev_b32 v{t+8}, 2, v{V_LANE}
        v_lshlrev_b32 v{t+8}, 12, v{t+8}
        v_and_b32 v{t+9}, 3, v{V_LANE}
        v_lshl_add_u32 v{t+8}, v{t+9}, 4, v{t+8}
        s_and_b32 s64, s{S_J}, 3
        s_add_u32 s64, s64, {src*4}
        s_lshl_b32 s64, s64, 16
        s_lshl_b32 s65, {s_pp}, 6
        s_add_u32 s64, s64, s65
        s_add_u32 s64, s64, {H5}""")
        self.publish_granule(acc, t+4, t+8, "s64")
        a(f"""s_and_b32 s64, s{S_J}, 3
        s_add_u32 s64, s64, {src*4}
        s_lshl_b32 s64, s64, 8
        s_lshr_b32 s65, {s_pp}, 2
        s_lshl_b32 s65, s65, 2
        s_add_u32 s64, s64, s65
        s_add_u32 s64, s64, {FL_H5}
        s_and_b32 s65, {s_pp}, 3
        """)
        self.pub_flag("s64", cond="s_cmp_eq_u32 s65, 1", nrep=2)

    def tail_w0(self):
        a = self.a
        t = T0
        X = QB; A0 = QB + 8; A1 = QB + 12
        a.label(".Lt0")
        a(f"""
        v_lshrrev_b32 v{t}, 3, v{V_J16}
        v_lshlrev_b32 v{t}, 10, v{t}
        v_lshl_add_u32 v{t}, v{V_G}, 8, v{t}
        v_and_b32 v{t+1}, 7, v{V_J16}
        v_lshl_add_u32 v{t}, v{t+1}, 5, v{t}
        s_lshl_b32 s64, s{S_H}, 11
        s_add_u32 s64, s64, {H3S}
        v_lshrrev_b32 v{t+2}, 3, v{V_J16}
        v_lshlrev_b32 v{t+2}, 13, v{t+2}
        v_lshl_add_u32 v{t+2}, v{V_G}, 11, v{t+2}
        v_lshl_add_u32 v{t+2}, v{t+1}, 4, v{t+2}
        s_lshl_b32 s66, s{S_H}, 3
        s_add_u32 s66, s66, s{S_J}
        s_lshl_b32 s66, s66, 14
        s_add_u32 s66, s66, {H3}
        """)
        S = KREG
        PT = KREG + 16
        a(f"v_and_b32 v{PT+4}, 3, v{V_J16}")
        self.lsb_pat(PT, PT+4, PT+5)
        a(f"""s_lshl_b32 s67, s{S_H}, 7
        s_add_u32 s67, s67, {FL_H3}""")
        if self.diag: self.stamp(15)
        self.sgate("s67", 16, sleep=self.o.get("gsleep", 3))
        if self.diag and self.o.get("cnt"): a(f"v_writelane_b32 v{V_ST}, s65, 1")
        self.stamp(9)
        lp2 = a.newlabel("h3p")
        a.label(lp2)
        a(f"""buffer_load_dwordx4 v[{S}:{S+3}], v{t}, {WS}, s64 offen sc1
        buffer_load_dwordx4 v[{S+4}:{S+7}], v{t}, {WS}, s64 offen offset:16 sc1""")
        for k in range(16):
            a(f"buffer_load_dwordx4 v[{SA+4*k}:{SA+4*k+3}], v{t+2}, {WS}, s66 offen offset:{128*k} sc1")
        self.set_flag(F_G3)
        if self.o.get("wuvovl", 1):
            self.wait_flag(F_LANDED, 11 if self.o.get("wuvfirst", 0) else 13)
            self.read_w_lds(LW0, PA)
        a("s_waitcnt vmcnt(16)")
        lpx = a.newlabel("h3x")
        okx = a.newlabel("h3sok")
        a(f"v_xor_b32 v{t+1}, s{S_TAG}, v{S+1}")
        for w_ in (S+3, S+5, S+7):
            a(f"v_bitop3_b32 v{t+1}, v{t+1}, v{w_}, s{S_TAG} bitop3:0xf6")
        a(f"""v_cmp_ne_u32 vcc, 0, v{t+1}
        s_nop 1
        s_cbranch_vccz {okx}
        s_waitcnt vmcnt(0)
        s_sleep 1""")
        self.spin_fail(lp2)
        a.label(okx)
        W = S + 8
        a(f"""
        v_max_f32 v{W}, v{S}, v{S+4}
        s_nop 1
        v_max_f32_dpp v{W}, v{W}, v{W} quad_perm:[1,0,3,2] row_mask:0xf bank_mask:0xf
        s_nop 1
        v_max_f32_dpp v{W}, v{W}, v{W} quad_perm:[2,3,0,1] row_mask:0xf bank_mask:0xf
        s_nop 1
        v_max_f32_dpp v{W}, v{W}, v{W} row_half_mirror row_mask:0xf bank_mask:0xf
        """)
        self.xrow_reduce("v_max_f32", W, W+1)
        a(f"""
        v_sub_f32 v{W+2}, v{S}, v{W}
        v_sub_f32 v{W+3}, v{S+4}, v{W}
        v_exp_f32 v{W+2}, v{W+2}
        v_exp_f32 v{W+3}, v{W+3}
        s_nop 0
        v_cvt_pk_bf16_f32 v{W+4}, v{W+2}, v{W+3}
        v_mul_f32 v{W+5}, v{W+2}, v{S+2}
        v_fmac_f32 v{W+5}, v{W+3}, v{S+6}
        v_lshrrev_b32 v{W+6}, 3, v{V_J16}
        v_lshlrev_b32 v{W+6}, 7, v{W+6}
        v_lshl_add_u32 v{W+6}, v{V_G}, 5, v{W+6}
        v_and_b32 v{W+7}, 7, v{V_J16}
        v_lshl_add_u32 v{W+6}, v{W+7}, 2, v{W+6}
        v_add_u32 v{W+6}, {VEC0}, v{W+6}
        ds_write_b32 v{W+6}, v{W+4}
        """)
        self.vec_to_x(VEC0, X)
        a(f"""
        v_add_f32_dpp v{W+5}, v{W+5}, v{W+5} quad_perm:[1,0,3,2] row_mask:0xf bank_mask:0xf
        s_nop 1
        v_add_f32_dpp v{W+5}, v{W+5}, v{W+5} quad_perm:[2,3,0,1] row_mask:0xf bank_mask:0xf
        s_nop 1
        v_add_f32_dpp v{W+5}, v{W+5}, v{W+5} row_half_mirror row_mask:0xf bank_mask:0xf
        """)
        self.xrow_reduce("v_add_f32", W+5, W+1)
        a(f"v_rcp_f32 v{W+5}, v{W+5}")
        a(f"v_mov_b32 v{W+7}, 0")
        def pre(k):
            a(f"s_waitcnt vmcnt({15-k})")
            r = SA + 4*k
            for i in range(4):
                a(f"v_bitop3_b32 v{W+7}, v{W+7}, v{r+i}, v{PT+i} bitop3:0xf6")
            for i in range(4):
                a(f"v_and_b32 v{r+i}, s68, v{r+i}")
        a("s_mov_b32 s68, 0xfffefffe")
        self.diag_mfma(X, SA, ACC, A0, A1, pre=pre, pre_first=True)
        ok = a.newlabel("h3ok")
        a(f"""v_and_b32 v{W+7}, 0x00010001, v{W+7}
        v_cmp_ne_u32 vcc, 0, v{W+7}
        s_nop 1
        s_cbranch_vccz {ok}""")
        self.spin_fail(lp2)
        a.label(ok)
        self.set_flag(F_WUV)
        self.stamp(10)
        if not self.o.get("wuvovl", 1):
            self.wait_flag(F_LANDED, 11 if self.o.get("wuvfirst", 0) else 13)
            self.read_w_lds(LW0, PA)
        for r in range(4): a(f"v_mul_f32 v{ACC+r}, v{W+5}, v{ACC+r}")
        a(f"""
        v_cvt_pk_bf16_f32 v{t+4}, v{ACC}, v{ACC+1}
        v_cvt_pk_bf16_f32 v{t+5}, v{ACC+2}, v{ACC+3}
        v_and_b32 v{W+6}, 3, v{V_J16}
        v_and_b32 v{W+1}, 1, v{V_G}
        v_xor_b32 v{W+7}, v{W+6}, v{W+1}
        v_and_b32 v{W+7}, 1, v{W+7}
        v_lshlrev_b32 v{W+7}, 3, v{W+7}
        v_lshl_add_u32 v{W+7}, v{W+6}, 5, v{W+7}
        v_bfe_u32 v{W+6}, v{V_J16}, 2, 1
        v_lshl_add_u32 v{W+7}, v{W+6}, 4, v{W+7}
        v_lshrrev_b32 v{W+6}, 3, v{V_J16}
        v_lshl_add_u32 v{W+7}, v{W+6}, 7, v{W+7}
        v_add_u32 v{W+7}, {VEC0}, v{W+7}
        v_lshrrev_b32 v{W+1}, 1, v{V_G}
        v_cmp_eq_u32 vcc, v{W+1}, v{W+6}
        s_and_saveexec_b64 s[70:71], vcc
        ds_write_b64 v{W+7}, v[{t+4}:{t+5}]
        s_mov_b64 exec, s[70:71]
        """)
        self.vec_to_x(VEC0, X)
        self.diag_mfma(X, PA, ACC, A0, A1)
        self.gran_voff(t+8, t+9)
        a(f"""s_lshl_b32 s64, s{S_H}, 3
        s_add_u32 s64, s64, s{S_J}
        s_lshl_b32 s64, s64, 10
        s_add_u32 s64, s64, {H4}""")
        self.publish_granule(ACC, t+4, t+8, "s64", local=True)
        self.stamp(11)
        a(f"""
        v_lshlrev_b32 v{t}, 10, v{V_G}
        v_lshl_add_u32 v{t}, v{V_J16}, 4, v{t}
        s_lshl_b32 s64, s{S_H}, 13
        s_lshr_b32 s65, s{S_J}, 2
        s_lshl_b32 s66, s65, 8
        s_add_u32 s64, s64, s66
        s_add_u32 s64, s64, {H4}
        s_add_u32 s66, s64, 4096
        """)
        SE = KREG
        for sg in range(2):
            for rg in range(2):
                a(f"v_and_b32 v{SE+2*sg+rg}, 0x3f803f80, v{MSK[sg][rg]}")
        self.wait_flag(F_LANDED, 15 if self.o.get("wobfirst", 1) else 14)
        self.read_w_lds(LW1, PA)
        a(f"""s_add_u32 s64, s64, {LOC}
        s_add_u32 s66, s66, {LOC}
        s_mov_b32 s69, 0""")
        lp = a.newlabel("h4")
        a.label(lp)
        for b in range(2):
            for ph in range(2):
                r = SA + 8*b + 4*ph
                a(f"buffer_load_dwordx4 v[{r}:{r+3}], v{t}, {WS}, {'s64' if ph == 0 else 's66'} offen offset:{512*b} sc1")
        a("s_waitcnt vmcnt(0)")
        words = []
        for q in range(4): words += [SA + 4*q + 1, SA + 4*q + 3]
        self.tagcheck(words, t+1, lp, onfail=lambda: self.poll_switch(["s64", "s66"], lp, after=6))
        self.stamp(12)
        for q in range(4): a(f"v_mov_b32 v{SA+4*q+1}, v{SA+4*q+2}")
        a("s_nop 1")
        first = True
        for b in range(2):
            for ph in range(2):
                r = SA + 8*b + 4*ph
                c = "0" if first else f"v[{ACC}:{ACC+3}]"
                first = False
                a(f"v_mfma_f32_16x16x16_bf16 v[{ACC}:{ACC+3}], v[{SE+2*b}:{SE+2*b+1}], v[{r}:{r+1}], {c}")
        a(f"""
        v_lshlrev_b32 v{t+6}, 7, v{V_G}
        v_lshl_add_u32 v{t+6}, v{V_J16}, 3, v{t+6}
        v_add_u32 v{t+6}, {VEC0}, v{t+6}
        v_cmp_gt_u32 vcc, 32, v{V_LANE}
        s_nop 4
        v_cvt_pk_bf16_f32 v{t+4}, v{ACC}, v{ACC+1}
        v_cvt_pk_bf16_f32 v{t+5}, v{ACC+2}, v{ACC+3}
        s_and_saveexec_b64 s[70:71], vcc
        ds_write_b64 v{t+6}, v[{t+4}:{t+5}]
        s_mov_b64 exec, s[70:71]
        """)
        self.vec_to_x(VEC0, X)
        self.diag_mfma(X, PA, ACC, A0, A1)
        a(f"""s_lshl_b32 s67, s{S_H}, 1
        s_lshr_b32 s65, s{S_J}, 2
        s_add_u32 s67, s67, s65""")
        self.publish_h5(ACC, 0, "s67")
        self.stamp(13)
        self.dump_stamps()
        a("s_branch .Lend")

    def tail_w1(self):
        a = self.a
        t = T0
        X = QB; A0 = QB + 8; A1 = QB + 12
        a.label(".Lt1")
        self.hqB("s72", "s73")

        a(f"""s_lshr_b32 s73, s{S_J}, 2
        v_and_b32 v{t}, 3, v{V_J16}
        v_lshlrev_b32 v{t}, 6, v{t}
        v_lshl_add_u32 v{t}, v{V_G}, 4, v{t}
        s_lshl_b32 s64, s72, 8
        s_add_u32 s64, s64, {H3BS}
        s_add_u32 s68, s64, 8192
        v_lshlrev_b32 v{t+2}, 9, v{V_G}
        v_lshl_add_u32 v{t+2}, v{V_J16}, 4, v{t+2}
        s_lshl_b32 s66, s72, 13
        s_lshl_b32 s67, s73, 8
        s_add_u32 s66, s66, s67
        s_add_u32 s66, s66, {H3B}
        """)
        S = KREG
        a(f"""s_and_b32 s67, s2, 7
        s_lshl_b32 s67, s67, 2
        s_lshr_b32 s65, s{S_J}, 1
        s_add_u32 s67, s67, s65
        s_lshl_b32 s67, s67, 7
        s_add_u32 s67, s67, {FL_H3B}""")
        self.sgate("s67", 16, sleep=self.o.get("gsleep", 3))
        lp = a.newlabel("h3b")
        a.label(lp)
        a(f"""buffer_load_dwordx4 v[{S}:{S+3}], v{t}, {WS}, s64 offen sc1
        buffer_load_dwordx4 v[{S+4}:{S+7}], v{t}, {WS}, s68 offen sc1""")
        for b in range(2):
            for k in range(4):
                r = SA + 16*b + 4*k
                a(f"s_add_u32 s67, s66, {b*262144 + (k//2)*4096}")
                a(f"buffer_load_dwordx4 v[{r}:{r+3}], v{t+2}, {WS}, s67 offen offset:{(k%2)*2048} sc1")
        a("s_waitcnt vmcnt(8)")
        W = S + 8
        for b in range(2):
            m, l, w, L = S + 4*b, S + 2 + 4*b, W + b, W + 2 + b
            a(f"""v_mov_b32 v{W+4}, v{m}
            s_nop 1
            v_max_f32_dpp v{W+4}, v{W+4}, v{W+4} quad_perm:[1,0,3,2] row_mask:0xf bank_mask:0xf
            s_nop 1
            v_max_f32_dpp v{W+4}, v{W+4}, v{W+4} quad_perm:[2,3,0,1] row_mask:0xf bank_mask:0xf""")
            self.xrow_reduce("v_max_f32", W+4, W+5)
            a(f"""v_sub_f32 v{w}, v{m}, v{W+4}
            v_exp_f32 v{w}, v{w}
            s_nop 0
            v_mul_f32 v{L}, v{w}, v{l}
            s_nop 1
            v_add_f32_dpp v{L}, v{L}, v{L} quad_perm:[1,0,3,2] row_mask:0xf bank_mask:0xf
            s_nop 1
            v_add_f32_dpp v{L}, v{L}, v{L} quad_perm:[2,3,0,1] row_mask:0xf bank_mask:0xf""")
            self.xrow_reduce("v_add_f32", L, W+5)
            a(f"v_cvt_pk_bf16_f32 v{w}, v{w}, v{w}")
        a("s_waitcnt vmcnt(0)")
        words = [S+1, S+3, S+5, S+7]
        for q in range(8): words += [SA + 4*q + 1, SA + 4*q + 3]
        self.tagcheck(words, t+1, lp)
        self.stamp(9)
        for q in range(8): a(f"v_mov_b32 v{SA+4*q+1}, v{SA+4*q+2}")
        first = True
        for b in range(2):
            for k in range(4):
                r = SA + 16*b + 4*k
                A = A0 + 2*(k % 2)
                a(f"""v_mov_b32_dpp v{W+6}, v{W+b} quad_perm:[{k},{k},{k},{k}] row_mask:0xf bank_mask:0xf
                s_nop 0
                v_and_b32 v{A}, v{W+6}, v{MSK[b][0]}
                v_and_b32 v{A+1}, v{W+6}, v{MSK[b][1]}
                s_nop 1""")
                c = "0" if first else f"v[{ACC}:{ACC+3}]"
                first = False
                a(f"v_mfma_f32_16x16x16_bf16 v[{ACC}:{ACC+3}], v[{A}:{A+1}], v[{r}:{r+1}], {c}")
        a(f"""
        v_cmp_eq_u32 vcc, 1, v{V_G}
        s_nop 1
        v_cndmask_b32 v{W+2}, v{W+2}, v{W+3}, vcc
        v_rcp_f32 v{W+2}, v{W+2}
        s_nop 7
        """)
        for r in range(4): a(f"v_mul_f32 v{ACC+r}, v{W+2}, v{ACC+r}")
        a(f"""
        v_cvt_pk_bf16_f32 v{t+4}, v{ACC}, v{ACC+1}
        v_cvt_pk_bf16_f32 v{t+5}, v{ACC+2}, v{ACC+3}
        v_lshlrev_b32 v{t+6}, 7, v{V_G}
        v_lshl_add_u32 v{t+6}, v{V_J16}, 3, v{t+6}
        v_add_u32 v{t+6}, {VEC1}, v{t+6}
        v_cmp_gt_u32 vcc, 32, v{V_LANE}
        s_and_saveexec_b64 s[70:71], vcc
        ds_write_b64 v{t+6}, v[{t+4}:{t+5}]
        s_mov_b64 exec, s[70:71]
        """)
        self.wait_flag(F_LANDED, 14 if self.o.get("wobfirst", 1) else 15, sleep=1)
        self.read_w_lds(LW2, PA)
        self.vec_to_x(VEC1, X)
        self.diag_mfma(X, PA, ACC, A0, A1)
        a(f"""s_lshl_b32 s67, s72, 1
        s_add_u32 s67, s67, s73""")
        self.publish_h5(ACC, 1, "s67")
        self.stamp(10)
        self.dump_stamps()
        a("s_branch .Lend")

    def late_dma_issue(self, srdsgpr, srdbase, nbytes, rowstride_log2, s_off, ldsbase, vreg):
        a = self.a
        self.srd(srdsgpr, srdbase, nbytes)
        a(f"""v_lshlrev_b32 v{vreg}, {rowstride_log2 + 4}, v{V_G}
        v_lshl_add_u32 v{vreg}, v{V_J16}, 4, v{vreg}
        s_mov_b32 s67, {s_off}""")
        for k in range(16):
            a(f"s_mov_b32 m0, {ldsbase + k*1024}")
            a(f"s_nop 0")
            a(f"buffer_load_dwordx4 v{vreg}, s[{srdsgpr}:{srdsgpr+3}], s67 offen nt lds")
            if k < 15: a(f"s_add_u32 s67, s67, {1 << rowstride_log2}")

    def tail_w2(self):
        a = self.a
        t = T0
        a.label(".Lt2")
        st = self.ld_state
        st["ops"] += ["st0", "st1"]
        st["srd"] = None
        a(f"""
        v_lshlrev_b32 v{KREG+20}, 4, v{V_LANE}
        v_lshlrev_b32 v{KREG+21}, 17, v{V_G}
        v_lshl_add_u32 v{KREG+21}, v{V_J16}, 4, v{KREG+21}
        v_lshlrev_b32 v{KREG+22}, 14, v{V_G}
        v_lshl_add_u32 v{KREG+22}, v{V_J16}, 4, v{KREG+22}
        v_mov_b32 v{KREG+23}, {FLAGS}
        """)
        self.loader_emit(self.ld_next, 240, True, st)
        for idx in range(st["landed"] // 16 * 16 + 15, 240, 16):
            if idx >= st["landed"]: self.loader_wait(idx, st)
        self.stamp_w2(10)
        a(f"""s_cmp_ge_u32 s2, 128
        s_cbranch_scc1 .Lt2end
        s_lshl_b32 s64, s2, 12
        s_add_u32 s64, s64, {H5}
        v_lshlrev_b32 v{t}, 6, v{V_J16}
        v_lshl_add_u32 v{t}, v{V_G}, 4, v{t}
        """)
        a(f"""s_lshr_b32 s67, s2, 3
        s_lshl_b32 s67, s67, 7
        s_add_u32 s67, s67, {FL_H5}""")
        if self.o.get("h5gate", 0): self.sgate("s67", 16, sleep=self.o.get("gsleep", 3))
        lp = a.newlabel("h5")
        a.label(lp)
        for u in range(4):
            a(f"buffer_load_dwordx4 v[{SA+4*u}:{SA+4*u+3}], v{t}, {WS}, s64 offen offset:{1024*u} sc1")
        a("s_waitcnt vmcnt(0)")
        words = []
        for q in range(4): words += [SA + 4*q + 1, SA + 4*q + 3]
        self.tagcheck(words, t+1, lp, sleep=1)
        self.stamp_w2(11)
        for u in range(4):
            r = SA + 4*u
            a(f"""v_lshlrev_b32 v{t+4}, 16, v{r}
            v_and_b32 v{t+5}, 0xffff0000, v{r}
            v_lshlrev_b32 v{t+6}, 16, v{r+2}
            v_and_b32 v{t+7}, 0xffff0000, v{r+2}""")
            for k in range(4):
                if u == 0: a(f"v_mov_b32 v{ACC+k}, v{t+4+k}")
                else: a(f"v_add_f32 v{ACC+k}, v{ACC+k}, v{t+4+k}")
        for sh in (8, 4, 2, 1):
            a("s_nop 1")
            for k in range(4):
                a(f"v_add_f32_dpp v{ACC+k}, v{ACC+k}, v{ACC+k} row_ror:{sh} row_mask:0xf bank_mask:0xf")
        a(f"""
        v_cvt_pk_bf16_f32 v{t+4}, v{ACC}, v{ACC+1}
        v_cvt_pk_bf16_f32 v{t+5}, v{ACC+2}, v{ACC+3}
        s_and_b32 s65, s2, 15
        s_lshr_b32 s66, s65, 2
        s_lshr_b32 s67, s66, 1
        s_lshl_b32 s67, s67, 11
        s_lshr_b32 s68, s2, 6
        s_lshl_b32 s68, s68, 10
        s_add_u32 s67, s67, s68
        s_bfe_u32 s68, s2, 0x20004
        s_lshl_b32 s68, s68, 8
        s_add_u32 s67, s67, s68
        s_and_b32 s68, s66, 1
        s_lshl_b32 s68, s68, 3
        s_add_u32 s67, s67, s68
        s_and_b32 s68, s65, 3
        s_lshl_b32 s68, s68, 6
        s_add_u32 s67, s67, s68
        v_lshlrev_b32 v{t+1}, 4, v{V_G}
        """)
        self.srd(56, 38, 4096)
        a(f"""
        v_cmp_eq_u32 vcc, 0, v{V_J16}
        s_and_saveexec_b64 s[70:71], vcc
        buffer_store_dwordx2 v[{t+4}:{t+5}], v{t+1}, s[56:59], s67 offen
        s_mov_b64 exec, s[70:71]
        s_cmp_lg_u32 s2, 0
        s_cbranch_scc1 .Lt2end
        v_mov_b32 v{t+1}, 0
        v_mov_b32 v{t+2}, s{S_TAG}
        s_mov_b64 exec, 1
        buffer_store_dword v{t+2}, v{t+1}, {WS}, 0 offen
        s_mov_b64 exec, -1
        """)
        a.label(".Lt2end")
        self.stamp_w2(12)
        self.dump_stamps()
        a("s_branch .Lend")

    def h3_flag(self):
        a = self.a
        a(f"""s_lshl_b32 s64, s{S_AHALF}, 11
        s_lshl_b32 s65, s{S_AB}, 5
        s_add_u32 s64, s64, s65
        s_lshr_b32 s65, s{S_AS}, 3
        s_lshl_b32 s65, s65, 2
        s_add_u32 s64, s64, s65
        s_add_u32 s64, s64, {FL_H3}
        s_and_b32 s65, s{S_AS}, 7
        """)
        self.pub_flag("s64", cond="s_cmp_eq_u32 s65, 5", nrep=16)
    def tail_w3(self):
        a = self.a
        t = T0
        m = M0_
        a.label(".Lt3")
        a(f"""
        v_lshlrev_b32 v{t}, 5, v{V_J16}
        v_add_u32 v{t}, {LBUF}, v{t}
        ds_read_b128 v[{QB}:{QB+3}], v{t}
        ds_read_b128 v[{QB+4}:{QB+7}], v{t} offset:16
        s_waitcnt lgkmcnt(0)
        v_add_f32 v{QB}, v{QB}, v{QB+1}
        v_add_f32 v{QB+2}, v{QB+2}, v{QB+3}
        v_add_f32 v{QB+4}, v{QB+4}, v{QB+5}
        v_add_f32 v{QB+6}, v{QB+6}, v{QB+7}
        v_add_f32 v{QB}, v{QB}, v{QB+2}
        v_add_f32 v{QB+4}, v{QB+4}, v{QB+6}
        v_add_f32 v{t+6}, v{QB}, v{QB+4}
        v_mov_b32 v{t+4}, v{m}
        v_mov_b32 v{t+5}, s{S_TAG}
        v_mov_b32 v{t+7}, s{S_TAG}
        v_lshlrev_b32 v{t}, 11, v{V_J16}
        s_lshl_b32 s64, s{S_AHALF}, 15
        s_lshl_b32 s65, s{S_AB}, 10
        s_add_u32 s64, s64, s65
        s_lshl_b32 s65, s{S_AS}, 4
        s_add_u32 s64, s64, s65
        s_add_u32 s64, s64, {H3S}
        v_cmp_gt_u32 vcc, 16, v{V_LANE}
        s_and_saveexec_b64 s[70:71], vcc
        buffer_store_dwordx4 v[{t+4}:{t+7}], v{t}, {WS}, s64 offen sc1
        s_mov_b64 exec, s[70:71]
""")
        if not self.o.get("h3early", 0): self.h3_flag()
        self.stamp(9)
        self.dump_stamps()
        a("s_branch .Lend")

    def tail_w47(self):
        a = self.a
        t = T0
        a.label(".Lt47")
        a(f"s_sub_u32 s72, s{S_WAVE}, 4")
        VR = VREG
        a(f"""
        v_and_b32 v{t+2}, 1, v{V_J16}
        v_and_b32 v{t+3}, 2, v{V_J16}
        v_lshl_or_b32 v{t+2}, v{t+3}, 2, v{t+2}
        v_lshrrev_b32 v{t+3}, 1, v{V_J16}
        v_and_b32 v{t+3}, 6, v{t+3}
        v_or_b32 v{t+2}, v{t+2}, v{t+3}
        v_xor_b32 v{t+2}, v{t+2}, v{V_G}
        v_lshlrev_b32 v{t+2}, 4, v{t+2}
        v_lshl_add_u32 v{t+2}, v{V_J16}, 8, v{t+2}
        s_lshl_b32 s66, s72, 13
        v_add_u32 v{t+2}, s66, v{t+2}
        v_lshlrev_b32 v{t+8}, 11, v{V_G}
        v_lshl_add_u32 v{t+8}, v{V_J16}, 4, v{t+8}
        s_add_u32 s66, s66, {LV}
        v_add_u32 v{t+8}, s66, v{t+8}            ; V addr
        """)
        for s_ in range(4):
            a(f"v_xor_b32 v{t+4+s_}, {s_*64}, v{t+2}")
        self.wait_flag(F_LANDED, 10, sleep=1)
        for tau in range(2):
            for s_ in range(4):
                r = KREG + 16*tau + 4*s_
                a(f"ds_read_b128 v[{r}:{r+3}], v{t+4+s_} offset:{LK + tau*4096}")
        self.stamp(9)
        self.wait_flag(F_QB, 4)
        QF = SA + 32
        a(f"""v_and_b32 v{t+1}, 3, v{V_J16}
        v_lshlrev_b32 v{t+1}, 8, v{t+1}
        v_lshl_add_u32 v{t+1}, v{V_G}, 4, v{t+1}
        v_add_u32 v{t+1}, {QBL}, v{t+1}""")
        for s in range(4):
            a(f"ds_read_b128 v[{QF+4*s}:{QF+4*s+3}], v{t+1} offset:{64*s}")
        a("s_waitcnt lgkmcnt(0)")
        SB = SA + 48
        for s in range(4):
            for tau in range(2):
                c = "0" if s == 0 else f"v[{SB+4*tau}:{SB+4*tau+3}]"
                a(f"v_mfma_f32_16x16x32_bf16 v[{SB+4*tau}:{SB+4*tau+3}], v[{KREG+16*tau+4*s}:{KREG+16*tau+4*s+3}], v[{QF+4*s}:{QF+4*s+3}], {c}")
        m = M0_
        a(f"""s_nop 7
        s_nop 1
        v_max3_f32 v{m}, v{SB}, v{SB+1}, v{SB+2}
        v_max3_f32 v{m}, v{m}, v{SB+3}, v{SB+4}
        v_max3_f32 v{m}, v{m}, v{SB+5}, v{SB+6}
        v_max_f32 v{m}, v{m}, v{SB+7}""")
        self.xrow_reduce("v_max_f32", m, m+2)
        for r in range(8): a(f"v_sub_f32 v{SB+r}, v{SB+r}, v{m}")
        for r in range(8): a(f"v_exp_f32 v{SB+r}, v{SB+r}")
        a(f"""s_nop 0
        v_add_f32 v{m+1}, v{SB}, v{SB+1}
        v_add_f32 v{m+2}, v{SB+2}, v{SB+3}
        v_add_f32 v{m+3}, v{SB+4}, v{SB+5}
        v_add_f32 v{m+4}, v{SB+6}, v{SB+7}
        v_add_f32 v{m+1}, v{m+1}, v{m+2}
        v_add_f32 v{m+3}, v{m+3}, v{m+4}
        v_add_f32 v{m+1}, v{m+1}, v{m+3}
        v_cvt_pk_bf16_f32 v{m+4}, v{SB}, v{SB+1}
        v_cvt_pk_bf16_f32 v{m+5}, v{SB+2}, v{SB+3}
        v_cvt_pk_bf16_f32 v{m+6}, v{SB+4}, v{SB+5}
        v_cvt_pk_bf16_f32 v{m+7}, v{SB+6}, v{SB+7}
        s_lshl_b32 s65, s72, 8
        s_add_u32 s65, s65, {PBL}
        v_lshlrev_b32 v{t+1}, 6, v{V_J16}
        v_lshl_add_u32 v{t+1}, v{V_G}, 3, v{t+1}
        v_add_u32 v{t+1}, s65, v{t+1}
        v_cmp_gt_u32 vcc, 4, v{V_J16}
        s_and_saveexec_b64 s[70:71], vcc
        ds_write_b64 v{t+1}, v[{m+4}:{m+5}]
        ds_write_b64 v{t+1}, v[{m+6}:{m+7}] offset:32
        s_mov_b64 exec, s[70:71]
        """)
        self.xrow_reduce("v_add_f32", m+1, m+2)
        PX = QB
        a(f"""
        v_lshrrev_b32 v{t+1}, 3, v{V_J16}
        v_lshlrev_b32 v{t+1}, 6, v{t+1}
        v_lshl_add_u32 v{t+1}, v{V_G}, 4, v{t+1}
        v_add_u32 v{t+1}, s65, v{t+1}
        s_waitcnt lgkmcnt(0)
        ds_read_b128 v[{PX}:{PX+3}], v{t+1}
        ds_read_b128 v[{PX+4}:{PX+7}], v{t+1} offset:128
        s_waitcnt lgkmcnt(0)
        """)
        self.stamp(10)

        self.wait_flag(F_LANDED, 13 if self.o.get("wuvfirst", 0) else 12, sleep=1)
        for k in range(8):
            a(f"ds_read_b128 v[{VR+4*k}:{VR+4*k+3}], v{t+8} offset:{256*k}")
        sets = [QB+8, QB+12, QB+16, QB+20]
        OA = SA
        def perms(k, hp):
            A = sets[(2*k + hp) % 4]
            for kk in range(4):
                a(f"v_perm_b32 v{A+kk}, v{PX+4*hp+k//2}, v{PX+4*hp+k//2}, v{SEL[k%2][kk]}")
        perms(0, 0); perms(0, 1)
        for k in range(8):
            a(f"s_waitcnt lgkmcnt({7-k})")
            for hp in range(2):
                A = sets[(2*k + hp) % 4]
                c = "0" if k == 0 else f"v[{OA+4*hp}:{OA+4*hp+3}]"
                if k == 0 and hp == 0: a("s_nop 1")
                a(f"v_mfma_f32_16x16x32_bf16 v[{OA+4*hp}:{OA+4*hp+3}], v[{A}:{A+3}], v[{VR+4*k}:{VR+4*k+3}], {c}")
                if k + 1 < 8: perms(k + 1, hp)
                else: a("s_nop 1")
        a(f"""s_nop 7
        s_nop 1
        s_lshl_b32 s65, s72, 11
        s_add_u32 s65, s65, {OBL}
        v_lshlrev_b32 v{t+1}, 4, v{V_LANE}
        v_add_u32 v{t+1}, s65, v{t+1}
        ds_write_b128 v{t+1}, v[{OA}:{OA+3}]
        ds_write_b128 v{t+1}, v[{OA+4}:{OA+7}] offset:1024
        s_lshl_b32 s65, s72, 5
        s_add_u32 s65, s65, {OBS}
        v_lshlrev_b32 v{t+1}, 3, v{V_J16}
        v_add_u32 v{t+1}, s65, v{t+1}
        v_cmp_gt_u32 vcc, 4, v{V_LANE}
        s_and_saveexec_b64 s[70:71], vcc
        ds_write_b64 v{t+1}, v[{m}:{m+1}]
        s_mov_b64 exec, s[70:71]
        s_waitcnt lgkmcnt(0)
        v_mov_b32 v{t+1}, {FLAGS + 4*F_BARR}
        v_mov_b32 v{t+2}, 1
        s_mov_b64 exec, 1
        ds_add_rtn_u32 v{t+3}, v{t+1}, v{t+2}
        s_waitcnt lgkmcnt(0)
        s_mov_b64 exec, -1
        v_readfirstlane_b32 s65, v{t+3}
        s_nop 1
        s_cmp_lg_u32 s65, 3
        s_cbranch_scc1 .Lt47end
        """)
        a(f"""
        v_lshlrev_b32 v{t+1}, 4, v{V_LANE}
        v_add_u32 v{t+1}, {OBL}, v{t+1}
        v_lshrrev_b32 v{t+2}, 1, v{V_G}
        v_lshlrev_b32 v{t+2}, 3, v{t+2}
        v_add_u32 v{t+2}, {OBS}, v{t+2}
        """)
        OZ = SA
        ST = SA + 32
        for z in range(4):
            for hp in range(2):
                a(f"ds_read_b128 v[{OZ+8*z+4*hp}:{OZ+8*z+4*hp+3}], v{t+1} offset:{z*2048+hp*1024}")
        a("s_waitcnt lgkmcnt(4)")
        for z in range(4):
            for hp in range(2):
                a(f"ds_read_b64 v[{ST+4*z+2*hp}:{ST+4*z+2*hp+1}], v{t+2} offset:{z*32+hp*16}")
        a("s_waitcnt lgkmcnt(0)")
        F = SA + 48
        for hp in range(2):
            ms = [ST+4*z+2*hp for z in range(4)]
            a(f"v_max3_f32 v{F}, v{ms[0]}, v{ms[1]}, v{ms[2]}")
            a(f"v_max_f32 v{F}, v{F}, v{ms[3]}")
            for z in range(4): a(f"v_sub_f32 v{F+1+z}, v{ms[z]}, v{F}")
            for z in range(4): a(f"v_exp_f32 v{F+1+z}, v{F+1+z}")
            a("s_nop 0")
            a(f"v_mul_f32 v{F+5}, v{F+1}, v{ms[0]+1}")
            for z in range(1, 4): a(f"v_fmac_f32 v{F+5}, v{F+1+z}, v{ms[z]+1}")
            for r in range(4):
                a(f"v_mul_f32 v{F+6+r}, v{F+1}, v{OZ+4*hp+r}")
                for z in range(1, 4):
                    a(f"v_fmac_f32 v{F+6+r}, v{F+1+z}, v{OZ+8*z+4*hp+r}")
            q = QB + 8*hp
            a(f"""v_cvt_pk_bf16_f32 v{q}, v{F+6}, v{F+7}
            v_cvt_pk_bf16_f32 v{q+2}, v{F+8}, v{F+9}
            v_mov_b32 v{q+1}, s{S_TAG}
            v_mov_b32 v{q+3}, s{S_TAG}
            v_mov_b32 v{q+4}, v{F}
            v_mov_b32 v{q+5}, s{S_TAG}
            v_mov_b32 v{q+6}, v{F+5}
            v_mov_b32 v{q+7}, s{S_TAG}""")
        a(f"""
        s_lshr_b32 s64, s2, 7
        s_lshl_b32 s64, s64, 5
        s_and_b32 s65, s2, 7
        s_lshl_b32 s65, s65, 2
        s_add_u32 s64, s64, s65
        s_lshl_b32 s64, s64, 4
        s_bfe_u32 s65, s2, 0x40003
        s_add_u32 s64, s64, s65
        s_lshl_b32 s66, s64, 9
        s_add_u32 s66, s66, {H3B}
        s_add_u32 s67, s66, 16384
        s_lshl_b32 s68, s64, 4
        s_add_u32 s68, s68, {H3BS}
        v_lshrrev_b32 v{t+1}, 1, v{V_G}
        v_lshlrev_b32 v{t+2}, 13, v{t+1}
        v_lshl_add_u32 v{t+2}, v{V_J16}, 5, v{t+2}
        v_and_b32 v{t+3}, 1, v{V_G}
        v_lshl_add_u32 v{t+2}, v{t+3}, 4, v{t+2}
        buffer_store_dwordx4 v[{QB}:{QB+3}], v{t+2}, {WS}, s66 offen sc1
        buffer_store_dwordx4 v[{QB+8}:{QB+11}], v{t+2}, {WS}, s67 offen sc1
        v_lshlrev_b32 v{t+1}, 8, v{t+1}
        v_and_b32 v{t+3}, 31, v{V_LANE}
        v_cmp_eq_u32 vcc, 0, v{t+3}
        s_and_saveexec_b64 s[70:71], vcc
        buffer_store_dwordx4 v[{QB+4}:{QB+7}], v{t+1}, {WS}, s68 offen sc1
        buffer_store_dwordx4 v[{QB+12}:{QB+15}], v{t+1}, {WS}, s68 offen offset:512 sc1
        s_mov_b64 exec, s[70:71]
        s_and_b32 s64, s2, 7
        s_lshl_b32 s64, s64, 9
        s_lshr_b32 s65, s2, 7
        s_lshl_b32 s65, s65, 5
        s_add_u32 s64, s64, s65
        s_bfe_u32 s65, s2, 0x30004
        s_lshl_b32 s65, s65, 2
        s_add_u32 s64, s64, s65
        s_add_u32 s64, s64, {FL_H3B}
        """)
        self.pub_flag("s64", cond="s_bitcmp1_b32 s2, 3", nrep=4)
        a.label(".Lt47end")
        self.stamp(11)
        self.dump_stamps()
        a("s_branch .Lend")

    def build(self):
        a = self.a
        name = KNAME + "_kernel"
        a.raw(HEADER.rstrip())
        a.raw(f"; @launch grid=(256,1,1) block=(512,1,1) lds={LDS_TOTAL}")
        a.raw(DOC.rstrip())
        a.raw('.amdgcn_target "amdgcn-amd-amdhsa--gfx950"')
        kernel_begin(a, name)
        self.prologue()
        self.w0_front()
        self.w1_front()
        self.w2_front()
        self.w3_front()
        self.w47_front()
        self.attn()
        self.tail_w0()
        self.tail_w1()
        self.tail_w2()
        self.tail_w3()
        self.tail_w47()
        a.label(".Lend")
        a("s_endpgm")
        return a.text() + kernel_desc(name, 256, 102, 256)

if __name__ == "__main__":
    import argparse
    ap = argparse.ArgumentParser()
    ap.add_argument("-o", default="k2.s")
    ap.add_argument("--diag", action="store_true")
    ap.add_argument("--depth", type=int, default=24)
    ap.add_argument("--ldepth", type=int, default=4)
    ap.add_argument("--opt", action="append", default=[])
    args = ap.parse_args()
    opts = {k: int(v) for k, v in (x.split("=") for x in args.opt)}
    open(args.o, "w").write(G(diag=args.diag, depth=args.depth, ldepth=args.ldepth, opts=opts).build())
```
